```python
import torch

def _softmax(x, axis=-1):
    return torch.softmax(x, dim=axis)
def _gelu(x):
    return torch.nn.functional.gelu(x, approximate="tanh")
def _silu(x):
    return torch.nn.functional.silu(x)
def _sigmoid(x):
    return torch.sigmoid(x)
def _layernorm(x, axis=-1, eps=1e-5):
    m = x.mean(dim=axis, keepdim=True)
    v = x.var(dim=axis, keepdim=True, unbiased=False)
    return (x - m) / torch.sqrt(v + eps)
def _scatter_add(tgt, idx, src, axis=0):
    return tgt.clone().index_add_(axis, idx, src)
def _segment_sum(src, seg, n):
    out = torch.zeros((n,) + src.shape[1:], dtype=src.dtype)
    return out.index_add_(0, seg, src)
def _pad(x, pw):
    flat = tuple(v for pair in reversed(pw) for v in pair)
    return torch.nn.functional.pad(x, flat)

kernel_name = 'recurrent_scan__sliding_block_cached__geglu_ffn__decode'

def setup_inputs():

    _w = (lambda a: (lambda t: t.to(torch.bfloat16) if t.is_floating_point() else t)(torch.as_tensor(a)))
    def _A_setup():
        B, Sq, D = 4, 1, 576
        Hq, Hkv, Sk, Dh = 32, 16, 8192, 128
        assert Hq % Hkv == 0, (Hq, Hkv)
        return {
            "x": _w((lambda *s: torch.randn(*s, dtype=torch.bfloat16) * 0.05)(B, Sq, D)),
            "k_cache": _w((lambda *s: torch.randn(*s, dtype=torch.bfloat16) * 0.8)(B, Hkv, Sk, Dh)),
            "v_cache": _w((lambda *s: torch.randn(*s, dtype=torch.bfloat16) * 0.2)(B, Hkv, Sk, Dh)),
            "wq": _w((lambda *s: torch.randn(*s, dtype=torch.bfloat16) * 0.8)(D, Hq * Dh) * (D ** -0.5)),
            "wo": _w((lambda *s: torch.randn(*s, dtype=torch.bfloat16) * 0.2)(Hq * Dh, D) * ((Hq * Dh) ** -0.5)),
        }
    _A_in = _A_setup()

    def _B_setup():
        B, S, D, F = 4, 1, 576, 4608
        return {
            "x": _w((lambda *s: torch.randn(*s, dtype=torch.bfloat16) * 0.05)(B, S, D)),
            "w_gate": _w((lambda *s: torch.randn(*s, dtype=torch.bfloat16) * 0.1)(D, F)),
            "w_up": _w((lambda *s: torch.randn(*s, dtype=torch.bfloat16) * 0.1)(D, F)),
            "w_down": _w((lambda *s: torch.randn(*s, dtype=torch.bfloat16) * 0.1)(F, D)),
        }
    _B_in = _B_setup()

    return {
        "A_x": _A_in["x"],
        "A_k_cache": _A_in["k_cache"],
        "A_v_cache": _A_in["v_cache"],
        "A_wq": _A_in["wq"],
        "A_wo": _A_in["wo"],
        "B_x": _B_in["x"],
        "B_w_gate": _B_in["w_gate"],
        "B_w_up": _B_in["w_up"],
        "B_w_down": _B_in["w_down"],
    }

def reference(A_x, A_k_cache, A_v_cache, A_wq, A_wo, B_x, B_w_gate, B_w_up, B_w_down):
    def _A_ref(x, k_cache, v_cache, wq, wo):
        B, Sq, D = x.shape
        Hq, Dh = 32, 128
        Hkv, Sk = k_cache.shape[1], k_cache.shape[2]
        W = min(4096, max(256, Sk // 4))
        rep = Hq // Hkv
        q = (lambda x, *d: x.permute(*d))((x @ wq).reshape(B, Sq, Hq, Dh), 0, 2, 1, 3)
        k = (lambda x, n, axis: torch.repeat_interleave(x, n, dim=axis))(k_cache[:, :, Sk - W:, :], rep, axis=1)
        v = (lambda x, n, axis: torch.repeat_interleave(x, n, dim=axis))(v_cache[:, :, Sk - W:, :], rep, axis=1)
        scores = torch.einsum("bhqd,bhkd->bhqk", q, k) * (Dh ** -0.5)
        p = _softmax(scores, axis=-1)
        o = torch.einsum("bhqk,bhkd->bhqd", p, v)
        return (lambda x, *d: x.permute(*d))(o, 0, 2, 1, 3).reshape(B, Sq, Hq * Dh) @ wo

    def _B_ref(x, w_gate, w_up, w_down):
        return (_gelu(x @ w_gate) * (x @ w_up)) @ w_down

    x = A_x
    xn = _layernorm(x, axis=-1)
    s = _A_ref(xn, A_k_cache, A_v_cache, A_wq, A_wo)
    g = _silu(_B_ref(xn, B_w_gate, B_w_up, B_w_down))
    return x + s * g
```

```python
import sys, struct

KN = "recurrent_scan__sliding_block_cached__geglu_ffn__decode"

RING_KB = 148
RING_BYTES = RING_KB * 1024
AUX = RING_BYTES
XN = AUX
XN_STRIDE = 1216
H_STRIDE = 576
QL = AUX + 4864
OW = AUX + 5376
FULL = AUX + 9472
FREE = AUX + 9728
STW = AUX + 9744
SC = AUX + 9808
CNT_STAT = AUX + 9840
CNT_O = AUX + 9844
FLAG_Q = AUX + 9848
FLAG_H = AUX + 9852
FLAG_SC = AUX + 9856
CNT_P = AUX + 9860
LDS_TOTAL = AUX + 9984

WS_C = 0
C_STRIDE = 26624
WS_ST = 0x1A000
WS_OP = 0x1B000
WS_PART = 0x5B000
WS_SIZE = 0x10F000

P_K, P_V, P_W = 72, 200, 328

def f32(x):
    return "0x%08x" % struct.unpack("<I", struct.pack("<f", x))[0]

LOG2E = 1.4426950408889634


class Gen:
    def __init__(self, W=20, stamps=False, nt=True, spin=1 << 16, sleep=True, tsleep=1, csleep=0, abl=()):
        self.o = []
        self.n = 0
        self.W = W
        self.stamps = stamps
        self.nt = " nt" if nt else ""
        self.spin = spin
        self.sleep = sleep
        self.flagpos = 56
        self.tsleep = tsleep
        self.abl = set(abl)
        self.csleep = csleep

    def e(self, s):
        for line in s.strip("\n").split("\n"):
            self.o.append(line if line.rstrip().endswith(":") and not line.startswith(" ") else "    " + line.strip())

    def lab(self, p="L"):
        self.n += 1
        return "%s_%d" % (p, self.n)

    def label(self, l):
        self.o.append(l + ":")

    def sreg(self, k):
        return 70 + 2 * k if k < 10 else 92 + 2 * (k - 10)

    def stamp(self, k):
        if self.stamps:
            self.e("s_memrealtime s[%d:%d]" % (self.sreg(k), self.sreg(k) + 1))

    def rawstamp(self, k, expr_reg):
        if self.stamps:
            self.e("s_sub_u32 s%d, %d, %s\ns_mov_b32 s%d, 0" % (self.sreg(k), self.spin, expr_reg, self.sreg(k) + 1))

    def flush_stamps(self, items):
        if not self.stamps:
            return
        self.e("""
s_waitcnt lgkmcnt(0)
s_add_u32 s64, s26, 0x10000000
s_addc_u32 s65, s27, 0
s_mov_b32 s66, 0x100000
s_mov_b32 s67, 0x00020000
s_mul_i32 s68, s2, 256
s_mov_b64 exec, 1
""")
        for k, slot in items:
            self.e("""
v_mov_b32 v250, s%d
v_mov_b32 v251, s%d
v_mov_b32 v252, %d
buffer_store_dwordx2 v[250:251], v252, s[64:67], s68 offen
s_nop 1
""" % (self.sreg(k), self.sreg(k) + 1, slot * 8))

    def wait_lds(self, vaddr, sreg, thr, vtmp, cached=True, sleep=0):
        l = self.lab("Lw")
        d = self.lab("Ld")
        if cached:
            self.e("s_cmp_ge_i32 %s, %s\ns_cbranch_scc1 %s" % (sreg, thr, d))
        self.label(l)
        self.e("ds_read_b32 %s, %s\ns_waitcnt lgkmcnt(0)\nv_readfirstlane_b32 %s, %s" % (vtmp, vaddr, sreg, vtmp))
        self.e("s_cmp_ge_i32 %s, %s\ns_cbranch_scc1 %s" % (sreg, thr, d))
        sleep = sleep or self.csleep
        if sleep:
            self.e("s_sleep %d" % sleep)
        self.e("s_sub_i32 s69, s69, 1\ns_cmp_gt_i32 s69, 0\ns_cbranch_scc1 %s" % l)
        self.label(d)

    def prologue(self):
        self.e("""
s_cmp_ge_u32 s2, 256
s_cbranch_scc1 L_end
s_load_dwordx16 s[4:19], s[0:1], 0
s_load_dwordx8 s[20:27], s[0:1], 64
v_lshrrev_b32 v1, 6, v0
v_and_b32 v0, 63, v0
s_and_b32 s30, s2, 7
s_mov_b32 s69, 0x400000
v_readfirstlane_b32 s36, v1
s_lshr_b32 s31, s2, 3
s_lshr_b32 s32, s31, 4
s_lshl_b32 s33, s30, 1
s_add_u32 s32, s32, s33
s_lshr_b32 s34, s31, 2
s_and_b32 s34, s34, 3
s_and_b32 s35, s31, 3
s_lshl_b32 s33, s34, 4
s_add_u32 s33, s33, s32
s_cmp_eq_u32 s36, 1
s_cbranch_scc1 L_comm
s_cmp_lg_u32 s36, 0
s_cbranch_scc1 L_cons
""")

    def tile_ids(self):
        self.e("""
s_mul_i32 s37, s30, 24
s_add_u32 s37, s37, s31
s_mul_i32 s38, s30, 6
s_add_u32 s38, s38, s31
s_add_u32 s38, s38, 166
s_cmp_ge_u32 s31, 26
s_cselect_b32 s37, s38, s37
s_mul_i32 s39, s37, 0x5556
s_lshr_b32 s39, s39, 16
s_mul_i32 s38, s39, 3
s_sub_u32 s38, s37, s38
""")

    def loader(self):
        W = self.W
        nt = self.nt
        e = self.e
        self.stamp(0)
        e("s_setprio 3")
        e("""
v_lshrrev_b32 v8, 4, v0
v_and_b32 v9, 15, v0
v_lshlrev_b32 v10, 1, v8
v_xor_b32 v11, v9, v10
v_lshlrev_b32 v11, 4, v11
v_lshl_add_u32 v1, v8, 8, v11
v_xor_b32 v2, 0x80, v1
""")
        e("""
s_movk_i32 s41, 0x2400
s_cmp_lt_u32 s31, 8
s_cselect_b32 s40, 0x2000, s41
v_lshrrev_b32 v12, 3, v0
v_and_b32 v13, 7, v0
v_xor_b32 v13, v13, v10
v_lshlrev_b32 v13, 4, v13
v_mul_lo_u32 v12, v12, s40
v_add_u32 v3, v12, v13
s_lshl_b32 s41, s40, 3
s_sub_u32 s42, s41, 1024
v_add_u32 v4, s42, v3
v_add_u32 v5, s42, v4
v_add_u32 v6, s42, v5
s_lshl_b32 s41, s41, 2
""")
        for i in range(3):
            e("""
v_add_u32 v12, %d, v0
v_mul_u32_u24 v13, 2731, v12
v_lshrrev_b32 v13, 16, v13
v_mul_u32_u24 v14, 24, v13
v_sub_u32 v14, v12, v14
v_and_b32 v15, 6, v13
v_xor_b32 v14, v14, v15
v_mul_u32_u24 v13, 1152, v13
v_lshl_add_u32 v%d, v14, 4, v13
""" % (64 * i, 17 + i))
        e("""
v_mov_b32 v7, v17
v_add_u32 v8, 0xfffffc00, v18
v_add_u32 v9, 0xfffff800, v19
v_lshlrev_b32 v10, 2, v0
v_add_u32 v10, %d, v10
v_mov_b32 v11, %d
""" % (FULL, FREE))
        self.tile_ids()
        e("""
s_lshl_b32 s43, s30, 3
s_add_u32 s43, s43, s31
s_mul_i32 s44, s30, 9
s_add_u32 s44, s44, s31
s_sub_u32 s45, s44, 8
s_sub_u32 s44, s44, 17
s_cmp_lt_u32 s31, 17
s_cselect_b32 s44, s45, s44
s_cmp_lt_u32 s31, 8
s_cselect_b32 s43, s43, s44
s_lshl_b32 s51, s43, 7
s_lshl_b32 s46, s33, 21
s_add_u32 s46, s46, 0x180000
s_lshl_b32 s47, s35, 17
s_add_u32 s46, s46, s47
s_mov_b32 s63, 0x00020000
s_mov_b32 s55, 0
s_waitcnt lgkmcnt(0)
""")
        first = [True]

        def run(pats, step_reg_or_imm, n_iter, check_free, label=None):
            n = len(pats)
            L = self.lab("Lrun")
            e("s_mov_b32 s52, %d" % n_iter)
            self.label(L)
            if check_free:
                ok = self.lab("Lok")
                sl = self.lab("Lsl")
                e("s_add_i32 s54, s53, %d\ns_cmp_le_i32 s54, s55\ns_cbranch_scc1 %s" % (n - RING_KB, ok))
                self.label(sl)
                e("""
ds_read_b128 v[12:15], v11
s_waitcnt lgkmcnt(0)
v_min_u32 v12, v12, v13
v_min3_u32 v12, v12, v14, v15
s_nop 0
v_readfirstlane_b32 s55, v12
s_cmp_le_i32 s54, s55
s_cbranch_scc1 %s
s_sub_i32 s69, s69, 1
s_cmp_gt_i32 s69, 0
s_cbranch_scc1 %s
""" % (ok, sl))
                self.label(ok)
            e("s_mov_b32 m0, s50")
            e("s_add_u32 s50, s50, %d" % (n * 1024))
            for i, p in enumerate(pats):
                off = " offset:%d" % (i * 1024) if i else ""
                e("buffer_load_dwordx4 v%d, s[60:63], s51 offen%s%s lds" % (p, off, nt))
            e("s_add_u32 s51, s51, %s" % step_reg_or_imm)
            e("s_cmp_eq_u32 s50, %d\ns_cselect_b32 s50, 0, s50" % RING_BYTES)
            e("s_add_u32 s53, s53, %d" % n)
            e("s_waitcnt vmcnt(%d)" % W)
            e("s_sub_u32 s54, s53, %d\nv_mov_b32 v16, s54\nds_write_b32 v10, v16" % W)
            e("s_sub_u32 s52, s52, 1\ns_cmp_lg_u32 s52, 0\ns_cbranch_scc1 %s" % L)

        e("""
s_cmp_ge_u32 s31, 26
s_cbranch_scc1 L_ld_nocol
s_cmp_lt_u32 s31, 17
s_cselect_b32 s60, s16, s18
s_cselect_b32 s61, s17, s19
s_cmp_lt_u32 s31, 8
s_cselect_b32 s60, s10, s60
s_cselect_b32 s61, s11, s61
s_mul_i32 s62, s40, 576
s_mov_b32 s50, 4096
s_mov_b32 s53, 4
s_mov_b32 m0, 0
s_nop 0
""")
        for i, p in enumerate([3, 4, 5, 6]):
            off = " offset:%d" % (i * 1024) if i else ""
            e("buffer_load_dwordx4 v%d, s[60:63], s51 offen%s%s lds" % (p, off, nt))
        e("s_add_u32 s51, s51, s41")
        e("s_barrier")
        run([3, 4, 5, 6], "s41", 17, False)
        e("s_branch L_ld_k")
        self.label("L_ld_nocol")
        e("s_mov_b32 s50, %d\ns_mov_b32 s53, %d\ns_barrier" % (P_K * 1024, P_K))
        self.label("L_ld_k")
        self.stamp(1)
        e("s_mov_b32 s60, s6\ns_mov_b32 s61, s7\ns_mov_b32 s62, 0x8000000\ns_mov_b32 s51, s46")
        run([1, 2, 1, 2], "4096", 32, True)
        e("s_mov_b32 s60, s8\ns_mov_b32 s61, s9\ns_mov_b32 s51, s46")
        run([1, 2, 1, 2], "4096", 32, True)
        self.stamp(2)
        e("""
s_cmp_ge_u32 s31, 26
s_cbranch_scc1 L_ld_down
s_cmp_ge_u32 s31, 24
s_cbranch_scc1 L_ld_drain
s_mov_b32 s60, s12
s_mov_b32 s61, s13
s_mov_b32 s62, %d
s_mul_i32 s51, s39, 73728
s_mul_i32 s54, s38, 384
s_add_u32 s51, s51, s54
s_mov_b32 s56, 8
s_branch L_ld_w
""" % (4096 * 1152))
        self.label("L_ld_down")
        e("""
s_mov_b32 s60, s20
s_mov_b32 s61, s21
s_mov_b32 s62, %d
s_sub_u32 s51, s39, 64
s_mul_i32 s51, s51, 331776
s_mul_i32 s54, s38, 384
s_add_u32 s51, s51, s54
s_mov_b32 s56, 36
""" % (4608 * 1152))
        self.label("L_ld_w")
        o = len(self.o)
        run([7, 8, 9], "9216", 0, True)
        self.o[o] = "    s_mov_b32 s52, s56"
        self.label("L_ld_drain")
        for w in (16, 12, 8, 4, 0):
            if w < W:
                e("s_waitcnt vmcnt(%d)\ns_sub_u32 s54, s53, %d\nv_mov_b32 v16, s54\nds_write_b32 v10, v16" % (w, w))
        self.stamp(3)
        self.flush_stamps([(0, 0), (1, 1), (2, 2), (3, 3)])
        e("s_endpgm")

    def gather(self, loads, regs, vt, strycnt="s59", sleep=8):
        e = self.e
        L = self.lab("Lg")
        D = self.lab("Lgd")
        e("s_mov_b32 %s, %d\ns_mov_b64 s[90:91], exec" % (strycnt, self.spin))
        self.label(L)
        for l in loads:
            e(l)
        e("s_waitcnt vmcnt(0)")
        rs = list(regs)
        if len(rs) == 1:
            e("v_cmp_eq_u32 vcc, -1, v%d" % rs[0])
        else:
            if len(rs) == 2:
                e("v_max_u32 v%d, v%d, v%d" % (vt, rs[0], rs[1]))
                rs = []
            else:
                e("v_max3_u32 v%d, v%d, v%d, v%d" % (vt, rs[0], rs[1], rs[2]))
                rs = rs[3:]
            while rs:
                if len(rs) >= 2:
                    e("v_max3_u32 v%d, v%d, v%d, v%d" % (vt, vt, rs[0], rs[1]))
                    rs = rs[2:]
                else:
                    e("v_max_u32 v%d, v%d, v%d" % (vt, vt, rs[0]))
                    rs = []
            e("v_cmp_eq_u32 vcc, -1, v%d" % vt)
        e("s_cbranch_vccz %s" % D)
        e("s_mov_b64 exec, vcc")
        if sleep:
            e("s_sleep %d" % sleep)
        e("s_sub_u32 %s, %s, 1\ns_cmp_lg_u32 %s, 0\ns_cbranch_scc1 %s" % (strycnt, strycnt, strycnt, L))
        self.label(D)
        e("s_mov_b64 exec, s[90:91]")

    def ws_srd(self):
        self.e("s_mov_b32 s40, s26\ns_mov_b32 s41, s27\ns_mov_b32 s42, %d\ns_mov_b32 s43, 0x00020000" % WS_SIZE)

    def set_flag(self, addr, vt0, vt1):
        self.e("s_mov_b64 exec, 1\nv_mov_b32 v%d, %d\nv_mov_b32 v%d, 1\nds_write_b32 v%d, v%d\ns_mov_b64 exec, -1" % (vt0, addr, vt1, vt0, vt1))

    def comm(self):
        e = self.e
        self.label("L_comm")
        e("""
v_lshlrev_b32 v1, 3, v0
v_add_u32 v1, %d, v1
v_mov_b32 v2, 0
v_mov_b32 v3, 0
ds_write_b64 v1, v[2:3]
v_mov_b32 v4, -1
v_mov_b32 v5, -1
v_mov_b32 v6, -1
v_mov_b32 v7, -1
v_lshlrev_b32 v8, 4, v0
""" % FULL)
        self.tile_ids()
        e("""
s_lshl_b32 s44, s30, 3
s_add_u32 s44, s44, s31
s_mul_i32 s46, s30, 9
s_add_u32 s46, s46, s31
s_add_u32 s47, s46, 56
s_add_u32 s46, s46, 119
s_cmp_lt_u32 s31, 17
s_cselect_b32 s46, s47, s46
s_cmp_lt_u32 s31, 8
s_cselect_b32 s44, s44, s46
s_lshl_b32 s45, s33, 2
s_add_u32 s45, s45, s35
v_lshrrev_b32 v9, 3, v0
v_mul_u32_u24 v9, %d, v9
v_and_b32 v10, 7, v0
v_lshl_add_u32 v9, v10, 4, v9
s_waitcnt lgkmcnt(0)
s_barrier
""" % C_STRIDE)
        if "nocomm" in self.abl:
            self.set_flag(FLAG_Q, 21, 22)
            self.set_flag(FLAG_H, 21, 22)
            self.set_flag(FLAG_SC, 21, 22)
            e("s_endpgm")
        self.ws_srd()
        e("""
s_mov_b32 s48, s24
s_mov_b32 s49, s25
s_mov_b32 s50, 256
s_mov_b32 s51, 0x00020000
s_lshl_b32 s46, s45, 10
s_add_u32 s46, s46, %d
buffer_store_dwordx4 v[4:7], v8, s[40:43], s46 offen sc1
s_lshl_b32 s47, s45, 4
s_add_u32 s47, s47, %d
s_mov_b64 exec, 1
buffer_store_dwordx4 v[4:7], v8, s[40:43], s47 offen sc1
s_mov_b64 exec, -1
s_cmp_ge_u32 s31, 26
s_cbranch_scc1 L_cm_noc
s_lshl_b32 s46, s44, 7
s_mov_b32 exec_hi, 0
buffer_store_dwordx4 v[4:7], v9, s[40:43], s46 offen sc1
s_mov_b32 exec_hi, -1
s_cmp_ge_u32 s31, 24
s_cbranch_scc1 L_cm_nop
L_cm_noc:
s_mul_i32 s46, s37, 3072
s_add_u32 s46, s46, %d
buffer_store_dwordx4 v[4:7], v8, s[40:43], s46 offen sc1
buffer_store_dwordx4 v[4:7], v8, s[40:43], s46 offen offset:1024 sc1
buffer_store_dwordx4 v[4:7], v8, s[40:43], s46 offen offset:2048 sc1
L_cm_nop:
""" % (WS_OP, WS_ST, WS_PART))
        e("""
s_and_b32 s46, s2, 3
s_lshl_b32 s46, s46, 3
s_lshl_b32 s46, 1, s46
v_mov_b32 v10, s46
s_and_b32 s46, s2, 0xfc
v_mov_b32 v11, 0
v_lshlrev_b32 v12, 2, v0
s_waitcnt vmcnt(0)
s_mov_b64 exec, 1
buffer_atomic_add v10, v11, s[48:51], s46 offen sc1
s_mov_b64 exec, -1
""")
        self.stamp(7)
        if "comm_clr" in self.abl:
            self.set_flag(FLAG_Q, 21, 22)
            self.set_flag(FLAG_H, 21, 22)
            self.set_flag(FLAG_SC, 21, 22)
            e("s_endpgm")
        e("""
s_mul_i32 s52, s2, 1821
s_lshr_b32 s52, s52, 16
s_mul_i32 s53, s52, 36
s_sub_u32 s53, s2, s53
s_mul_i32 s54, s52, 1152
s_lshl_b32 s55, s53, 5
s_add_u32 s54, s54, s55
s_mov_b32 s60, s4
s_mov_b32 s61, s5
s_mov_b32 s62, 4608
s_mov_b32 s63, 0x00020000
v_and_b32 v13, 3, v0
v_lshlrev_b32 v42, 3, v13
buffer_load_dwordx2 v[40:41], v42, s[60:63], s54 offen
""")
        e("s_cmp_ge_u32 s31, 26\ns_cselect_b32 s47, %d, %d\nv_mov_b32 v15, %d" % (P_K + self.flagpos, self.flagpos, FULL))
        self.wait_lds("v15", "s46", "s47", "v14", cached=False, sleep=4)
        self.stamp(8)
        L = self.lab("Lfl")
        D = self.lab("Lfld")
        e("s_mov_b32 s59, %d\ns_mov_b32 s46, 0x01010101" % self.spin)
        self.label(L)
        e("""
buffer_load_dword v14, v12, s[48:51], 0 offen sc1
s_waitcnt vmcnt(0)
v_cmp_ne_u32 vcc, s46, v14
s_cbranch_vccz %s
s_sleep 16
s_sub_u32 s59, s59, 1
s_cmp_lg_u32 s59, 0
s_cbranch_scc1 %s
""" % (D, L))
        self.label(D)
        self.stamp(0)
        self.rawstamp(9, "s59")
        e("""
s_mul_i32 s46, s34, %d
s_lshl_b32 s47, s32, 9
s_add_u32 s46, s46, s47
s_mov_b32 exec_hi, 0
""" % C_STRIDE)
        self.gather(["buffer_load_dwordx4 v[16:19], v8, s[40:43], s46 offen sc1"], [16, 17, 18, 19], 20)
        e("v_add_u32 v21, %d, v8\nds_write_b128 v21, v[16:19]\ns_waitcnt lgkmcnt(0)" % QL)
        self.set_flag(FLAG_Q, 21, 22)
        self.stamp(1)
        self.rawstamp(10, "s59")
        if "comm_q" in self.abl:
            self.set_flag(FLAG_H, 21, 22)
            self.set_flag(FLAG_SC, 21, 22)
            e("s_endpgm")
        e("s_cmp_lt_u32 s31, 26\ns_cbranch_scc1 L_cm_noh")
        for i in range(3):
            e("""
v_add_u32 v16, %d, v0
v_mul_u32_u24 v17, 1821, v16
v_lshrrev_b32 v17, 16, v17
v_mul_u32_u24 v18, 36, v17
v_sub_u32 v18, v16, v18
v_mul_u32_u24 v19, %d, v17
v_lshl_add_u32 v%d, v18, 4, v19
v_mul_u32_u24 v19, %d, v17
v_lshrrev_b32 v20, 2, v18
v_lshl_add_u32 v19, v20, 6, v19
v_and_b32 v20, 1, v18
v_lshl_add_u32 v19, v20, 5, v19
v_bfe_u32 v20, v18, 1, 1
v_lshl_add_u32 v19, v20, 3, v19
v_add_u32 v%d, %d, v19
""" % (64 * i, C_STRIDE, 24 + i, H_STRIDE, 27 + i, XN))
        e("""
v_cmp_gt_u32 vcc, 16, v0
s_nop 1
v_cndmask_b32 v26, v24, v26, vcc
v_cndmask_b32 v29, v27, v29, vcc
s_sub_u32 s46, s39, 64
s_mul_i32 s46, s46, 576
s_add_u32 s47, s46, %d
s_add_u32 s46, s46, %d
""" % (8704 * 2, 4096 * 2))
        loads = []
        for i in range(3):
            loads.append("buffer_load_dwordx4 v[%d:%d], v%d, s[40:43], s46 offen sc1" % (48 + 4 * i, 51 + 4 * i, 24 + i))
            loads.append("buffer_load_dwordx4 v[%d:%d], v%d, s[40:43], s47 offen sc1" % (60 + 4 * i, 63 + 4 * i, 24 + i))
        self.gather(loads, list(range(48, 72)), 20)
        c0 = -2.0 * LOG2E * 0.7978845608028654
        e("s_mov_b32 s46, %s\ns_mov_b32 s47, %s\ns_mov_b32 s56, 0xffff0000" % (f32(c0), f32(c0 * 0.044715)))
        for r in range(12):
            g = 48 + r
            u = 60 + r
            e("""
v_lshlrev_b32 v16, 16, v%(g)d
v_and_b32 v17, s56, v%(g)d
v_mul_f32 v18, v16, v16
v_mul_f32 v19, v17, v17
v_mov_b32 v20, s46
v_fma_f32 v18, v18, s47, v20
v_fma_f32 v19, v19, s47, v20
v_mul_f32 v18, v18, v16
v_mul_f32 v19, v19, v17
v_exp_f32 v18, v18
v_exp_f32 v19, v19
s_nop 0
v_add_f32 v18, 1.0, v18
v_add_f32 v19, 1.0, v19
v_rcp_f32 v18, v18
v_rcp_f32 v19, v19
s_nop 0
v_mul_f32 v18, v18, v16
v_mul_f32 v19, v19, v17
v_cvt_pk_bf16_f32 v18, v18, v19
v_lshlrev_b32 v16, 16, v%(u)d
v_and_b32 v17, s56, v%(u)d
v_and_b32 v19, s56, v18
v_lshlrev_b32 v18, 16, v18
v_mul_f32 v18, v18, v16
v_mul_f32 v19, v19, v17
v_cvt_pk_bf16_f32 v%(g)d, v18, v19
""" % dict(g=g, u=u))
        for i in range(3):
            e("ds_write2_b64 v%d, v[%d:%d], v[%d:%d] offset0:0 offset1:2" % (27 + i, 48 + 4 * i, 49 + 4 * i, 50 + 4 * i, 51 + 4 * i))
        e("s_waitcnt lgkmcnt(0)")
        self.set_flag(FLAG_H, 21, 22)
        self.label("L_cm_noh")
        e("v_mov_b32 v16, %d" % CNT_STAT)
        self.wait_lds("v16", "s46", "4", "v17", cached=False)
        self.stamp(2)
        e("""
v_and_b32 v16, 7, v0
v_lshlrev_b32 v16, 3, v16
v_add_u32 v17, %d, v16
ds_read_b64 v[18:19], v17
s_mov_b32 s56, %s
s_waitcnt lgkmcnt(0)
v_max_f32_dpp v20, v18, v18 row_ror:2 row_mask:0xf bank_mask:0xf
s_nop 1
v_max_f32_dpp v20, v20, v20 row_ror:4 row_mask:0xf bank_mask:0xf
v_sub_f32 v21, v18, v20
v_mul_f32 v21, s56, v21
v_exp_f32 v21, v21
s_nop 0
v_mul_f32 v21, v21, v19
s_nop 1
v_add_f32_dpp v21, v21, v21 row_ror:2 row_mask:0xf bank_mask:0xf
s_nop 1
v_add_f32_dpp v21, v21, v21 row_ror:4 row_mask:0xf bank_mask:0xf
s_lshl_b32 s47, s45, 4
s_add_u32 s47, s47, %d
s_mov_b64 exec, 3
buffer_store_dwordx2 v[20:21], v16, s[40:43], s47 offen sc1
s_mov_b64 exec, -1
s_lshl_b32 s47, s33, 6
s_add_u32 s47, s47, %d
""" % (STW, f32(LOG2E), WS_ST, WS_ST))
        self.gather(["buffer_load_dwordx2 v[22:23], v16, s[40:43], s47 offen sc1"], [22, 23], 24)
        e("""
v_max_f32_dpp v24, v22, v22 row_ror:2 row_mask:0xf bank_mask:0xf
s_nop 1
v_max_f32_dpp v24, v24, v24 row_ror:4 row_mask:0xf bank_mask:0xf
v_sub_f32 v25, v22, v24
v_mul_f32 v25, s56, v25
v_exp_f32 v25, v25
v_sub_f32 v26, v18, v24
v_mul_f32 v25, v25, v23
v_mul_f32 v26, s56, v26
v_exp_f32 v26, v26
v_add_f32_dpp v25, v25, v25 row_ror:2 row_mask:0xf bank_mask:0xf
s_nop 1
v_add_f32_dpp v25, v25, v25 row_ror:4 row_mask:0xf bank_mask:0xf
v_rcp_f32 v25, v25
v_and_b32 v27, 1, v0
v_lshlrev_b32 v27, 4, v27
v_bfe_u32 v28, v0, 1, 2
v_lshl_add_u32 v27, v28, 2, v27
v_add_u32 v27, %d, v27
v_mul_f32 v26, v26, v25
ds_write_b32 v27, v26
s_waitcnt lgkmcnt(0)
""" % SC)
        self.set_flag(FLAG_SC, 21, 22)
        self.stamp(3)
        self.rawstamp(11, "s59")
        if "comm_sc" in self.abl:
            e("s_endpgm")
        e("s_cmp_ge_u32 s2, 144\ns_cbranch_scc1 L_cm_end")
        e("""
v_lshrrev_b32 v16, 2, v0
v_mul_u32_u24 v16, 9216, v16
v_lshl_add_u32 v16, v13, 4, v16
s_mul_i32 s46, s53, 5462
s_lshr_b32 s46, s46, 16
s_mul_i32 s47, s46, 12
s_sub_u32 s47, s53, s47
s_mul_i32 s46, s46, 3072
s_lshl_b32 s47, s47, 6
s_add_u32 s46, s46, s47
s_mul_i32 s47, s52, 768
s_add_u32 s46, s46, s47
s_add_u32 s44, s46, %d
s_add_u32 s45, s44, 147456
s_add_u32 s46, s45, 147456
s_add_u32 s47, s46, 147456
s_add_u32 s57, s47, 147456
s_mov_b32 s60, s22
s_mov_b32 s61, s23
s_mov_b32 s62, 4608
s_mov_b32 s63, 0x00020000
v_mov_b32 v17, %d
""" % (WS_PART, CNT_P))
        self.wait_lds("v17", "s58", "4", "v18", cached=False)
        self.stamp(4)
        loads = []
        for u, sr in enumerate(["s44", "s45", "s46", "s47", "s57"]):
            loads.append("buffer_load_dwordx4 v[%d:%d], v16, s[40:43], %s offen sc1" % (48 + 4 * u, 51 + 4 * u, sr))
        self.gather(loads, list(range(48, 68)), 20, sleep=self.tsleep)
        self.stamp(5)
        self.rawstamp(12, "s59")
        for k in range(4):
            e("v_add_f32 v%d, v%d, v%d\nv_add_f32 v%d, v%d, v%d" % (48 + k, 48 + k, 52 + k, 56 + k, 56 + k, 60 + k))
        for k in range(4):
            e("v_add_f32 v%d, v%d, v%d" % (48 + k, 48 + k, 56 + k))
        vals = [48, 49, 50, 51, 64, 65, 66, 67]
        for ror in (4, 8):
            for v in vals:
                e("v_add_f32_dpp v%d, v%d, v%d row_ror:%d row_mask:0xf bank_mask:0xf" % (v, v, v, ror))
        for sw in ("v_permlane16_swap_b32", "v_permlane32_swap_b32"):
            for i, v in enumerate(vals):
                e("v_mov_b32 v%d, v%d" % (72 + i, v))
            for i, v in enumerate(vals):
                e("%s v%d, v%d" % (sw, v, 72 + i))
            e("s_nop 0")
            for i, v in enumerate(vals):
                e("v_add_f32 v%d, v%d, v%d" % (v, v, 72 + i))
        e("""
s_mov_b32 s56, 0xffff0000
s_mov_b32 s57, %s
v_cvt_pk_bf16_f32 v52, v48, v49
v_cvt_pk_bf16_f32 v53, v50, v51
v_cvt_pk_bf16_f32 v54, v64, v65
v_cvt_pk_bf16_f32 v55, v66, v67
v_lshlrev_b32 v48, 16, v52
v_and_b32 v49, s56, v52
v_lshlrev_b32 v50, 16, v53
v_and_b32 v51, s56, v53
v_lshlrev_b32 v64, 16, v54
v_and_b32 v65, s56, v54
v_lshlrev_b32 v66, 16, v55
v_and_b32 v67, s56, v55
""" % f32(-LOG2E))
        for k in range(4):
            e("v_mul_f32 v%d, s57, v%d" % (56 + k, 64 + k))
        for k in range(4):
            e("v_exp_f32 v%d, v%d" % (56 + k, 56 + k))
        for k in range(4):
            e("v_add_f32 v%d, 1.0, v%d" % (56 + k, 56 + k))
        for k in range(4):
            e("v_rcp_f32 v%d, v%d" % (56 + k, 56 + k))
        for k in range(4):
            e("v_mul_f32 v%d, v%d, v%d" % (56 + k, 56 + k, 64 + k))
        e("""
v_cvt_pk_bf16_f32 v54, v56, v57
v_cvt_pk_bf16_f32 v55, v58, v59
v_lshlrev_b32 v56, 16, v54
v_and_b32 v57, s56, v54
v_lshlrev_b32 v58, 16, v55
v_and_b32 v59, s56, v55
""")
        for k in range(4):
            e("v_mul_f32 v%d, v%d, v%d" % (48 + k, 48 + k, 56 + k))
        e("""
v_cvt_pk_bf16_f32 v52, v48, v49
v_cvt_pk_bf16_f32 v53, v50, v51
v_lshlrev_b32 v48, 16, v52
v_and_b32 v49, s56, v52
v_lshlrev_b32 v50, 16, v53
v_and_b32 v51, s56, v53
v_lshlrev_b32 v56, 16, v40
v_and_b32 v57, s56, v40
v_lshlrev_b32 v58, 16, v41
v_and_b32 v59, s56, v41
v_add_f32 v48, v48, v56
v_add_f32 v49, v49, v57
v_add_f32 v50, v50, v58
v_add_f32 v51, v51, v59
v_cvt_pk_bf16_f32 v52, v48, v49
v_cvt_pk_bf16_f32 v53, v50, v51
s_mov_b64 exec, 15
buffer_store_dwordx2 v[52:53], v42, s[60:63], s54 offen
""")
        if self.stamps:
            e("s_waitcnt vmcnt(0)")
        self.stamp(6)
        self.label("L_cm_end")
        self.flush_stamps([(0, 4), (1, 5), (2, 6), (3, 7), (4, 8), (5, 9), (6, 10), (7, 16), (8, 17), (9, 18), (10, 19), (11, 20), (12, 21)])
        e("s_endpgm")

    def free_write(self, sval):
        self.e("s_mov_b64 exec, 1\nv_mov_b32 v4, %s\nds_write_b32 v3, v4\ns_mov_b64 exec, -1" % sval)

    def cons(self):
        e = self.e
        self.label("L_cons")
        e("""
s_sub_u32 s36, s36, 2
v_mov_b32 v2, %d
s_lshl_b32 s44, s36, 2
s_add_u32 s44, s44, %d
v_mov_b32 v3, s44
s_mov_b32 s50, 0
v_and_b32 v8, 15, v0
v_lshrrev_b32 v9, 4, v0
v_lshrrev_b32 v10, 2, v0
v_and_b32 v11, 3, v0
s_mov_b32 s56, 0xffff0000
""" % (FULL, FREE))
        self.tile_ids()
        e("""
v_mul_u32_u24 v12, 1152, v9
v_lshl_add_u32 v12, v8, 4, v12
v_mov_b32 v13, 0x40000000
v_cmp_gt_u32 vcc, 8, v8
s_cmp_ge_u32 s31, 26
s_nop 0
v_cndmask_b32 v13, v13, v12, vcc
s_waitcnt lgkmcnt(0)
""")
        self.ws_srd()
        if "nocons" in self.abl:
            e("s_barrier")
            self.free_write("0x10000")
            e("s_endpgm")
        e("""
s_cbranch_scc1 L_cs_nocol
s_mov_b32 s60, s4
s_mov_b32 s61, s5
s_mov_b32 s62, 4608
s_mov_b32 s63, 0x00020000
buffer_load_dwordx4 v[32:35], v12, s[60:63], 0 offen
buffer_load_dwordx4 v[36:39], v12, s[60:63], 0 offen offset:256
buffer_load_dwordx4 v[40:43], v12, s[60:63], 0 offen offset:512
buffer_load_dwordx4 v[44:47], v12, s[60:63], 0 offen offset:768
buffer_load_dwordx4 v[48:51], v13, s[60:63], 0 offen offset:1024
s_barrier
""")
        e("""
v_mul_u32_u24 v14, %d, v9
v_lshrrev_b32 v15, 2, v8
v_lshl_add_u32 v14, v15, 6, v14
v_and_b32 v15, 1, v8
v_lshl_add_u32 v14, v15, 5, v14
v_bfe_u32 v15, v8, 1, 1
v_lshl_add_u32 v14, v15, 3, v14
v_add_u32 v14, %d, v14
v_bfe_u32 v15, v0, 3, 2
v_xor_b32 v15, s36, v15
v_lshlrev_b32 v15, 5, v15
v_lshl_add_u32 v15, v10, 7, v15
v_lshl_add_u32 v15, v11, 3, v15
v_mul_u32_u24 v16, %d, v11
v_lshl_add_u32 v16, v9, 4, v16
v_add_u32 v16, %d, v16
s_waitcnt vmcnt(0)
""" % (XN_STRIDE, XN, XN_STRIDE, XN))
        for k in range(20):
            e("v_lshlrev_b32 v%d, 16, v%d\nv_and_b32 v%d, s56, v%d" % (64 + 2 * k, 32 + k, 65 + 2 * k, 32 + k))
        e("v_add_f32 v52, v64, v65\nv_add_f32 v53, v66, v67")
        for k in range(2, 20):
            e("v_add_f32 v52, v52, v%d\nv_add_f32 v53, v53, v%d" % (64 + 2 * k, 65 + 2 * k))
        e("v_add_f32 v52, v52, v53")
        for ror in (8, 4, 2, 1):
            e("s_nop 1\nv_add_f32_dpp v52, v52, v52 row_ror:%d row_mask:0xf bank_mask:0xf" % ror)
        e("v_mul_f32 v52, %s, v52" % f32(1.0 / 576))
        e("v_cndmask_b32 v55, 0, v52, vcc")
        e("v_mov_b32 v53, 0\nv_mov_b32 v54, 0")
        for k in range(20):
            m = 55 if k >= 16 else 52
            e("v_sub_f32 v56, v%d, v%d\nv_sub_f32 v57, v%d, v%d\nv_fmac_f32 v53, v56, v56\nv_fmac_f32 v54, v57, v57" % (64 + 2 * k, m, 65 + 2 * k, m))
        e("v_add_f32 v53, v53, v54")
        for ror in (8, 4, 2, 1):
            e("s_nop 1\nv_add_f32_dpp v53, v53, v53 row_ror:%d row_mask:0xf bank_mask:0xf" % ror)
        e("""
v_mul_f32 v53, %s, v53
v_cvt_pk_bf16_f32 v52, v52, v53
v_and_b32 v53, s56, v52
v_lshlrev_b32 v52, 16, v52
v_add_f32 v53, %s, v53
v_cvt_pk_bf16_f32 v53, v53, v53
v_and_b32 v53, s56, v53
v_sqrt_f32 v53, v53
s_nop 0
v_cvt_pk_bf16_f32 v53, v53, v53
v_and_b32 v53, s56, v53
v_rcp_f32 v54, v53
""" % (f32(1.0 / 576), f32(1e-5)))
        for k in range(20):
            a, b = 64 + 2 * k, 65 + 2 * k
            e("""
v_sub_f32 v%(a)d, v%(a)d, v52
v_sub_f32 v%(b)d, v%(b)d, v52
v_cvt_pk_bf16_f32 v56, v%(a)d, v%(b)d
v_lshlrev_b32 v%(a)d, 16, v56
v_and_b32 v%(b)d, s56, v56
v_mul_f32 v57, v%(a)d, v54
v_mul_f32 v58, v%(b)d, v54
v_fma_f32 v%(a)d, -v57, v53, v%(a)d
v_fma_f32 v%(b)d, -v58, v53, v%(b)d
v_fmac_f32 v57, v%(a)d, v54
v_fmac_f32 v58, v%(b)d, v54
v_cvt_pk_bf16_f32 v%(d)d, v57, v58
""" % dict(a=a, b=b, d=32 + k))
        for t in range(4):
            e("ds_write2_b64 v14, v[%d:%d], v[%d:%d] offset0:%d offset1:%d" % (32 + 4 * t, 33 + 4 * t, 34 + 4 * t, 35 + 4 * t, 32 * t, 32 * t + 2))
        e("s_mov_b64 exec, vcc\nds_write2_b64 v14, v[48:49], v[50:51] offset0:128 offset1:130\ns_mov_b64 exec, -1")
        e("v_mov_b32 v20, 0\nv_mov_b32 v21, 0\nv_mov_b32 v22, 0\nv_mov_b32 v23, 0\ns_mov_b32 s51, 4")
        self.stamp(0)
        L = self.lab("Lcol")
        self.label(L)
        self.wait_lds("v2", "s50", "s51", "v4")
        e("""
ds_read_b64_tr_b16 v[24:25], v15
ds_read_b64_tr_b16 v[26:27], v15 offset:2048
ds_read_b128 v[28:31], v16
v_add_u32 v15, 4096, v15
v_add_u32 v16, 64, v16
s_waitcnt lgkmcnt(0)
v_mfma_f32_16x16x32_bf16 v[20:23], v[24:27], v[28:31], v[20:23]
""")
        self.free_write("s51")
        e("s_add_u32 s51, s51, 4\ns_cmp_le_u32 s51, %d\ns_cbranch_scc1 %s" % (P_K, L))
        e("""
s_lshl_b32 s44, s30, 3
s_add_u32 s44, s44, s31
s_mul_i32 s46, s30, 9
s_add_u32 s46, s46, s31
s_add_u32 s47, s46, 56
s_add_u32 s46, s46, 119
s_cmp_lt_u32 s31, 17
s_cselect_b32 s46, s47, s46
s_cmp_lt_u32 s31, 8
s_cselect_b32 s44, s44, s46
s_lshl_b32 s44, s44, 7
s_lshl_b32 s45, s36, 5
s_add_u32 s44, s44, s45
v_mul_u32_u24 v17, %d, v11
v_lshl_add_u32 v17, v9, 3, v17
v_cvt_pk_bf16_f32 v24, v20, v21
v_cvt_pk_bf16_f32 v25, v22, v23
s_mov_b32 exec_lo, 0x000f000f
s_mov_b32 exec_hi, 0x000f000f
buffer_store_dwordx2 v[24:25], v17, s[40:43], s44 offen sc1
s_mov_b64 exec, -1
s_branch L_cs_k
L_cs_nocol:
s_barrier
L_cs_k:
""" % C_STRIDE)
        self.stamp(1)
        e("""
v_and_b32 v5, 7, v0
v_lshlrev_b32 v5, 1, v5
v_xor_b32 v5, v5, v9
v_lshlrev_b32 v5, 4, v5
v_lshl_add_u32 v5, v8, 8, v5
v_and_b32 v6, 7, v10
v_lshlrev_b32 v6, 5, v6
v_lshl_add_u32 v6, v10, 8, v6
v_lshl_add_u32 v6, v11, 3, v6
s_lshl_b32 s52, s36, 2
s_add_u32 s51, s52, %d
s_lshl_b32 s53, s51, 10
""" % P_K)

        def advance():
            e("s_add_u32 s51, s51, 16\ns_add_u32 s53, s53, 16384\ns_sub_u32 s54, s53, %d\ns_cmp_ge_u32 s53, %d\ns_cselect_b32 s53, s54, s53" % (RING_BYTES, RING_BYTES))

        for i in range(8):
            e("s_add_u32 s55, s51, 4")
            self.wait_lds("v2", "s50", "s55", "v4")
            r = 128 + 16 * i
            e("""
v_add_u32 v12, s53, v5
v_xor_b32 v13, 64, v12
v_xor_b32 v14, 0x80, v12
v_xor_b32 v15, 0xc0, v12
ds_read_b128 v[%d:%d], v12
ds_read_b128 v[%d:%d], v13
ds_read_b128 v[%d:%d], v14
ds_read_b128 v[%d:%d], v15
""" % (r, r + 3, r + 4, r + 7, r + 8, r + 11, r + 12, r + 15))
            advance()
            e("s_waitcnt lgkmcnt(0)")
            self.free_write("s51")
        self.stamp(2)
        e("v_mov_b32 v12, %d" % FLAG_Q)
        self.wait_lds("v12", "s54", "1", "v4", cached=False)
        e("""
v_and_b32 v12, 1, v0
v_lshlrev_b32 v12, 8, v12
v_lshl_add_u32 v12, v9, 4, v12
v_add_u32 v12, %d, v12
ds_read_b128 v[32:35], v12
ds_read_b128 v[36:39], v12 offset:64
ds_read_b128 v[40:43], v12 offset:128
ds_read_b128 v[44:47], v12 offset:192
s_mov_b32 s57, %s
s_mov_b32 s58, %s
s_waitcnt lgkmcnt(0)
""" % (QL, f32(128 ** -0.5), f32(LOG2E)))
        for s in range(4):
            for i in range(8):
                c = "0" if s == 0 else "v[%d:%d]" % (48 + 4 * i, 51 + 4 * i)
                e("v_mfma_f32_16x16x32_bf16 v[%d:%d], v[%d:%d], v[%d:%d], %s" % (48 + 4 * i, 51 + 4 * i, 128 + 16 * i + 4 * s, 131 + 16 * i + 4 * s, 32 + 4 * s, 35 + 4 * s, c))
        e("s_nop 1")
        for k in range(16):
            a, b = 48 + 2 * k, 49 + 2 * k
            e("""
v_cvt_pk_bf16_f32 v12, v%(a)d, v%(b)d
v_lshlrev_b32 v%(a)d, 16, v12
v_and_b32 v%(b)d, s56, v12
v_mul_f32 v%(a)d, s57, v%(a)d
v_mul_f32 v%(b)d, s57, v%(b)d
v_cvt_pk_bf16_f32 v12, v%(a)d, v%(b)d
v_lshlrev_b32 v%(a)d, 16, v12
v_and_b32 v%(b)d, s56, v12
""" % dict(a=a, b=b))
        e("v_max3_f32 v12, v48, v49, v50")
        for k in range(51, 79, 2):
            e("v_max3_f32 v12, v12, v%d, v%d" % (k, k + 1))
        e("""
v_max_f32 v12, v12, v79
v_mov_b32 v13, v12
s_nop 1
v_permlane16_swap_b32 v12, v13
s_nop 0
v_max_f32 v12, v12, v13
v_mov_b32 v13, v12
s_nop 1
v_permlane32_swap_b32 v12, v13
s_nop 0
v_max_f32 v12, v12, v13
""")
        for k in range(32):
            e("v_sub_f32 v%d, v%d, v12" % (48 + k, 48 + k))
        for k in range(32):
            e("v_mul_f32 v%d, s58, v%d" % (48 + k, 48 + k))
        for k in range(32):
            e("v_exp_f32 v%d, v%d" % (48 + k, 48 + k))
        e("v_add_f32 v13, v48, v49\nv_add_f32 v14, v50, v51")
        for k in range(52, 80, 2):
            e("v_add_f32 v13, v13, v%d\nv_add_f32 v14, v14, v%d" % (k, k + 1))
        for k in range(16):
            e("v_cvt_pk_bf16_f32 v%d, v%d, v%d" % (80 + k, 48 + 2 * k, 49 + 2 * k))
        e("""
v_add_f32 v13, v13, v14
v_mov_b32 v14, v13
s_nop 1
v_permlane16_swap_b32 v13, v14
s_nop 0
v_add_f32 v13, v13, v14
v_mov_b32 v14, v13
s_nop 1
v_permlane32_swap_b32 v13, v14
s_nop 0
v_add_f32 v13, v13, v14
s_lshl_b32 s54, s36, 4
s_add_u32 s54, s54, %d
v_lshlrev_b32 v14, 3, v0
v_add_u32 v14, s54, v14
s_mov_b64 exec, 3
ds_write_b64 v14, v[12:13]
s_mov_b64 exec, 1
v_mov_b32 v14, %d
v_mov_b32 v15, 1
s_waitcnt lgkmcnt(0)
ds_add_u32 v14, v15
s_mov_b64 exec, -1
""" % (STW, CNT_STAT))
        self.stamp(3)
        for i in range(4):
            fr = 128 + 32 * (i & 1)
            for h in range(2):
                e("s_add_u32 s55, s51, 4")
                self.wait_lds("v2", "s50", "s55", "v4")
                e("v_add_u32 v12, s53, v6")
                for t in range(8):
                    if t:
                        e("v_xor_b32 v%d, %d, v12" % (16 + t, 32 * t))
                for t in range(8):
                    e("ds_read_b64_tr_b16 v[%d:%d], v%d" % (fr + 4 * t + 2 * h, fr + 4 * t + 2 * h + 1, 16 + t if t else 12))
                advance()
                if h == 0:
                    e("s_waitcnt lgkmcnt(0)")
                    self.free_write("s51")
            for t in range(8):
                e("s_waitcnt lgkmcnt(%d)" % (7 - t))
                c = "0" if i == 0 else "v[%d:%d]" % (96 + 4 * t, 99 + 4 * t)
                e("v_mfma_f32_16x16x32_bf16 v[%d:%d], v[%d:%d], v[%d:%d], %s" % (96 + 4 * t, 99 + 4 * t, fr + 4 * t, fr + 4 * t + 3, 80 + 4 * i, 83 + 4 * i, c))
            if i < 3:
                self.free_write("s51")
        if "nopost" in self.abl:
            self.free_write("0x10000")
            e("s_branch L_cs_end")
        e("""
v_and_b32 v12, 1, v0
v_lshlrev_b32 v12, 9, v12
v_lshl_add_u32 v12, v9, 4, v12
s_lshl_b32 s54, s36, 10
s_add_u32 s54, s54, %d
v_add_u32 v12, s54, v12
v_mov_b32 v14, %d
v_mov_b32 v15, 1
s_mov_b32 exec_lo, 0x00030003
s_mov_b32 exec_hi, 0x00030003
""" % (OW, CNT_O))
        for t in range(8):
            if t == 7:
                e("s_nop 1")
            e("ds_write_b128 v12, v[%d:%d] offset:%d" % (96 + 4 * t, 99 + 4 * t, 64 * t))
        e("""
s_mov_b64 exec, 1
v_mov_b32 v4, %d
ds_write_b32 v3, v4
s_waitcnt lgkmcnt(0)
ds_add_rtn_u32 v16, v14, v15
s_mov_b64 exec, -1
s_waitcnt lgkmcnt(0)
v_readfirstlane_b32 s54, v16
s_cmp_lg_u32 s54, 3
s_cbranch_scc1 L_cs_nolast
v_mov_b32 v12, %d
""" % (P_W, FLAG_SC))
        self.wait_lds("v12", "s54", "1", "v4", cached=False)
        e("""
v_lshlrev_b32 v13, 4, v0
v_add_u32 v12, %d, v13
v_lshrrev_b32 v14, 5, v0
v_lshlrev_b32 v14, 4, v14
v_add_u32 v14, %d, v14
ds_read_b128 v[16:19], v14
ds_read_b128 v[96:99], v12
ds_read_b128 v[100:103], v12 offset:1024
ds_read_b128 v[104:107], v12 offset:2048
ds_read_b128 v[108:111], v12 offset:3072
s_lshl_b32 s54, s33, 2
s_add_u32 s54, s54, s35
s_lshl_b32 s54, s54, 10
s_add_u32 s54, s54, %d
s_waitcnt lgkmcnt(3)
""" % (OW, SC, WS_OP))
        for k in range(4):
            e("v_mul_f32 v%d, v%d, v16" % (96 + k, 96 + k))
        for w in range(1, 4):
            e("s_waitcnt lgkmcnt(%d)" % (3 - w))
            for k in range(4):
                e("v_fmac_f32 v%d, v%d, v%d" % (96 + k, 96 + 4 * w + k, 16 + w))
        e("buffer_store_dwordx4 v[96:99], v13, s[40:43], s54 offen sc1")
        self.stamp(4)
        self.label("L_cs_nolast")
        ringw = (P_W % RING_KB) * 1024
        e("""
s_cmp_eq_u32 s31, 24
s_cbranch_scc1 L_cs_end
s_cmp_eq_u32 s31, 25
s_cbranch_scc1 L_cs_end
v_bfe_u32 v13, v0, 3, 2
v_mul_u32_u24 v14, 384, v10
v_lshl_add_u32 v14, v11, 3, v14
v_add_u32 v14, %d, v14
s_mul_i32 s54, s36, 3
v_xor_b32 v16, s54, v13
v_lshl_add_u32 v16, v16, 5, v14
s_add_u32 s54, s54, 1
v_xor_b32 v17, s54, v13
v_lshl_add_u32 v17, v17, 5, v14
s_add_u32 s54, s54, 1
v_xor_b32 v18, s54, v13
v_lshl_add_u32 v18, v18, 5, v14
v_mul_u32_u24 v19, 768, v11
v_lshl_add_u32 v19, v9, 4, v19
s_mul_i32 s44, s37, 3072
s_mul_i32 s45, s36, 192
s_add_u32 s44, s44, s45
s_add_u32 s44, s44, %d
s_cmp_ge_u32 s31, 26
s_cbranch_scc1 L_cs_down
""" % (ringw, WS_PART))
        for s in range(2):
            self.wait_lds("v2", "s50", str(P_W + 12 * (s + 1)), "v4")
            for q in range(3):
                r = 192 + 12 * s + 4 * q
                e("ds_read_b64_tr_b16 v[%d:%d], v%d offset:%d" % (r, r + 1, 16 + q, 12288 * s))
                e("ds_read_b64_tr_b16 v[%d:%d], v%d offset:%d" % (r + 2, r + 3, 16 + q, 12288 * s + 6144))
        self.stamp(8)
        e("""
v_lshlrev_b32 v20, 16, v11
v_bfe_u32 v21, v0, 2, 2
v_lshl_add_u32 v20, v21, 10, v20
v_lshl_add_u32 v20, v9, 4, v20
s_lshr_b32 s46, s39, 2
s_lshl_b32 s46, s46, 12
s_and_b32 s47, s39, 3
s_lshl_b32 s47, s47, 8
s_add_u32 s46, s46, s47
s_add_u32 s46, s46, %d
""" % WS_OP)
        loads = ["buffer_load_dwordx4 v[%d:%d], v20, s[40:43], s46 offen offset:%d sc1" % (216 + 4 * k, 219 + 4 * k, 64 * k) for k in range(4)]
        self.gather(loads, list(range(216, 232)), 21, sleep=self.tsleep)
        self.stamp(5)
        self.rawstamp(7, "s59")
        for ror in (4, 8):
            for v in range(216, 232):
                e("v_add_f32_dpp v%d, v%d, v%d row_ror:%d row_mask:0xf bank_mask:0xf" % (v, v, v, ror))
        for k in range(8):
            e("v_cvt_pk_bf16_f32 v%d, v%d, v%d" % (232 + k, 216 + 2 * k, 217 + 2 * k))
        e("s_waitcnt lgkmcnt(0)\ns_nop 0")
        for s in range(2):
            for q in range(3):
                r = 192 + 12 * s + 4 * q
                c = "0" if s == 0 else "v[%d:%d]" % (240 + 4 * q, 243 + 4 * q)
                e("v_mfma_f32_16x16x32_bf16 v[%d:%d], v[%d:%d], v[%d:%d], %s" % (240 + 4 * q, 243 + 4 * q, r, r + 3, 232 + 4 * s, 235 + 4 * s, c))
        e("s_branch L_cs_store")
        self.label("L_cs_down")
        e("v_mov_b32 v12, %d" % FLAG_H)
        self.wait_lds("v12", "s54", "1", "v4", cached=False)
        e("""
v_mul_u32_u24 v20, %d, v11
v_lshl_add_u32 v20, v9, 4, v20
v_add_u32 v20, %d, v20
s_mov_b32 s51, %d
""" % (H_STRIDE, XN, P_W + 12))
        for k in range(12):
            e("v_mov_b32 v%d, 0" % (240 + k))
        L = self.lab("Ldn")
        self.label(L)
        self.wait_lds("v2", "s50", "s51", "v4")
        e("ds_read_b128 v[232:235], v20")
        for q in range(3):
            r = 192 + 4 * q
            e("ds_read_b64_tr_b16 v[%d:%d], v%d" % (r, r + 1, 16 + q))
            e("ds_read_b64_tr_b16 v[%d:%d], v%d offset:6144" % (r + 2, r + 3, 16 + q))
        e("v_add_u32 v20, 64, v20")
        for q in range(3):
            e("v_add_u32 v%d, 12288, v%d" % (16 + q, 16 + q))
        for q in range(3):
            r = 192 + 4 * q
            e("s_waitcnt lgkmcnt(%d)" % (4 - 2 * q))
            e("v_mfma_f32_16x16x32_bf16 v[%d:%d], v[%d:%d], v[232:235], v[%d:%d]" % (240 + 4 * q, 243 + 4 * q, r, r + 3, 240 + 4 * q, 243 + 4 * q))
        e("s_add_u32 s51, s51, 12\ns_cmp_le_u32 s51, %d\ns_cbranch_scc1 %s" % (P_W + 108, L))
        self.label("L_cs_store")
        e("""
s_mov_b32 exec_lo, 0x000f000f
s_mov_b32 exec_hi, 0x000f000f
s_nop 4
buffer_store_dwordx4 v[240:243], v19, s[40:43], s44 offen sc1
s_nop 0
buffer_store_dwordx4 v[244:247], v19, s[40:43], s44 offen offset:64 sc1
s_nop 0
buffer_store_dwordx4 v[248:251], v19, s[40:43], s44 offen offset:128 sc1
s_mov_b64 exec, 1
v_mov_b32 v14, %d
v_mov_b32 v15, 1
ds_add_u32 v14, v15
""" % CNT_P)
        self.stamp(6)
        self.label("L_cs_end")
        if self.stamps:
            e("s_cmp_lg_u32 s36, 0\ns_cbranch_scc1 L_end\ns_waitcnt vmcnt(0)")
            self.flush_stamps([(0, 11), (1, 12), (2, 13), (3, 14), (5, 15), (7, 22), (8, 23), (6, 24)])
        self.label("L_end")
        e("s_endpgm")

    def build(self):
        hdr = open("cdna_kernels/%s.s.ref" % KN).read().split("\n")
        head = []
        for l in hdr:
            if l.startswith("; @launch"):
                break
            head.append(l)
        head.append("; @launch grid=(256,1,1) block=(384,1,1) lds=%d" % LDS_TOTAL)
        head += ['.amdgcn_target "amdgcn-amd-amdhsa--gfx950"', ".text", ".globl %s_kernel" % KN, ".p2align 8",
                 ".type %s_kernel,@function" % KN, "%s_kernel:" % KN]
        self.prologue()
        self.loader()
        self.comm()
        self.cons()
        tail = """.section .rodata,"a"
.p2align 6
.amdhsa_kernel %s_kernel
  .amdhsa_next_free_vgpr 256
  .amdhsa_next_free_sgpr 102
  .amdhsa_accum_offset 256
  .amdhsa_group_segment_fixed_size 0
  .amdhsa_kernarg_size 96
  .amdhsa_user_sgpr_count 2
  .amdhsa_user_sgpr_kernarg_segment_ptr 1
  .amdhsa_system_sgpr_workgroup_id_x 1
.end_amdhsa_kernel
""" % KN
        return "\n".join(head + self.o) + "\n" + tail


if __name__ == "__main__":
    import argparse
    ap = argparse.ArgumentParser()
    ap.add_argument("out")
    ap.add_argument("--stamps", action="store_true")
    ap.add_argument("--W", type=int, default=20)
    ap.add_argument("--nont", action="store_true")
    ap.add_argument("--tsleep", type=int, default=1)
    ap.add_argument("--csleep", type=int, default=0)
    ap.add_argument("--abl", type=str, default="")
    a = ap.parse_args()
    open(a.out, "w").write(Gen(W=a.W, stamps=a.stamps, nt=not a.nont, tsleep=a.tsleep, csleep=a.csleep, abl=a.abl.split(",")).build())
```

```python
import sys, struct

KN = "recurrent_scan__sliding_block_cached__geglu_ffn__decode"

RING_KB = 148
RING_BYTES = RING_KB * 1024
AUX = RING_BYTES
XN = AUX
XN_STRIDE = 1216
H_STRIDE = 576
QL = AUX + 4864
OW = AUX + 5376
FULL = AUX + 9472
FREE = AUX + 9728
STW = AUX + 9744
SC = AUX + 9808
CNT_STAT = AUX + 9840
CNT_O = AUX + 9844
FLAG_Q = AUX + 9848
FLAG_H = AUX + 9852
FLAG_SC = AUX + 9856
CNT_P = AUX + 9860
CNT_C = AUX + 9864
OB = AUX + 9984
LDS_TOTAL = AUX + 9984 + 2048

WS_C = 0
C_STRIDE = 26624
WS_ST = 0x1A000
WS_OP = 0x1E000
WS_PART = 0x5E000
PART_ROW = 9216
WS_SIZE = 0x5E000 + 32 * 9216
RW = XN

P_K, P_V, P_W = 72, 200, 328

def f32(x):
    return "0x%08x" % struct.unpack("<I", struct.pack("<f", x))[0]

LOG2E = 1.4426950408889634


class Gen:
    def __init__(self, W=20, stamps=False, nt=True, spin=1 << 16, sleep=True, tsleep=1, csleep=0, abl=(), gearly=0, isleep=12, wsoff=0):
        self.o = []
        self.n = 0
        self.W = W
        self.stamps = stamps
        self.nt = " nt" if nt else ""
        self.spin = spin
        self.sleep = sleep
        self.flagpos = 48
        self.qpos = 84
        self.mbase = 4
        self.hpos = 160
        self.gearly = gearly
        self.wsoff = wsoff
        self.isleep = isleep
        self.tsleep = tsleep
        self.abl = set(abl)
        self.csleep = csleep

    def e(self, s):
        for line in s.strip("\n").split("\n"):
            self.o.append(line if line.rstrip().endswith(":") and not line.startswith(" ") else "    " + line.strip())

    def lab(self, p="L"):
        self.n += 1
        return "%s_%d" % (p, self.n)

    def label(self, l):
        self.o.append(l + ":")

    def sreg(self, k):
        return 70 + 2 * k if k < 10 else 92 + 2 * (k - 10)

    def stamp(self, k):
        if self.stamps:
            self.e("s_memrealtime s[%d:%d]" % (self.sreg(k), self.sreg(k) + 1))

    def rawstamp(self, k, expr_reg):
        if self.stamps:
            self.e("s_sub_u32 s%d, %d, %s\ns_mov_b32 s%d, 0" % (self.sreg(k), self.spin, expr_reg, self.sreg(k) + 1))

    def flush_stamps(self, items):
        if not self.stamps:
            return
        self.e("""
s_waitcnt lgkmcnt(0)
s_add_u32 s64, s26, 0x10000000
s_addc_u32 s65, s27, 0
s_mov_b32 s66, 0x100000
s_mov_b32 s67, 0x00020000
s_mul_i32 s68, s2, 256
s_mov_b64 exec, 1
""")
        for k, slot in items:
            self.e("""
v_mov_b32 v250, s%d
v_mov_b32 v251, s%d
v_mov_b32 v252, %d
buffer_store_dwordx2 v[250:251], v252, s[64:67], s68 offen
s_nop 1
""" % (self.sreg(k), self.sreg(k) + 1, slot * 8))

    def wait_lds(self, vaddr, sreg, thr, vtmp, cached=True, sleep=0):
        l = self.lab("Lw")
        d = self.lab("Ld")
        if cached:
            self.e("s_cmp_ge_i32 %s, %s\ns_cbranch_scc1 %s" % (sreg, thr, d))
        self.label(l)
        self.e("ds_read_b32 %s, %s\ns_waitcnt lgkmcnt(0)\nv_readfirstlane_b32 %s, %s" % (vtmp, vaddr, sreg, vtmp))
        self.e("s_cmp_ge_i32 %s, %s\ns_cbranch_scc1 %s" % (sreg, thr, d))
        sleep = sleep or self.csleep
        if sleep:
            self.e("s_sleep %d" % sleep)
        self.e("s_sub_i32 s69, s69, 1\ns_cmp_gt_i32 s69, 0\ns_cbranch_scc1 %s" % l)
        self.label(d)

    def prologue(self):
        self.e("""
s_cmp_ge_u32 s2, 256
s_cbranch_scc1 L_end
s_load_dwordx16 s[4:19], s[0:1], 0
s_load_dwordx8 s[20:27], s[0:1], 64
v_lshrrev_b32 v1, 6, v0
v_and_b32 v0, 63, v0
s_and_b32 s30, s2, 7
s_mov_b32 s69, 0x400000
v_readfirstlane_b32 s36, v1
s_lshr_b32 s31, s2, 3
s_lshr_b32 s32, s31, 4
s_lshl_b32 s33, s30, 1
s_add_u32 s32, s32, s33
s_lshr_b32 s34, s31, 2
s_and_b32 s34, s34, 3
s_and_b32 s35, s31, 3
s_lshl_b32 s33, s34, 4
s_add_u32 s33, s33, s32
s_cmp_eq_u32 s36, 1
s_cbranch_scc1 L_comm
s_cmp_lg_u32 s36, 0
s_cbranch_scc1 L_cons
""")

    def tile_ids(self):
        self.e("""
s_sub_u32 s38, s31, 8
s_cmp_ge_u32 s38, 9
s_cselect_b32 s37, 1, 0
s_cselect_b32 s39, 9, 0
s_sub_u32 s38, s38, s39
s_cmp_ge_u32 s31, 26
s_cbranch_scc0 %(l)s
s_sub_u32 s38, s31, 26
s_cmp_ge_u32 s38, 3
s_cselect_b32 s37, 17, 16
s_cselect_b32 s39, 3, 0
s_sub_u32 s38, s38, s39
%(l)s:
s_lshl_b32 s39, s30, 1
s_add_u32 s37, s37, s39
""" % dict(l=self.lab("Lt")))

    def loader(self):
        W = self.W
        nt = self.nt
        e = self.e
        self.stamp(0)
        e("s_setprio 3")
        e("""
v_lshrrev_b32 v8, 4, v0
v_and_b32 v9, 15, v0
v_lshlrev_b32 v10, 1, v8
v_xor_b32 v11, v9, v10
v_lshlrev_b32 v11, 4, v11
v_lshl_add_u32 v1, v8, 8, v11
v_xor_b32 v2, 0x80, v1
""")
        e("""
s_movk_i32 s41, 0x2400
s_cmp_lt_u32 s31, 8
s_cselect_b32 s40, 0x2000, s41
v_lshrrev_b32 v12, 3, v0
v_and_b32 v13, 7, v0
v_xor_b32 v13, v13, v10
v_lshlrev_b32 v13, 4, v13
v_mul_u32_u24 v20, 1152, v12
v_add_u32 v20, v20, v13
v_add_u32 v21, 8192, v20
v_add_u32 v22, 8192, v21
v_add_u32 v23, 8192, v22
v_mul_lo_u32 v12, v12, s40
v_add_u32 v3, v12, v13
s_lshl_b32 s41, s40, 3
s_sub_u32 s42, s41, 1024
v_add_u32 v4, s42, v3
v_add_u32 v5, s42, v4
v_add_u32 v6, s42, v5
s_lshl_b32 s41, s41, 2
""")
        for i in range(3):
            e("""
v_add_u32 v12, %d, v0
v_mul_u32_u24 v13, 2731, v12
v_lshrrev_b32 v13, 16, v13
v_mul_u32_u24 v14, 24, v13
v_sub_u32 v14, v12, v14
v_and_b32 v15, 6, v13
v_xor_b32 v14, v14, v15
v_mul_u32_u24 v13, 1152, v13
v_lshl_add_u32 v%d, v14, 4, v13
""" % (64 * i, 17 + i))
        e("""
v_mov_b32 v7, v17
v_add_u32 v8, 0xfffffc00, v18
v_add_u32 v9, 0xfffff800, v19
v_lshlrev_b32 v10, 2, v0
v_add_u32 v10, %d, v10
v_mov_b32 v11, %d
""" % (FULL, FREE))
        self.tile_ids()
        e("""
s_lshl_b32 s43, s30, 3
s_add_u32 s43, s43, s31
s_mul_i32 s44, s30, 9
s_add_u32 s44, s44, s31
s_sub_u32 s45, s44, 8
s_sub_u32 s44, s44, 17
s_cmp_lt_u32 s31, 17
s_cselect_b32 s44, s45, s44
s_cmp_lt_u32 s31, 8
s_cselect_b32 s43, s43, s44
s_lshl_b32 s51, s43, 7
s_lshl_b32 s46, s33, 21
s_add_u32 s46, s46, 0x180000
s_lshl_b32 s47, s35, 17
s_add_u32 s46, s46, s47
s_mov_b32 s63, 0x00020000
s_mov_b32 s55, 0
s_waitcnt lgkmcnt(0)
""")
        first = [True]

        def run(pats, step_reg_or_imm, n_iter, check_free, label=None):
            n = len(pats)
            L = self.lab("Lrun")
            e("s_mov_b32 s52, %d" % n_iter)
            self.label(L)
            if check_free:
                ok = self.lab("Lok")
                sl = self.lab("Lsl")
                e("s_add_i32 s54, s53, %d\ns_cmp_le_i32 s54, s55\ns_cbranch_scc1 %s" % (n - RING_KB, ok))
                self.label(sl)
                e("""
ds_read_b128 v[12:15], v11
s_waitcnt lgkmcnt(0)
v_min_u32 v12, v12, v13
v_min3_u32 v12, v12, v14, v15
s_nop 0
v_readfirstlane_b32 s55, v12
s_cmp_le_i32 s54, s55
s_cbranch_scc1 %s
s_sub_i32 s69, s69, 1
s_cmp_gt_i32 s69, 0
s_cbranch_scc1 %s
""" % (ok, sl))
                self.label(ok)
            e("s_mov_b32 m0, s50")
            e("s_add_u32 s50, s50, %d" % (n * 1024))
            for i, p in enumerate(pats):
                off = " offset:%d" % (i * 1024) if i else ""
                e("buffer_load_dwordx4 v%d, s[60:63], s51 offen%s%s lds" % (p, off, nt))
            e("s_add_u32 s51, s51, %s" % step_reg_or_imm)
            e("s_cmp_eq_u32 s50, %d\ns_cselect_b32 s50, 0, s50" % RING_BYTES)
            e("s_add_u32 s53, s53, %d" % n)
            e("s_waitcnt vmcnt(%d)" % W)
            e("s_sub_u32 s54, s53, %d\nv_mov_b32 v16, s54\nds_write_b32 v10, v16" % W)
            e("s_sub_u32 s52, s52, 1\ns_cmp_lg_u32 s52, 0\ns_cbranch_scc1 %s" % L)

        e("""
s_cmp_ge_u32 s31, 26
s_cbranch_scc1 L_ld_nocol
s_cmp_lt_u32 s31, 17
s_cselect_b32 s60, s16, s18
s_cselect_b32 s61, s17, s19
s_cmp_lt_u32 s31, 8
s_cselect_b32 s60, s10, s60
s_cselect_b32 s61, s11, s61
s_mul_i32 s62, s40, 576
s_mov_b32 s50, 4096
s_mov_b32 s53, 4
s_mov_b32 m0, 0
s_nop 0
""")
        for i, p in enumerate([3, 4, 5, 6]):
            off = " offset:%d" % (i * 1024) if i else ""
            e("buffer_load_dwordx4 v%d, s[60:63], s51 offen%s%s lds" % (p, off, nt))
        e("s_add_u32 s51, s51, s41")
        e("s_barrier")
        run([3, 4, 5, 6], "s41", 17, False)
        e("s_branch L_ld_k")
        self.label("L_ld_nocol")
        e("s_mov_b32 s50, %d\ns_mov_b32 s53, %d\ns_barrier" % (P_K * 1024, P_K))
        self.label("L_ld_k")
        self.stamp(1)
        e("s_mov_b32 s60, s6\ns_mov_b32 s61, s7\ns_mov_b32 s62, 0x8000000\ns_mov_b32 s51, s46")
        if "fine" in self.abl:
            for q in range(4):
                run([1, 2, 1, 2], "4096", 8, True)
                self.stamp(4 + q)
            e("s_mov_b32 s60, s8\ns_mov_b32 s61, s9\ns_mov_b32 s51, s46")
            for q in range(4):
                run([1, 2, 1, 2], "4096", 8, True)
                if q < 3:
                    self.stamp(8 + q)
        else:
            run([1, 2, 1, 2], "4096", 32, True)
            e("s_mov_b32 s60, s8\ns_mov_b32 s61, s9\ns_mov_b32 s51, s46")
            run([1, 2, 1, 2], "4096", 32, True)
        self.stamp(2)
        e("""
s_cmp_ge_u32 s31, 26
s_cbranch_scc1 L_ld_down
s_cmp_lt_u32 s31, 8
s_cbranch_scc1 L_ld_drain
s_mov_b32 s60, s12
s_mov_b32 s61, s13
s_mov_b32 s62, %d
s_mul_i32 s51, s37, 294912
s_lshl_b32 s54, s38, 7
s_add_u32 s51, s51, s54
""" % (4096 * 1152))
        run([20, 21, 22, 23], "36864", 8, True)
        e("s_branch L_ld_drain")
        self.label("L_ld_down")
        e("""
s_mov_b32 s60, s20
s_mov_b32 s61, s21
s_mov_b32 s62, %d
s_sub_u32 s51, s37, 16
s_mul_i32 s51, s51, 331776
s_mul_i32 s54, s38, 384
s_add_u32 s51, s51, s54
""" % (4608 * 1152))
        run([7, 8, 9], "9216", 36, True)
        self.label("L_ld_drain")
        for w in (16, 12, 8, 4, 0):
            if w < W:
                e("s_waitcnt vmcnt(%d)\ns_sub_u32 s54, s53, %d\nv_mov_b32 v16, s54\nds_write_b32 v10, v16" % (w, w))
        self.stamp(3)
        self.flush_stamps([(0, 0), (1, 1), (2, 2), (3, 3)] + ([(4 + q, 25 + q) for q in range(7)] if "fine" in self.abl else []))
        e("s_endpgm")

    def gather(self, loads, regs, vt, strycnt="s59", sleep=8, preissued=False, idle_sleep=0):
        e = self.e
        L = self.lab("Lg")
        D = self.lab("Lgd")
        P = self.lab("Lgp")
        n = len(loads)
        per = len(regs) // n
        assert n <= 6
        masks = [(self.mbase + 2 * k) for k in range(n)]
        e("s_mov_b32 %s, %d\ns_mov_b64 s[90:91], exec" % (strycnt, self.spin))
        if not preissued:
            for l in loads:
                e(l)
        e("s_branch %s" % P)
        self.label(L)
        for k, l in enumerate(loads):
            if n > 1:
                S = self.lab("Lgs")
                e("s_mov_b64 exec, s[%d:%d]\ns_cbranch_execz %s" % (masks[k], masks[k] + 1, S))
                e(l)
                self.label(S)
            else:
                e("s_mov_b64 exec, vcc")
                e(l)
        e("s_mov_b64 exec, s[90:91]")
        self.label(P)
        e("s_waitcnt vmcnt(0)")
        for k in range(n):
            rs = list(regs[k * per:(k + 1) * per])
            if len(rs) == 2:
                e("v_max_u32 v%d, v%d, v%d" % (vt + k, rs[0], rs[1]))
            else:
                e("v_max3_u32 v%d, v%d, v%d, v%d\nv_max_u32 v%d, v%d, v%d" % (vt + k, rs[0], rs[1], rs[2], vt + k, vt + k, rs[3]))
        if n == 1:
            e("v_cmp_eq_u32 vcc, -1, v%d" % vt)
        else:
            rs = [vt + k for k in range(n)]
            t = vt + n
            e("v_max_u32 v%d, v%d, v%d" % (t, rs[0], rs[1]))
            rs = rs[2:]
            while rs:
                if len(rs) >= 2:
                    e("v_max3_u32 v%d, v%d, v%d, v%d" % (t, t, rs[0], rs[1]))
                    rs = rs[2:]
                else:
                    e("v_max_u32 v%d, v%d, v%d" % (t, t, rs[0]))
                    rs = []
            e("v_cmp_eq_u32 vcc, -1, v%d" % t)
        e("s_cbranch_vccz %s" % D)
        if n > 1:
            for k in range(n):
                e("v_cmp_eq_u32 s[%d:%d], -1, v%d" % (masks[k], masks[k] + 1, vt + k))
        if idle_sleep:
            Z = self.lab("Lgz")
            e("s_and_b64 s[%d:%d], s[%d:%d], s[%d:%d]" % (self.mbase + 12, self.mbase + 13, masks[0], masks[0] + 1, masks[1], masks[1] + 1))
            e("s_cmp_lg_u64 s[%d:%d], s[90:91]\ns_cbranch_scc1 %s\ns_sleep %d" % (self.mbase + 12, self.mbase + 13, Z, idle_sleep))
            self.label(Z)
        if sleep:
            e("s_sleep %d" % sleep)
        e("s_sub_u32 %s, %s, 1\ns_cmp_lg_u32 %s, 0\ns_cbranch_scc1 %s" % (strycnt, strycnt, strycnt, L))
        self.label(D)

    def ws_srd(self):
        if self.wsoff:
            self.e("s_add_u32 s40, s26, %d\ns_addc_u32 s41, s27, 0" % self.wsoff)
        else:
            self.e("s_mov_b32 s40, s26\ns_mov_b32 s41, s27")
        self.e("s_mov_b32 s42, %d\ns_mov_b32 s43, 0x00020000" % WS_SIZE)

    def set_flag(self, addr, vt0, vt1):
        self.e("s_mov_b64 exec, 1\nv_mov_b32 v%d, %d\nv_mov_b32 v%d, 1\nds_write_b32 v%d, v%d\ns_mov_b64 exec, -1" % (vt0, addr, vt1, vt0, vt1))

    def comm(self):
        e = self.e
        self.label("L_comm")
        e("""
v_lshlrev_b32 v1, 3, v0
v_add_u32 v1, %d, v1
v_mov_b32 v2, 0
v_mov_b32 v3, 0
ds_write_b64 v1, v[2:3]
v_mov_b32 v4, -1
v_mov_b32 v5, -1
v_mov_b32 v6, -1
v_mov_b32 v7, -1
v_lshlrev_b32 v8, 4, v0
""" % FULL)
        self.tile_ids()
        self.ct_id()
        e("""
s_lshl_b32 s45, s33, 2
s_add_u32 s45, s45, s35
v_lshrrev_b32 v9, 3, v0
v_mul_u32_u24 v9, %d, v9
v_and_b32 v10, 7, v0
v_lshl_add_u32 v9, v10, 4, v9
v_lshrrev_b32 v13, 4, v0
v_mul_u32_u24 v13, 2304, v13
v_and_b32 v10, 15, v0
v_lshl_add_u32 v13, v10, 4, v13
s_waitcnt lgkmcnt(0)
s_barrier
""" % C_STRIDE)
        if "tlb" in self.abl:
            self.tlb_warm()
        if "nocomm" in self.abl:
            e("s_waitcnt lgkmcnt(0)")
            self.set_flag(FLAG_Q, 21, 22)
            self.set_flag(FLAG_H, 21, 22)
            self.set_flag(FLAG_SC, 21, 22)
            e("s_endpgm")
        self.ws_srd()
        e("""
s_mov_b32 s48, s24
s_mov_b32 s49, s25
s_mov_b32 s50, 256
s_mov_b32 s51, 0x00020000
s_lshl_b32 s46, s45, 10
s_add_u32 s46, s46, %d
buffer_store_dwordx4 v[4:7], v8, s[40:43], s46 offen sc1
s_lshl_b32 s47, s45, 6
s_add_u32 s47, s47, %d
s_mov_b64 exec, 15
buffer_store_dwordx4 v[4:7], v8, s[40:43], s47 offen sc1
s_mov_b64 exec, -1
s_mul_i32 s52, s37, %d
s_add_u32 s52, s52, %d
s_cmp_ge_u32 s31, 26
s_cbranch_scc1 L_cm_dn
s_lshl_b32 s46, s44, 7
s_mov_b32 exec_hi, 0
buffer_store_dwordx4 v[4:7], v9, s[40:43], s46 offen sc1
s_mov_b32 exec_hi, -1
s_cmp_lt_u32 s31, 8
s_cbranch_scc1 L_cm_nop
s_lshl_b32 s46, s38, 8
s_add_u32 s46, s46, s52
buffer_store_dwordx4 v[4:7], v13, s[40:43], s46 offen sc1
s_branch L_cm_nop
L_cm_dn:
s_mul_i32 s46, s38, 768
s_add_u32 s46, s46, s52
buffer_store_dwordx4 v[4:7], v13, s[40:43], s46 offen sc1
buffer_store_dwordx4 v[4:7], v13, s[40:43], s46 offen offset:256 sc1
buffer_store_dwordx4 v[4:7], v13, s[40:43], s46 offen offset:512 sc1
L_cm_nop:
""" % (WS_OP, WS_ST, PART_ROW, WS_PART))
        e("""
s_and_b32 s46, s2, 3
s_lshl_b32 s46, s46, 3
s_lshl_b32 s46, 1, s46
v_mov_b32 v10, s46
s_and_b32 s46, s2, 0xfc
v_mov_b32 v11, 0
v_lshlrev_b32 v12, 2, v0
s_waitcnt vmcnt(0)
s_mov_b64 exec, 1
%s
s_mov_b64 exec, -1
""" % ("s_nop 0" if "noat" in self.abl else "buffer_atomic_add v10, v11, s[48:51], s46 offen sc1"))
        self.stamp(7)
        if "comm_clr" in self.abl:
            self.set_flag(FLAG_Q, 21, 22)
            self.set_flag(FLAG_H, 21, 22)
            self.set_flag(FLAG_SC, 21, 22)
            e("s_endpgm")
        e("s_cmp_ge_u32 s31, 26\ns_cselect_b32 s47, %d, %d\nv_mov_b32 v15, %d" % (P_K + self.flagpos, self.flagpos, FULL))
        self.wait_lds("v15", "s46", "s47", "v14", cached=False, sleep=4)
        self.stamp(8)
        L = self.lab("Lfl")
        D = self.lab("Lfld")
        e("s_mov_b32 s59, %d\ns_mov_b32 s46, 0x01010101" % self.spin)
        self.label(L)
        e("""
buffer_load_dword v14, v12, s[48:51], 0 offen sc1
s_waitcnt vmcnt(0)
v_cmp_ne_u32 vcc, s46, v14
s_cbranch_vccz %s
s_sleep 16
s_sub_u32 s59, s59, 1
s_cmp_lg_u32 s59, 0
s_cbranch_scc1 %s
""" % (D, L))
        self.label(D)
        self.stamp(0)
        self.rawstamp(9, "s59")
        if "comm_fl" in self.abl:
            self.set_flag(FLAG_Q, 21, 22)
            self.set_flag(FLAG_H, 21, 22)
            self.set_flag(FLAG_SC, 21, 22)
            e("s_endpgm")
        e("s_add_u32 s47, s47, %d" % (self.qpos - self.flagpos))
        self.wait_lds("v15", "s46", "s47", "v14", cached=False, sleep=4)
        e("""
s_mul_i32 s46, s34, %d
s_lshl_b32 s47, s32, 9
s_add_u32 s46, s46, s47
s_mov_b32 exec_hi, 0
""" % C_STRIDE)
        self.gather(["buffer_load_dwordx4 v[16:19], v8, s[40:43], s46 offen sc1"], [16, 17, 18, 19], 20)
        e("v_add_u32 v21, %d, v8\nds_write_b128 v21, v[16:19]\ns_waitcnt lgkmcnt(0)" % QL)
        self.set_flag(FLAG_Q, 21, 22)
        self.stamp(1)
        self.rawstamp(10, "s59")
        if "comm_q" in self.abl:
            self.set_flag(FLAG_H, 21, 22)
            self.set_flag(FLAG_SC, 21, 22)
            e("s_endpgm")
        e("s_cmp_lt_u32 s31, 26\ns_cbranch_scc1 L_cm_noh")
        for i in range(3):
            e("""
v_add_u32 v16, %d, v0
v_mul_u32_u24 v17, 1821, v16
v_lshrrev_b32 v17, 16, v17
v_mul_u32_u24 v18, 36, v17
v_sub_u32 v18, v16, v18
v_mul_u32_u24 v19, %d, v17
v_lshl_add_u32 v%d, v18, 4, v19
v_mul_u32_u24 v19, %d, v17
v_lshrrev_b32 v20, 2, v18
v_lshl_add_u32 v19, v20, 6, v19
v_and_b32 v20, 1, v18
v_lshl_add_u32 v19, v20, 5, v19
v_bfe_u32 v20, v18, 1, 1
v_lshl_add_u32 v19, v20, 3, v19
v_add_u32 v%d, %d, v19
""" % (64 * i, C_STRIDE, 24 + i, H_STRIDE, 27 + i, XN))
        e("""
v_cmp_gt_u32 vcc, 16, v0
s_nop 1
v_cndmask_b32 v26, v24, v26, vcc
v_cndmask_b32 v29, v27, v29, vcc
s_sub_u32 s46, s37, 16
s_mul_i32 s46, s46, 576
s_add_u32 s47, s46, %d
s_add_u32 s46, s46, %d
""" % (8704 * 2, 4096 * 2))
        self.wait_lds("v15", "s48", str(P_K + self.hpos), "v14", cached=False, sleep=4)
        loads = []
        for i in range(3):
            loads.append("buffer_load_dwordx4 v[%d:%d], v%d, s[40:43], s46 offen sc1" % (48 + 4 * i, 51 + 4 * i, 24 + i))
            loads.append("buffer_load_dwordx4 v[%d:%d], v%d, s[40:43], s47 offen sc1" % (60 + 4 * i, 63 + 4 * i, 24 + i))
        self.gather(loads, [r for i in range(3) for r in list(range(48 + 4 * i, 52 + 4 * i)) + list(range(60 + 4 * i, 64 + 4 * i))], 72)
        c0 = -2.0 * LOG2E * 0.7978845608028654
        e("s_mov_b32 s46, %s\ns_mov_b32 s47, %s\ns_mov_b32 s56, 0xffff0000" % (f32(c0), f32(c0 * 0.044715)))
        e("v_mov_b32 v20, s46")
        for r in range(12):
            g = 48 + r
            u = 60 + r
            e("""
v_lshlrev_b32 v16, 16, v%(g)d
v_and_b32 v17, s56, v%(g)d
v_mul_f32 v18, v16, v16
v_mul_f32 v19, v17, v17
v_fma_f32 v18, v18, s47, v20
v_fma_f32 v19, v19, s47, v20
v_mul_f32 v18, v18, v16
v_mul_f32 v19, v19, v17
v_exp_f32 v18, v18
v_exp_f32 v19, v19
s_nop 0
v_add_f32 v18, 1.0, v18
v_add_f32 v19, 1.0, v19
v_rcp_f32 v18, v18
v_rcp_f32 v19, v19
s_nop 0
v_mul_f32 v18, v18, v16
v_mul_f32 v19, v19, v17
v_cvt_pk_bf16_f32 v18, v18, v19
v_lshlrev_b32 v16, 16, v%(u)d
v_and_b32 v17, s56, v%(u)d
v_and_b32 v19, s56, v18
v_lshlrev_b32 v18, 16, v18
v_mul_f32 v18, v18, v16
v_mul_f32 v19, v19, v17
v_cvt_pk_bf16_f32 v%(g)d, v18, v19
""" % dict(g=g, u=u))
        for i in range(3):
            e("ds_write2_b64 v%d, v[%d:%d], v[%d:%d] offset0:0 offset1:2" % (27 + i, 48 + 4 * i, 49 + 4 * i, 50 + 4 * i, 51 + 4 * i))
        e("s_waitcnt lgkmcnt(0)")
        self.set_flag(FLAG_H, 21, 22)
        self.label("L_cm_noh")
        e("v_mov_b32 v16, %d" % CNT_STAT)
        self.wait_lds("v16", "s46", "4", "v17", cached=False, sleep=2)
        self.stamp(2)
        e("""
v_and_b32 v16, 7, v0
v_lshlrev_b32 v16, 3, v16
v_add_u32 v17, %d, v16
ds_read_b64 v[18:19], v17
s_mov_b32 s56, %s
v_and_b32 v27, 1, v0
v_lshlrev_b32 v27, 4, v27
v_bfe_u32 v28, v0, 1, 2
v_lshl_add_u32 v27, v28, 2, v27
v_add_u32 v27, %d, v27
s_waitcnt lgkmcnt(0)
v_max_f32_dpp v20, v18, v18 row_ror:2 row_mask:0xf bank_mask:0xf
s_nop 1
v_max_f32_dpp v20, v20, v20 row_ror:4 row_mask:0xf bank_mask:0xf
v_sub_f32 v22, v18, v20
v_mul_f32 v22, s56, v22
v_exp_f32 v22, v22
s_nop 0
v_mul_f32 v21, v22, v19
ds_write_b32 v27, v22
s_nop 0
v_add_f32_dpp v21, v21, v21 row_ror:2 row_mask:0xf bank_mask:0xf
s_nop 1
v_add_f32_dpp v21, v21, v21 row_ror:4 row_mask:0xf bank_mask:0xf
s_lshl_b32 s47, s45, 6
s_add_u32 s47, s47, %d
s_mov_b64 exec, 0xff
buffer_store_dwordx2 v[20:21], v16, s[40:43], s47 offen sc1
s_mov_b64 exec, -1
s_waitcnt lgkmcnt(0)
""" % (STW, f32(LOG2E), SC, WS_ST))
        self.set_flag(FLAG_SC, 23, 24)
        self.stamp(3)
        self.flush_stamps([(0, 4), (1, 5), (2, 6), (3, 7), (7, 16), (8, 17), (9, 18), (10, 19)])
        e("s_endpgm")

    def tlb_warm(self):
        e = self.e
        e("""
s_lshl_b32 s52, s33, 21
s_add_u32 s52, s52, 0x180000
s_lshl_b32 s53, s35, 17
s_add_u32 s52, s52, s53
s_load_dword s78, s[6:7], s52
s_load_dword s78, s[8:9], s52
s_cmp_ge_u32 s31, 26
s_cbranch_scc1 L_tw_dn
s_cmp_lt_u32 s31, 17
s_cselect_b32 s60, s16, s18
s_cselect_b32 s61, s17, s19
s_cmp_lt_u32 s31, 8
s_cselect_b32 s60, s10, s60
s_cselect_b32 s61, s11, s61
s_mov_b32 s53, 0x180000
s_load_dword s78, s[60:61], s53
s_mov_b32 s53, 0x300000
s_load_dword s78, s[60:61], s53
s_mov_b32 s53, 0x47ff00
s_load_dword s78, s[60:61], s53
s_cbranch_scc1 L_tw_end
s_mul_i32 s53, s37, 294912
s_load_dword s78, s[12:13], s53
s_add_u32 s53, s53, 294000
s_load_dword s78, s[12:13], s53
s_branch L_tw_end
L_tw_dn:
s_sub_u32 s53, s37, 16
s_mul_i32 s53, s53, 331776
s_load_dword s78, s[20:21], s53
s_add_u32 s53, s53, 331000
s_load_dword s78, s[20:21], s53
L_tw_end:
""")

    def ct_id(self):
        self.e("""
s_lshl_b32 s44, s30, 3
s_add_u32 s44, s44, s31
s_mul_i32 s46, s30, 9
s_add_u32 s46, s46, s31
s_add_u32 s47, s46, 56
s_add_u32 s46, s46, 119
s_cmp_lt_u32 s31, 17
s_cselect_b32 s46, s47, s46
s_cmp_lt_u32 s31, 8
s_cselect_b32 s44, s44, s46
""")

    def free_write(self, sval):
        self.e("s_mov_b64 exec, 1\nv_mov_b32 v4, %s\nds_write_b32 v3, v4\ns_mov_b64 exec, -1" % sval)

    def cons(self):
        e = self.e
        self.label("L_cons")
        e("""
s_sub_u32 s36, s36, 2
v_mov_b32 v2, %d
s_lshl_b32 s44, s36, 2
s_add_u32 s44, s44, %d
v_mov_b32 v3, s44
s_mov_b32 s50, 0
v_and_b32 v8, 15, v0
v_lshrrev_b32 v9, 4, v0
v_lshrrev_b32 v10, 2, v0
v_and_b32 v11, 3, v0
s_mov_b32 s56, 0xffff0000
v_mul_u32_u24 v12, 1152, v9
v_lshl_add_u32 v12, v8, 4, v12
v_mov_b32 v13, 0x40000000
v_cmp_gt_u32 vcc, 8, v8
v_bfe_u32 v7, v0, 3, 2
v_lshlrev_b32 v7, 5, v7
v_cndmask_b32 v13, v13, v12, vcc
v_lshl_add_u32 v7, v10, 7, v7
v_lshl_add_u32 v7, v11, 3, v7
s_waitcnt lgkmcnt(0)
s_mov_b32 s60, s4
s_mov_b32 s61, s5
s_mov_b32 s62, 4608
s_mov_b32 s63, 0x00020000
""" % (FULL, FREE))
        self.ws_srd()
        if "nocons" in self.abl:
            e("s_barrier")
            self.free_write("0x10000")
            e("s_endpgm")
        e("""
s_cmp_ge_u32 s31, 26
s_cbranch_scc1 L_cs_nocol
""")
        if "nox" not in self.abl:
            e("""
buffer_load_dwordx4 v[32:35], v12, s[60:63], 0 offen
buffer_load_dwordx4 v[36:39], v12, s[60:63], 0 offen offset:256
buffer_load_dwordx4 v[40:43], v12, s[60:63], 0 offen offset:512
buffer_load_dwordx4 v[44:47], v12, s[60:63], 0 offen offset:768
buffer_load_dwordx4 v[48:51], v13, s[60:63], 0 offen offset:1024
""")
        e("s_barrier")
        e("""
v_mul_u32_u24 v14, %d, v9
v_lshrrev_b32 v15, 2, v8
v_lshl_add_u32 v14, v15, 6, v14
v_and_b32 v15, 1, v8
v_lshl_add_u32 v14, v15, 5, v14
v_bfe_u32 v15, v8, 1, 1
v_lshl_add_u32 v14, v15, 3, v14
v_add_u32 v14, %d, v14
s_lshl_b32 s44, s36, 5
v_xor_b32 v15, s44, v7
v_mul_u32_u24 v16, %d, v11
v_lshl_add_u32 v16, v9, 4, v16
v_add_u32 v16, %d, v16
s_waitcnt vmcnt(0)
""" % (XN_STRIDE, XN, XN_STRIDE, XN))
        for k in range(20):
            e("v_lshlrev_b32 v%d, 16, v%d\nv_and_b32 v%d, s56, v%d" % (64 + 2 * k, 32 + k, 65 + 2 * k, 32 + k))
        e("v_add_f32 v52, v64, v65\nv_add_f32 v53, v66, v67")
        for k in range(2, 20):
            e("v_add_f32 v52, v52, v%d\nv_add_f32 v53, v53, v%d" % (64 + 2 * k, 65 + 2 * k))
        e("v_add_f32 v52, v52, v53")
        for ror in (8, 4, 2, 1):
            e("s_nop 1\nv_add_f32_dpp v52, v52, v52 row_ror:%d row_mask:0xf bank_mask:0xf" % ror)
        e("v_mul_f32 v52, %s, v52" % f32(1.0 / 576))
        e("v_cndmask_b32 v55, 0, v52, vcc")
        e("v_mov_b32 v53, 0\nv_mov_b32 v54, 0")
        for k in range(20):
            m = 55 if k >= 16 else 52
            e("v_sub_f32 v56, v%d, v%d\nv_sub_f32 v57, v%d, v%d\nv_fmac_f32 v53, v56, v56\nv_fmac_f32 v54, v57, v57" % (64 + 2 * k, m, 65 + 2 * k, m))
        e("v_add_f32 v53, v53, v54")
        for ror in (8, 4, 2, 1):
            e("s_nop 1\nv_add_f32_dpp v53, v53, v53 row_ror:%d row_mask:0xf bank_mask:0xf" % ror)
        e("""
v_mul_f32 v53, %s, v53
v_cvt_pk_bf16_f32 v52, v52, v53
v_and_b32 v53, s56, v52
v_lshlrev_b32 v52, 16, v52
v_add_f32 v53, %s, v53
v_cvt_pk_bf16_f32 v53, v53, v53
v_and_b32 v53, s56, v53
v_sqrt_f32 v53, v53
s_nop 0
v_cvt_pk_bf16_f32 v53, v53, v53
v_and_b32 v53, s56, v53
v_rcp_f32 v54, v53
""" % (f32(1.0 / 576), f32(1e-5)))
        for k in range(20):
            a, b = 64 + 2 * k, 65 + 2 * k
            e("""
v_sub_f32 v%(a)d, v%(a)d, v52
v_sub_f32 v%(b)d, v%(b)d, v52
v_cvt_pk_bf16_f32 v56, v%(a)d, v%(b)d
v_lshlrev_b32 v%(a)d, 16, v56
v_and_b32 v%(b)d, s56, v56
v_mul_f32 v57, v%(a)d, v54
v_mul_f32 v58, v%(b)d, v54
v_fma_f32 v%(a)d, -v57, v53, v%(a)d
v_fma_f32 v%(b)d, -v58, v53, v%(b)d
v_fmac_f32 v57, v%(a)d, v54
v_fmac_f32 v58, v%(b)d, v54
v_cvt_pk_bf16_f32 v%(d)d, v57, v58
""" % dict(a=a, b=b, d=32 + k))
        for t in range(4):
            e("ds_write2_b64 v14, v[%d:%d], v[%d:%d] offset0:%d offset1:%d" % (32 + 4 * t, 33 + 4 * t, 34 + 4 * t, 35 + 4 * t, 32 * t, 32 * t + 2))
        e("s_mov_b64 exec, vcc\nds_write2_b64 v14, v[48:49], v[50:51] offset0:128 offset1:130\ns_mov_b64 exec, -1")
        e("v_mov_b32 v20, 0\nv_mov_b32 v21, 0\nv_mov_b32 v22, 0\nv_mov_b32 v23, 0\ns_mov_b32 s51, 4")
        self.stamp(0)
        L = self.lab("Lcol")
        self.label(L)
        self.wait_lds("v2", "s50", "s51", "v4")
        e("""
ds_read_b64_tr_b16 v[24:25], v15
ds_read_b64_tr_b16 v[26:27], v15 offset:2048
ds_read_b128 v[28:31], v16
v_add_u32 v15, 4096, v15
v_add_u32 v16, 64, v16
s_add_u32 s51, s51, 4
s_cmp_le_u32 s51, %d
s_waitcnt lgkmcnt(0)
v_mfma_f32_16x16x32_bf16 v[20:23], v[24:27], v[28:31], v[20:23]
s_cbranch_scc1 %s
""" % (P_K, L))
        self.ct_id()
        e("""
s_lshl_b32 s44, s44, 7
s_lshl_b32 s45, s36, 5
s_add_u32 s45, s45, %d
v_lshlrev_b32 v17, 7, v11
v_lshl_add_u32 v17, v9, 3, v17
v_add_u32 v17, s45, v17
v_mov_b32 v18, %d
v_mov_b32 v19, 1
v_cvt_pk_bf16_f32 v24, v20, v21
v_cvt_pk_bf16_f32 v25, v22, v23
s_mov_b32 exec_lo, 0x000f000f
s_mov_b32 exec_hi, 0x000f000f
ds_write_b64 v17, v[24:25]
s_mov_b64 exec, 1
ds_add_rtn_u32 v18, v18, v19
s_mov_b64 exec, -1
v_lshlrev_b32 v17, 4, v0
v_add_u32 v17, %d, v17
v_lshrrev_b32 v19, 3, v0
v_mul_u32_u24 v19, %d, v19
v_and_b32 v20, 7, v0
v_lshl_add_u32 v19, v20, 4, v19
s_waitcnt lgkmcnt(0)
v_readfirstlane_b32 s45, v18
s_cmp_lg_u32 s45, 3
s_cbranch_scc1 L_cs_k
s_mov_b32 exec_hi, 0
ds_read_b128 v[24:27], v17
s_waitcnt lgkmcnt(0)
%s
s_mov_b32 exec_hi, -1
s_branch L_cs_k
L_cs_nocol:
s_barrier
L_cs_k:
""" % (OB, CNT_C, OB, C_STRIDE, "s_nop 0" if "nocst" in self.abl else "buffer_store_dwordx4 v[24:27], v19, s[40:43], s44 offen sc1"))
        self.stamp(1)
        e("""
v_and_b32 v5, 7, v0
v_lshlrev_b32 v5, 1, v5
v_xor_b32 v5, v5, v9
v_lshlrev_b32 v5, 4, v5
v_lshl_add_u32 v5, v8, 8, v5
v_and_b32 v6, 7, v10
v_lshlrev_b32 v6, 5, v6
v_lshl_add_u32 v6, v10, 8, v6
v_lshl_add_u32 v6, v11, 3, v6
s_lshl_b32 s52, s36, 2
s_add_u32 s51, s52, %d
s_lshl_b32 s53, s51, 10
""" % P_K)
        self.free_write("s51")

        def advance():
            e("s_add_u32 s51, s51, 16\ns_add_u32 s53, s53, 16384\ns_sub_u32 s54, s53, %d\ns_cmp_ge_u32 s53, %d\ns_cselect_b32 s53, s54, s53" % (RING_BYTES, RING_BYTES))

        for i in range(8):
            e("s_add_u32 s55, s51, 4")
            self.wait_lds("v2", "s50", "s55", "v4")
            r = 128 + 16 * i
            e("""
v_add_u32 v12, s53, v5
v_xor_b32 v13, 64, v12
v_xor_b32 v14, 0x80, v12
v_xor_b32 v15, 0xc0, v12
ds_read_b128 v[%d:%d], v12
ds_read_b128 v[%d:%d], v13
ds_read_b128 v[%d:%d], v14
ds_read_b128 v[%d:%d], v15
""" % (r, r + 3, r + 4, r + 7, r + 8, r + 11, r + 12, r + 15))
            advance()
            if i & 1:
                e("s_waitcnt lgkmcnt(0)")
                self.free_write("s51")
        self.stamp(2)
        e("v_mov_b32 v12, %d" % FLAG_Q)
        self.wait_lds("v12", "s54", "1", "v4", cached=False)
        e("""
v_and_b32 v12, 1, v0
v_lshlrev_b32 v12, 8, v12
v_lshl_add_u32 v12, v9, 4, v12
v_add_u32 v12, %d, v12
ds_read_b128 v[32:35], v12
ds_read_b128 v[36:39], v12 offset:64
ds_read_b128 v[40:43], v12 offset:128
ds_read_b128 v[44:47], v12 offset:192
s_mov_b32 s57, %s
s_mov_b32 s58, %s
s_waitcnt lgkmcnt(0)
""" % (QL, f32(128 ** -0.5), f32(LOG2E)))
        for s in range(4):
            for i in range(8):
                c = "0" if s == 0 else "v[%d:%d]" % (48 + 4 * i, 51 + 4 * i)
                e("v_mfma_f32_16x16x32_bf16 v[%d:%d], v[%d:%d], v[%d:%d], %s" % (48 + 4 * i, 51 + 4 * i, 128 + 16 * i + 4 * s, 131 + 16 * i + 4 * s, 32 + 4 * s, 35 + 4 * s, c))
        e("s_nop 1")
        for k in range(16):
            a, b = 48 + 2 * k, 49 + 2 * k
            e("""
v_cvt_pk_bf16_f32 v12, v%(a)d, v%(b)d
v_lshlrev_b32 v%(a)d, 16, v12
v_and_b32 v%(b)d, s56, v12
v_mul_f32 v%(a)d, s57, v%(a)d
v_mul_f32 v%(b)d, s57, v%(b)d
v_cvt_pk_bf16_f32 v12, v%(a)d, v%(b)d
v_lshlrev_b32 v%(a)d, 16, v12
v_and_b32 v%(b)d, s56, v12
""" % dict(a=a, b=b))
        e("v_max3_f32 v12, v48, v49, v50")
        for k in range(51, 79, 2):
            e("v_max3_f32 v12, v12, v%d, v%d" % (k, k + 1))
        e("""
v_max_f32 v12, v12, v79
v_mov_b32 v13, v12
s_nop 1
v_permlane16_swap_b32 v12, v13
s_nop 0
v_max_f32 v12, v12, v13
v_mov_b32 v13, v12
s_nop 1
v_permlane32_swap_b32 v12, v13
s_nop 0
v_max_f32 v12, v12, v13
""")
        for k in range(32):
            e("v_sub_f32 v%d, v%d, v12" % (48 + k, 48 + k))
        for k in range(32):
            e("v_mul_f32 v%d, s58, v%d" % (48 + k, 48 + k))
        for k in range(32):
            e("v_exp_f32 v%d, v%d" % (48 + k, 48 + k))
        e("v_add_f32 v13, v48, v49\nv_add_f32 v14, v50, v51")
        for k in range(52, 80, 2):
            e("v_add_f32 v13, v13, v%d\nv_add_f32 v14, v14, v%d" % (k, k + 1))
        for k in range(16):
            e("v_cvt_pk_bf16_f32 v%d, v%d, v%d" % (80 + k, 48 + 2 * k, 49 + 2 * k))
        e("""
v_add_f32 v13, v13, v14
v_mov_b32 v14, v13
s_nop 1
v_permlane16_swap_b32 v13, v14
s_nop 0
v_add_f32 v13, v13, v14
v_mov_b32 v14, v13
s_nop 1
v_permlane32_swap_b32 v13, v14
s_nop 0
v_add_f32 v13, v13, v14
s_lshl_b32 s54, s36, 4
s_add_u32 s54, s54, %d
v_lshlrev_b32 v14, 3, v0
v_add_u32 v14, s54, v14
s_mov_b64 exec, 3
ds_write_b64 v14, v[12:13]
s_mov_b64 exec, 1
v_mov_b32 v14, %d
v_mov_b32 v15, 1
s_waitcnt lgkmcnt(0)
ds_add_u32 v14, v15
s_mov_b64 exec, -1
""" % (STW, CNT_STAT))
        self.stamp(3)
        self.tile_ids()
        e("""
v_and_b32 v24, 1, v0
v_lshlrev_b32 v24, 9, v24
v_lshl_add_u32 v24, v9, 4, v24
s_lshl_b32 s54, s36, 10
s_add_u32 s54, s54, %d
v_add_u32 v24, s54, v24
v_mov_b32 v25, %d
v_mov_b32 v26, 1
v_lshlrev_b32 v27, 4, v0
v_add_u32 v28, %d, v27
v_lshrrev_b32 v29, 5, v0
v_lshlrev_b32 v29, 4, v29
v_add_u32 v29, %d, v29
s_lshl_b32 s49, s33, 2
s_add_u32 s49, s49, s35
s_lshl_b32 s49, s49, 10
s_add_u32 s49, s49, %d
v_mov_b32 v30, %d
""" % (OW, CNT_O, OW, SC, WS_OP, FLAG_SC))
        for i in range(4):
            fr = 128 + 32 * (i & 1)
            for h in range(2):
                e("s_add_u32 s55, s51, 4")
                if i == 3 and h == 1:
                    self.wait_lds("v30", "s54", "1", "v4", cached=False)
                    e("ds_read_b128 v[32:35], v29")
                self.wait_lds("v2", "s50", "s55", "v4")
                e("v_add_u32 v12, s53, v6")
                for t in range(8):
                    if t:
                        e("v_xor_b32 v%d, %d, v12" % (16 + t, 32 * t))
                for t in range(8):
                    e("ds_read_b64_tr_b16 v[%d:%d], v%d" % (fr + 4 * t + 2 * h, fr + 4 * t + 2 * h + 1, 16 + t if t else 12))
                advance()
            for t in range(8):
                e("s_waitcnt lgkmcnt(%d)" % (7 - t))
                c = "0" if i == 0 else "v[%d:%d]" % (96 + 4 * t, 99 + 4 * t)
                e("v_mfma_f32_16x16x32_bf16 v[%d:%d], v[%d:%d], v[%d:%d], %s" % (96 + 4 * t, 99 + 4 * t, fr + 4 * t, fr + 4 * t + 3, 80 + 4 * i, 83 + 4 * i, c))
            if i < 3:
                self.free_write("s51")
        if "nopost" in self.abl:
            self.free_write("0x10000")
            e("s_branch L_cs_end")
        e("""
s_mov_b32 exec_lo, 0x00030003
s_mov_b32 exec_hi, 0x00030003
v_mov_b32 v4, %d
""" % P_W)
        for t in range(8):
            if t == 6:
                e("s_nop 1")
            e("ds_write_b128 v24, v[%d:%d] offset:%d" % (96 + 4 * t, 99 + 4 * t, 64 * t))
        e("""
s_mov_b64 exec, 1
ds_add_rtn_u32 v16, v25, v26
ds_write_b32 v3, v4
s_mov_b64 exec, -1
s_waitcnt lgkmcnt(1)
v_readfirstlane_b32 s54, v16
s_cmp_lg_u32 s54, 3
s_cbranch_scc1 L_cs_nolast
ds_read_b128 v[96:99], v28
ds_read_b128 v[100:103], v28 offset:1024
ds_read_b128 v[104:107], v28 offset:2048
ds_read_b128 v[108:111], v28 offset:3072
s_waitcnt lgkmcnt(3)
""")
        for k in range(4):
            e("v_mul_f32 v%d, v%d, v32" % (96 + k, 96 + k))
        for w in range(1, 4):
            e("s_waitcnt lgkmcnt(%d)" % (3 - w))
            for k in range(4):
                e("v_fmac_f32 v%d, v%d, v%d" % (96 + k, 96 + 4 * w + k, 32 + w))
        e("buffer_store_dwordx4 v[96:99], v27, s[40:43], s49 offen sc1")
        self.label("L_cs_nolast")
        self.stamp(4)
        e("""
s_cmp_lt_u32 s31, 8
s_cbranch_scc1 L_cs_red
s_cmp_ge_u32 s31, 26
s_cbranch_scc1 L_cs_down
""")
        ringw = (P_W % RING_KB) * 1024
        e("""
v_lshlrev_b32 v20, 16, v9
v_lshl_add_u32 v20, v8, 4, v20
v_lshlrev_b32 v22, 12, v9
v_lshl_add_u32 v22, v11, 6, v22
s_lshl_b32 s46, s37, 12
s_lshl_b32 s47, s36, 8
s_add_u32 s46, s46, s47
s_add_u32 s46, s46, %d
s_lshl_b32 s47, s37, 8
s_lshr_b32 s48, s36, 1
s_lshl_b32 s48, s48, 3
s_add_u32 s47, s47, s48
s_add_u32 s47, s47, %d
s_lshl_b32 s54, s36, 13
s_add_u32 s54, s54, %d
v_add_u32 v12, s54, v7
v_xor_b32 v13, 32, v12
v_xor_b32 v14, 64, v12
v_xor_b32 v15, 0x60, v12
s_lshl_b32 s55, s36, 3
s_add_u32 s55, s55, %d
v_lshlrev_b32 v24, 8, v11
v_lshl_add_u32 v24, v9, 4, v24
s_lshl_b32 s54, s36, 10
s_add_u32 s54, s54, %d
v_add_u32 v24, s54, v24
v_mov_b32 v25, %d
v_add_u32 v28, %d, v27
v_mul_u32_u24 v29, 2304, v9
v_lshl_add_u32 v29, v8, 4, v29
s_mul_i32 s44, s37, %d
s_lshl_b32 s45, s38, 8
s_add_u32 s44, s44, s45
s_add_u32 s44, s44, %d
s_lshl_b32 s54, s36, 9
s_add_u32 s54, s54, %d
v_lshlrev_b32 v21, 7, v9
v_bfe_u32 v16, v0, 3, 1
v_lshl_add_u32 v21, v16, 6, v21
v_lshl_add_u32 v21, v11, 4, v21
v_bfe_u32 v16, v0, 2, 1
v_lshl_add_u32 v21, v16, 3, v21
v_add_u32 v21, s54, v21
v_lshlrev_b32 v23, 7, v11
v_lshl_add_u32 v23, v9, 4, v23
v_add_u32 v23, s54, v23
""" % (WS_OP, WS_ST, ringw, P_W + 8, RW, CNT_P, RW, PART_ROW, WS_PART, OB))
        self.wait_lds("v2", "s50", str(P_W + 32 - self.W - self.gearly), "v4")
        sloads = ["buffer_load_dwordx2 v[232:233], v22, s[40:43], s47 offen sc1"]
        loads = ["buffer_load_dwordx4 v[%d:%d], v20, s[40:43], s46 offen offset:%d sc1" % (216 + 4 * k, 219 + 4 * k, 1024 * k) for k in range(4)]
        for l in sloads + loads:
            e(l)
        self.stamp(8)
        self.wait_lds("v2", "s50", "s55", "v4")
        for s in range(2):
            for q in range(4):
                r = 128 + 16 * s + 4 * q
                e("ds_read_b64_tr_b16 v[%d:%d], v%d offset:%d" % (r, r + 1, 12 + q, 4096 * s))
                e("ds_read_b64_tr_b16 v[%d:%d], v%d offset:%d" % (r + 2, r + 3, 12 + q, 4096 * s + 2048))
        Ls = self.lab("Lst")
        Lsd = self.lab("Lstd")
        e("s_mov_b32 s59, %d\ns_waitcnt vmcnt(4)" % self.spin)
        self.label(Ls)
        e("""
v_max_u32 v16, v232, v233
v_cmp_eq_u32 vcc, -1, v16
s_cbranch_vccz %s
%s
s_sub_u32 s59, s59, 1
s_cmp_lg_u32 s59, 0
s_waitcnt vmcnt(0)
s_cbranch_scc1 %s
""" % (Lsd, "\n".join(sloads), Ls))
        self.label(Lsd)
        e("""
v_max_f32_dpp v16, v232, v232 quad_perm:[1,0,3,2] row_mask:0xf bank_mask:0xf
s_nop 1
v_max_f32_dpp v16, v16, v16 quad_perm:[2,3,0,1] row_mask:0xf bank_mask:0xf
v_sub_f32 v232, v232, v16
v_mul_f32 v232, s58, v232
v_exp_f32 v232, v232
s_nop 0
v_mul_f32 v16, v232, v233
s_nop 1
v_add_f32_dpp v16, v16, v16 quad_perm:[1,0,3,2] row_mask:0xf bank_mask:0xf
s_nop 1
v_add_f32_dpp v16, v16, v16 quad_perm:[2,3,0,1] row_mask:0xf bank_mask:0xf
v_rcp_f32 v16, v16
s_nop 0
v_mul_f32 v232, v232, v16
""")
        self.gather(loads, list(range(216, 232)), 36, sleep=self.tsleep, preissued=True)
        self.stamp(5)
        self.rawstamp(7, "s59")
        for k in range(4):
            e("v_mul_f32_dpp v%d, v232, v%d quad_perm:[0,0,0,0] row_mask:0xf bank_mask:0xf" % (240 + k, 216 + k))
        for j in range(1, 4):
            for k in range(4):
                e("v_fmac_f32_dpp v%d, v232, v%d quad_perm:[%d,%d,%d,%d] row_mask:0xf bank_mask:0xf" % (240 + k, 216 + 4 * j + k, j, j, j, j))
        e("""
v_cvt_pk_bf16_f32 v244, v240, v241
v_cvt_pk_bf16_f32 v245, v242, v243
ds_write_b64 v21, v[244:245]
ds_read_b128 v[232:235], v23
ds_read_b128 v[236:239], v23 offset:64
""")
        e("s_waitcnt lgkmcnt(0)\ns_nop 0")
        for s in range(2):
            for q in range(4):
                r = 128 + 16 * s + 4 * q
                c = "0" if s == 0 else "v[%d:%d]" % (240 + 4 * q, 243 + 4 * q)
                e("v_mfma_f32_16x16x32_bf16 v[%d:%d], v[%d:%d], v[%d:%d], %s" % (240 + 4 * q, 243 + 4 * q, r, r + 3, 232 + 4 * s, 235 + 4 * s, c))
        e("""
s_mov_b32 exec_lo, 0x000f000f
s_mov_b32 exec_hi, 0x000f000f
s_nop 2
ds_write_b128 v24, v[240:243]
s_nop 0
ds_write_b128 v24, v[244:247] offset:64
s_nop 0
ds_write_b128 v24, v[248:251] offset:128
s_nop 0
ds_write_b128 v24, v[252:255] offset:192
s_mov_b64 exec, 1
ds_add_rtn_u32 v16, v25, v26
s_mov_b64 exec, -1
s_waitcnt lgkmcnt(0)
v_readfirstlane_b32 s54, v16
s_cmp_lg_u32 s54, 3
s_cbranch_scc1 L_cs_end
ds_read_b128 v[96:99], v28
ds_read_b128 v[100:103], v28 offset:1024
ds_read_b128 v[104:107], v28 offset:2048
ds_read_b128 v[108:111], v28 offset:3072
s_waitcnt lgkmcnt(2)
v_add_f32 v96, v96, v100
v_add_f32 v97, v97, v101
v_add_f32 v98, v98, v102
v_add_f32 v99, v99, v103
s_waitcnt lgkmcnt(0)
v_add_f32 v104, v104, v108
v_add_f32 v105, v105, v109
v_add_f32 v106, v106, v110
v_add_f32 v107, v107, v111
v_add_f32 v96, v96, v104
v_add_f32 v97, v97, v105
v_add_f32 v98, v98, v106
v_add_f32 v99, v99, v107
buffer_store_dwordx4 v[96:99], v29, s[40:43], s44 offen sc1
""")
        self.stamp(6)
        e("s_branch L_cs_end")
        self.label("L_cs_down")
        e("""
v_bfe_u32 v13, v0, 3, 2
v_mul_u32_u24 v14, 384, v10
v_lshl_add_u32 v14, v11, 3, v14
v_add_u32 v14, %d, v14
s_mul_i32 s54, s36, 3
v_xor_b32 v16, s54, v13
v_lshl_add_u32 v16, v16, 5, v14
s_add_u32 s54, s54, 1
v_xor_b32 v17, s54, v13
v_lshl_add_u32 v17, v17, 5, v14
s_add_u32 s54, s54, 1
v_xor_b32 v18, s54, v13
v_lshl_add_u32 v18, v18, 5, v14
v_mul_u32_u24 v12, 5462, v0
v_lshrrev_b32 v12, 16, v12
v_mul_u32_u24 v19, 12, v12
v_sub_u32 v19, v0, v19
v_mul_u32_u24 v12, 2304, v12
v_lshl_add_u32 v19, v19, 4, v12
s_mov_b32 s46, %d
s_cmp_lt_u32 s36, 2
s_cselect_b32 s46, %d, s46
s_mul_i32 s45, s36, 768
s_add_u32 s45, s45, s46
v_mul_u32_u24 v21, 192, v11
v_lshl_add_u32 v21, v9, 4, v21
v_add_u32 v21, s45, v21
v_add_u32 v22, s45, v27
s_mul_i32 s44, s37, %d
s_mul_i32 s45, s38, 768
s_add_u32 s44, s44, s45
s_mul_i32 s45, s36, 192
s_add_u32 s44, s44, s45
s_add_u32 s44, s44, %d
v_mov_b32 v12, %d
""" % (ringw, XN + 2304 - 1536, OB, PART_ROW, WS_PART, FLAG_H))
        self.wait_lds("v12", "s54", "1", "v4", cached=False)
        e("""
v_mul_u32_u24 v20, %d, v11
v_lshl_add_u32 v20, v9, 4, v20
v_add_u32 v20, %d, v20
s_mov_b32 s51, %d
""" % (H_STRIDE, XN, P_W + 12))
        for k in range(12):
            e("v_mov_b32 v%d, 0" % (240 + k))
        L = self.lab("Ldn")
        self.label(L)
        self.wait_lds("v2", "s50", "s51", "v4")
        e("ds_read_b128 v[232:235], v20")
        for q in range(3):
            r = 192 + 4 * q
            e("ds_read_b64_tr_b16 v[%d:%d], v%d" % (r, r + 1, 16 + q))
            e("ds_read_b64_tr_b16 v[%d:%d], v%d offset:6144" % (r + 2, r + 3, 16 + q))
        e("v_add_u32 v20, 64, v20")
        for q in range(3):
            e("v_add_u32 v%d, 12288, v%d" % (16 + q, 16 + q))
        e("s_add_u32 s51, s51, 12\ns_cmp_le_u32 s51, %d" % (P_W + 108))
        for q in range(3):
            r = 192 + 4 * q
            e("s_waitcnt lgkmcnt(%d)" % (4 - 2 * q))
            e("v_mfma_f32_16x16x32_bf16 v[%d:%d], v[%d:%d], v[232:235], v[%d:%d]" % (240 + 4 * q, 243 + 4 * q, r, r + 3, 240 + 4 * q, 243 + 4 * q))
        e("s_cbranch_scc1 %s" % L)
        e("""
s_mov_b32 exec_lo, 0x000f000f
s_mov_b32 exec_hi, 0x000f000f
s_nop 4
ds_write_b128 v21, v[240:243]
s_nop 0
ds_write_b128 v21, v[244:247] offset:64
s_nop 0
ds_write_b128 v21, v[248:251] offset:128
s_mov_b32 exec_lo, -1
s_mov_b32 exec_hi, 0xffff
ds_read_b128 v[240:243], v22
s_waitcnt lgkmcnt(0)
buffer_store_dwordx4 v[240:243], v19, s[40:43], s44 offen sc1
""")
        self.stamp(6)
        e("s_branch L_cs_end")
        self.label("L_cs_red")
        e("""
s_lshl_b32 s44, s30, 3
s_add_u32 s44, s44, s31
s_lshl_b32 s45, s36, 6
s_add_u32 s44, s44, s45
s_cmp_ge_u32 s44, 72
s_cbranch_scc1 L_cs_end
s_lshl_b32 s54, s44, 6
v_and_b32 v17, 7, v0
v_lshlrev_b32 v42, 3, v17
buffer_load_dwordx2 v[40:41], v42, s[60:63], s54 offen
v_lshrrev_b32 v16, 3, v0
v_mul_u32_u24 v16, %d, v16
v_lshl_add_u32 v16, v17, 4, v16
s_lshl_b32 s44, s44, 7
s_add_u32 s44, s44, %d
s_add_u32 s45, s44, %d
s_add_u32 s46, s45, %d
s_add_u32 s47, s46, %d
s_mov_b32 s57, %s
""" % (PART_ROW, WS_PART, 8 * PART_ROW, 8 * PART_ROW, 8 * PART_ROW, f32(-LOG2E)))
        self.stamp(8)
        loads = ["buffer_load_dwordx4 v[48:51], v16, s[40:43], s44 offen sc1", "buffer_load_dwordx4 v[52:55], v16, s[40:43], s45 offen sc1",
                 "buffer_load_dwordx4 v[64:67], v16, s[40:43], s46 offen sc1", "buffer_load_dwordx4 v[68:71], v16, s[40:43], s47 offen sc1"]
        self.gather(loads, list(range(48, 56)) + list(range(64, 72)), 56, sleep=self.tsleep, idle_sleep=self.isleep)
        self.stamp(5)
        self.rawstamp(7, "s59")
        e("s_mov_b32 s60, s22\ns_mov_b32 s61, s23")
        vals = [48, 49, 50, 51, 64, 65, 66, 67]
        for v in vals:
            e("v_add_f32 v%d, v%d, v%d" % (v, v, v + 4))
        for v in vals:
            e("v_add_f32_dpp v%d, v%d, v%d row_ror:8 row_mask:0xf bank_mask:0xf" % (v, v, v))
        for sw in ("v_permlane16_swap_b32", "v_permlane32_swap_b32"):
            for i, v in enumerate(vals):
                e("v_mov_b32 v%d, v%d" % (72 + i, v))
            for i, v in enumerate(vals):
                e("%s v%d, v%d" % (sw, v, 72 + i))
            for i, v in enumerate(vals):
                e("v_add_f32 v%d, v%d, v%d" % (v, v, 72 + i))
        e("""
v_cvt_pk_bf16_f32 v54, v64, v65
v_cvt_pk_bf16_f32 v55, v66, v67
v_cvt_pk_bf16_f32 v52, v48, v49
v_cvt_pk_bf16_f32 v53, v50, v51
v_lshlrev_b32 v64, 16, v54
v_and_b32 v65, s56, v54
v_lshlrev_b32 v66, 16, v55
v_and_b32 v67, s56, v55
""")
        for k in range(4):
            e("v_mul_f32 v%d, s57, v%d" % (56 + k, 64 + k))
        for k in range(4):
            e("v_exp_f32 v%d, v%d" % (56 + k, 56 + k))
        e("""
v_lshlrev_b32 v48, 16, v52
v_and_b32 v49, s56, v52
v_lshlrev_b32 v50, 16, v53
v_and_b32 v51, s56, v53
""")
        for k in range(4):
            e("v_add_f32 v%d, 1.0, v%d" % (56 + k, 56 + k))
        for k in range(4):
            e("v_rcp_f32 v%d, v%d" % (56 + k, 56 + k))
        e("""
v_lshlrev_b32 v60, 16, v40
v_and_b32 v61, s56, v40
v_lshlrev_b32 v62, 16, v41
v_and_b32 v63, s56, v41
""")
        for k in range(4):
            e("v_mul_f32 v%d, v%d, v%d" % (56 + k, 56 + k, 64 + k))
        e("""
v_cvt_pk_bf16_f32 v54, v56, v57
v_cvt_pk_bf16_f32 v55, v58, v59
v_lshlrev_b32 v56, 16, v54
v_and_b32 v57, s56, v54
v_lshlrev_b32 v58, 16, v55
v_and_b32 v59, s56, v55
""")
        for k in range(4):
            e("v_mul_f32 v%d, v%d, v%d" % (48 + k, 48 + k, 56 + k))
        e("""
v_cvt_pk_bf16_f32 v52, v48, v49
v_cvt_pk_bf16_f32 v53, v50, v51
v_lshlrev_b32 v48, 16, v52
v_and_b32 v49, s56, v52
v_lshlrev_b32 v50, 16, v53
v_and_b32 v51, s56, v53
v_add_f32 v48, v48, v60
v_add_f32 v49, v49, v61
v_add_f32 v50, v50, v62
v_add_f32 v51, v51, v63
v_cvt_pk_bf16_f32 v52, v48, v49
v_cvt_pk_bf16_f32 v53, v50, v51
s_mov_b64 exec, 0xff
buffer_store_dwordx2 v[52:53], v42, s[60:63], s54 offen
""")
        self.stamp(6)
        self.label("L_cs_end")
        if self.stamps:
            e("s_waitcnt vmcnt(0)")
            self.stamp(9)
            e("s_cmp_lg_u32 s36, 0\ns_cbranch_scc1 L_end")
            self.flush_stamps([(0, 11), (1, 12), (2, 13), (3, 14), (4, 8), (5, 15), (7, 22), (8, 23), (6, 24), (9, 10)])
        self.label("L_end")
        e("s_endpgm")

    def build(self):
        hdr = open("cdna_kernels/%s.s.ref" % KN).read().split("\n")
        head = []
        for l in hdr:
            if l.startswith("; @launch"):
                break
            head.append(l)
        head.append("; @launch grid=(256,1,1) block=(384,1,1) lds=%d" % LDS_TOTAL)
        head += ['.amdgcn_target "amdgcn-amd-amdhsa--gfx950"', ".text", ".globl %s_kernel" % KN, ".p2align 8",
                 ".type %s_kernel,@function" % KN, "%s_kernel:" % KN]
        self.prologue()
        self.loader()
        self.comm()
        self.cons()
        tail = """.section .rodata,"a"
.p2align 6
.amdhsa_kernel %s_kernel
  .amdhsa_next_free_vgpr 256
  .amdhsa_next_free_sgpr 102
  .amdhsa_accum_offset 256
  .amdhsa_group_segment_fixed_size 0
  .amdhsa_kernarg_size 96
  .amdhsa_user_sgpr_count 2
  .amdhsa_user_sgpr_kernarg_segment_ptr 1
  .amdhsa_system_sgpr_workgroup_id_x 1
.end_amdhsa_kernel
""" % KN
        return "\n".join(head + self.o) + "\n" + tail


if __name__ == "__main__":
    import argparse
    ap = argparse.ArgumentParser()
    ap.add_argument("out")
    ap.add_argument("--stamps", action="store_true")
    ap.add_argument("--W", type=int, default=20)
    ap.add_argument("--nont", action="store_true")
    ap.add_argument("--tsleep", type=int, default=1)
    ap.add_argument("--csleep", type=int, default=0)
    ap.add_argument("--abl", type=str, default="")
    ap.add_argument("--gearly", type=int, default=0)
    ap.add_argument("--isleep", type=int, default=12)
    ap.add_argument("--wsoff", type=lambda x: int(x, 0), default=0)
    a = ap.parse_args()
    open(a.out, "w").write(Gen(W=a.W, stamps=a.stamps, nt=not a.nont, tsleep=a.tsleep, csleep=a.csleep, abl=a.abl.split(","), gearly=a.gearly, isleep=a.isleep, wsoff=a.wsoff).build())
```

```python
import sys, struct

KN = "recurrent_scan__sliding_block_cached__geglu_ffn__decode"

RING_KB = 148
RING_BYTES = RING_KB * 1024
AUX = RING_BYTES
XN = AUX
XN_STRIDE = 1216
H_STRIDE = 576
QL = AUX + 4864
OW = AUX + 5376
FULL = AUX + 9472
FREE = AUX + 9728
STW = AUX + 9744
SC = AUX + 9808
CNT_STAT = AUX + 9840
CNT_O = AUX + 9844
FLAG_Q = AUX + 9848
FLAG_H = AUX + 9852
FLAG_SC = AUX + 9856
CNT_P = AUX + 9860
CNT_C = AUX + 9864
FLAG_CLR = AUX + 9868
OB = AUX + 9984
LDS_TOTAL = AUX + 9984 + 2048

WS_C = 0
C_STRIDE = 26624
WS_ST = 0x1A000
WS_OP = 0x1E000
WS_PART = 0x5E000
PART_ROW = 9216
WS_SIZE = 0x5E000 + 32 * 9216
RW = XN

P_K, P_V, P_W = 72, 200, 328

def f32(x):
    return "0x%08x" % struct.unpack("<I", struct.pack("<f", x))[0]

LOG2E = 1.4426950408889634


class Gen:
    def __init__(self, W=20, stamps=False, nt=True, spin=1 << 16, sleep=True, tsleep=1, csleep=0, abl=(), gearly=-16, isleep=12, wsoff=0, qpos=120, qposd=130, probe=True, Wlate=None, pipe=3):
        self.o = []
        self.n = 0
        self.W = W
        self.pipe = pipe
        self.Wlate = Wlate or W
        self.stamps = stamps
        self.nt = " nt" if nt else ""
        self.spin = spin
        self.sleep = sleep
        self.qpos = qpos
        self.qposd = qposd
        self.fgap = 32
        self.mbase = 4
        self.hpos = 190
        self.probe = probe
        self.gearly = gearly
        self.wsoff = wsoff
        self.isleep = isleep
        self.tsleep = tsleep
        self.abl = set(abl)
        self.csleep = csleep

    def e(self, s):
        for line in s.strip("\n").split("\n"):
            self.o.append(line if line.rstrip().endswith(":") and not line.startswith(" ") else "    " + line.strip())

    def lab(self, p="L"):
        self.n += 1
        return "%s_%d" % (p, self.n)

    def label(self, l):
        self.o.append(l + ":")

    def sreg(self, k):
        return 70 + 2 * k if k < 10 else 92 + 2 * (k - 10)

    def stamp(self, k):
        if self.stamps:
            self.e("s_memrealtime s[%d:%d]" % (self.sreg(k), self.sreg(k) + 1))

    def rawstamp(self, k, expr_reg):
        if self.stamps:
            self.e("s_sub_u32 s%d, %d, %s\ns_mov_b32 s%d, 0" % (self.sreg(k), self.spin, expr_reg, self.sreg(k) + 1))

    def flush_stamps(self, items, wave_off=False):
        if not self.stamps:
            return
        self.e("""
s_waitcnt lgkmcnt(0)
s_add_u32 s64, s26, 0x10000000
s_addc_u32 s65, s27, 0
s_mov_b32 s66, 0x100000
s_mov_b32 s67, 0x00020000
s_mul_i32 s68, s2, 512
s_mov_b64 exec, 1
""")
        if wave_off:
            self.e("s_lshl_b32 s64, s36, 6\ns_add_u32 s68, s68, s64\ns_add_u32 s64, s26, 0x10000000")
        for k, slot in items:
            self.e("""
v_mov_b32 v250, s%d
v_mov_b32 v251, s%d
v_mov_b32 v252, %d
buffer_store_dwordx2 v[250:251], v252, s[64:67], s68 offen
s_nop 1
""" % (self.sreg(k), self.sreg(k) + 1, slot * 8))

    def wait_lds(self, vaddr, sreg, thr, vtmp, cached=True, sleep=0):
        l = self.lab("Lw")
        d = self.lab("Ld")
        if cached:
            self.e("s_cmp_ge_i32 %s, %s\ns_cbranch_scc1 %s" % (sreg, thr, d))
        self.label(l)
        self.e("ds_read_b32 %s, %s\ns_waitcnt lgkmcnt(0)\nv_readfirstlane_b32 %s, %s" % (vtmp, vaddr, sreg, vtmp))
        self.e("s_cmp_ge_i32 %s, %s\ns_cbranch_scc1 %s" % (sreg, thr, d))
        sleep = sleep or self.csleep
        if sleep:
            self.e("s_sleep %d" % sleep)
        self.e("s_sub_i32 s69, s69, 1\ns_cmp_gt_i32 s69, 0\ns_cbranch_scc1 %s" % l)
        self.label(d)

    def prologue(self):
        self.e("""
s_cmp_ge_u32 s2, 256
s_cbranch_scc1 L_end
s_load_dwordx16 s[4:19], s[0:1], 0
s_load_dwordx8 s[20:27], s[0:1], 64
v_lshrrev_b32 v1, 6, v0
v_and_b32 v0, 63, v0
s_and_b32 s30, s2, 7
s_mov_b32 s69, 0x400000
v_readfirstlane_b32 s36, v1
s_lshr_b32 s31, s2, 3
s_lshr_b32 s32, s31, 4
s_lshl_b32 s33, s30, 1
s_add_u32 s32, s32, s33
s_lshr_b32 s34, s31, 2
s_and_b32 s34, s34, 3
s_and_b32 s35, s31, 3
s_lshl_b32 s33, s34, 4
s_add_u32 s33, s33, s32
s_cmp_eq_u32 s36, 1
s_cbranch_scc1 L_comm
s_cmp_lg_u32 s36, 0
s_cbranch_scc1 L_cons
""")

    def tile_ids(self):
        self.e("""
s_sub_u32 s38, s31, 8
s_cmp_ge_u32 s38, 9
s_cselect_b32 s37, 1, 0
s_cselect_b32 s39, 9, 0
s_sub_u32 s38, s38, s39
s_cmp_ge_u32 s31, 26
s_cbranch_scc0 %(l)s
s_sub_u32 s38, s31, 26
s_cmp_ge_u32 s38, 3
s_cselect_b32 s37, 17, 16
s_cselect_b32 s39, 3, 0
s_sub_u32 s38, s38, s39
%(l)s:
s_lshl_b32 s39, s30, 1
s_add_u32 s37, s37, s39
""" % dict(l=self.lab("Lt")))

    def loader(self):
        W = self.W
        nt = self.nt
        e = self.e
        self.stamp(0)
        e("s_setprio 3")
        e("""
v_lshrrev_b32 v8, 4, v0
v_and_b32 v9, 15, v0
v_lshlrev_b32 v10, 1, v8
v_xor_b32 v11, v9, v10
v_lshlrev_b32 v11, 4, v11
v_lshl_add_u32 v1, v8, 8, v11
v_xor_b32 v2, 0x80, v1
""")
        e("""
s_movk_i32 s41, 0x2400
s_cmp_lt_u32 s31, 8
s_cselect_b32 s40, 0x2000, s41
v_lshrrev_b32 v12, 3, v0
v_and_b32 v13, 7, v0
v_xor_b32 v13, v13, v10
v_lshlrev_b32 v13, 4, v13
v_mul_u32_u24 v20, 1152, v12
v_add_u32 v20, v20, v13
v_add_u32 v21, 8192, v20
v_add_u32 v22, 8192, v21
v_add_u32 v23, 8192, v22
v_mul_lo_u32 v12, v12, s40
v_add_u32 v3, v12, v13
s_lshl_b32 s41, s40, 3
s_sub_u32 s42, s41, 1024
v_add_u32 v4, s42, v3
v_add_u32 v5, s42, v4
v_add_u32 v6, s42, v5
s_lshl_b32 s41, s41, 2
""")
        for i in range(3):
            e("""
v_add_u32 v12, %d, v0
v_mul_u32_u24 v13, 2731, v12
v_lshrrev_b32 v13, 16, v13
v_mul_u32_u24 v14, 24, v13
v_sub_u32 v14, v12, v14
v_and_b32 v15, 6, v13
v_xor_b32 v14, v14, v15
v_mul_u32_u24 v13, 1152, v13
v_lshl_add_u32 v%d, v14, 4, v13
""" % (64 * i, 17 + i))
        e("""
v_mov_b32 v7, v17
v_add_u32 v8, 0xfffffc00, v18
v_add_u32 v9, 0xfffff800, v19
v_lshlrev_b32 v10, 2, v0
v_add_u32 v10, %d, v10
v_mov_b32 v11, %d
""" % (FULL, FREE))
        self.tile_ids()
        e("""
s_lshl_b32 s43, s30, 3
s_add_u32 s43, s43, s31
s_mul_i32 s44, s30, 9
s_add_u32 s44, s44, s31
s_sub_u32 s45, s44, 8
s_sub_u32 s44, s44, 17
s_cmp_lt_u32 s31, 17
s_cselect_b32 s44, s45, s44
s_cmp_lt_u32 s31, 8
s_cselect_b32 s43, s43, s44
s_lshl_b32 s51, s43, 7
s_lshl_b32 s46, s33, 21
s_add_u32 s46, s46, 0x180000
s_lshl_b32 s47, s35, 17
s_add_u32 s46, s46, s47
s_mov_b32 s63, 0x00020000
s_mov_b32 s55, 0
s_waitcnt lgkmcnt(0)
""")
        cur = [W]

        def run(pats, step_reg_or_imm, n_iter, check_free, label=None):
            n = len(pats)
            L = self.lab("Lrun")
            e("s_mov_b32 s52, %d" % n_iter)
            self.label(L)
            if check_free:
                ok = self.lab("Lok")
                sl = self.lab("Lsl")
                e("s_add_i32 s54, s53, %d\ns_cmp_le_i32 s54, s55\ns_cbranch_scc1 %s" % (n - RING_KB, ok))
                self.label(sl)
                e("""
ds_read_b128 v[12:15], v11
s_waitcnt lgkmcnt(0)
v_min_u32 v12, v12, v13
v_min3_u32 v12, v12, v14, v15
s_nop 0
v_readfirstlane_b32 s55, v12
s_cmp_le_i32 s54, s55
s_cbranch_scc1 %s
s_sub_i32 s69, s69, 1
s_cmp_gt_i32 s69, 0
s_cbranch_scc1 %s
""" % (ok, sl))
                self.label(ok)
            e("s_mov_b32 m0, s50")
            e("s_add_u32 s50, s50, %d" % (n * 1024))
            for i, p in enumerate(pats):
                off = " offset:%d" % (i * 1024) if i else ""
                e("buffer_load_dwordx4 v%d, s[60:63], s51 offen%s%s lds" % (p, off, nt))
            e("s_add_u32 s51, s51, %s" % step_reg_or_imm)
            e("s_cmp_eq_u32 s50, %d\ns_cselect_b32 s50, 0, s50" % RING_BYTES)
            e("s_add_u32 s53, s53, %d" % n)
            e("s_waitcnt vmcnt(%d)" % cur[0])
            e("s_sub_u32 s54, s53, %d\nv_mov_b32 v16, s54\nds_write_b32 v10, v16" % cur[0])
            e("s_sub_u32 s52, s52, 1\ns_cmp_lg_u32 s52, 0\ns_cbranch_scc1 %s" % L)

        def stream(W, sfx):
            cur[0] = W
            o0 = len(self.o)
            e("""
s_cmp_ge_u32 s31, 26
s_cbranch_scc1 L_ld_nocol
s_cmp_lt_u32 s31, 17
s_cselect_b32 s60, s16, s18
s_cselect_b32 s61, s17, s19
s_cmp_lt_u32 s31, 8
s_cselect_b32 s60, s10, s60
s_cselect_b32 s61, s11, s61
s_mul_i32 s62, s40, 576
s_mov_b32 s50, 4096
s_mov_b32 s53, 4
s_mov_b32 m0, 0
s_nop 0
""")
            for i, p in enumerate([3, 4, 5, 6]):
                off = " offset:%d" % (i * 1024) if i else ""
                e("buffer_load_dwordx4 v%d, s[60:63], s51 offen%s%s lds" % (p, off, nt))
            e("s_add_u32 s51, s51, s41")
            e("s_barrier")
            run([3, 4, 5, 6], "s41", 17, False)
            e("s_branch L_ld_k")
            self.label("L_ld_nocol")
            e("s_mov_b32 s50, %d\ns_mov_b32 s53, %d\ns_barrier" % (P_K * 1024, P_K))
            self.label("L_ld_k")
            self.stamp(1)
            e("s_mov_b32 s60, s6\ns_mov_b32 s61, s7\ns_mov_b32 s62, 0x8000000\ns_mov_b32 s51, s46")
            if "fine" in self.abl:
                for q in range(4):
                    run([1, 2, 1, 2], "4096", 8, True)
                    self.stamp(4 + q)
                e("s_mov_b32 s60, s8\ns_mov_b32 s61, s9\ns_mov_b32 s51, s46")
                for q in range(4):
                    run([1, 2, 1, 2], "4096", 8, True)
                    if q < 3:
                        self.stamp(8 + q)
            else:
                run([1, 2, 1, 2], "4096", 32, True)
                e("s_mov_b32 s60, s8\ns_mov_b32 s61, s9\ns_mov_b32 s51, s46")
                run([1, 2, 1, 2], "4096", 32, True)
            self.stamp(2)
            e("""
s_cmp_ge_u32 s31, 26
s_cbranch_scc1 L_ld_down
s_cmp_lt_u32 s31, 8
s_cbranch_scc1 L_ld_drain
s_mov_b32 s60, s12
s_mov_b32 s61, s13
s_mov_b32 s62, %d
s_mul_i32 s51, s37, 294912
s_lshl_b32 s54, s38, 7
s_add_u32 s51, s51, s54
""" % (4096 * 1152))
            run([20, 21, 22, 23], "36864", 8, True)
            e("s_branch L_ld_drain")
            self.label("L_ld_down")
            e("""
s_mov_b32 s60, s20
s_mov_b32 s61, s21
s_mov_b32 s62, %d
s_sub_u32 s51, s37, 16
s_mul_i32 s51, s51, 331776
s_mul_i32 s54, s38, 384
s_add_u32 s51, s51, s54
""" % (4608 * 1152))
            run([7, 8, 9], "9216", 36, True)
            self.label("L_ld_drain")
            for w in (24, 20, 16, 12, 8, 4, 0):
                if w < W:
                    e("s_waitcnt vmcnt(%d)\ns_sub_u32 s54, s53, %d\nv_mov_b32 v16, s54\nds_write_b32 v10, v16" % (w, w))
            self.stamp(3)
            self.flush_stamps([(0, 0), (1, 1), (2, 2), (3, 3)] + ([(4 + q, 25 + q) for q in range(7)] if "fine" in self.abl else []))
            e("s_endpgm")
            for i in range(o0, len(self.o)):
                self.o[i] = self.o[i].replace("L_ld_", "L_ld%s_" % sfx)

        if self.Wlate != self.W:
            e("s_cmp_ge_u32 s30, 4\ns_cbranch_scc1 L_late")
            stream(self.W, "a")
            self.label("L_late")
            stream(self.Wlate, "b")
        else:
            stream(self.W, "a")

    def gather(self, loads, regs, vt, strycnt="s59", sleep=8, preissued=False, idle_sleep=0):
        e = self.e
        L = self.lab("Lg")
        D = self.lab("Lgd")
        P = self.lab("Lgp")
        n = len(loads)
        per = len(regs) // n
        assert n <= 6
        masks = [(self.mbase + 2 * k) for k in range(n)]
        e("s_mov_b32 %s, %d\ns_mov_b64 s[90:91], exec" % (strycnt, self.spin))
        if not preissued:
            for l in loads:
                e(l)
        e("s_branch %s" % P)
        self.label(L)
        for k, l in enumerate(loads):
            if n > 1:
                S = self.lab("Lgs")
                e("s_mov_b64 exec, s[%d:%d]\ns_cbranch_execz %s" % (masks[k], masks[k] + 1, S))
                e(l)
                self.label(S)
            else:
                e("s_mov_b64 exec, vcc")
                e(l)
        e("s_mov_b64 exec, s[90:91]")
        self.label(P)
        e("s_waitcnt vmcnt(0)")
        for k in range(n):
            rs = list(regs[k * per:(k + 1) * per])
            if len(rs) == 2:
                e("v_max_u32 v%d, v%d, v%d" % (vt + k, rs[0], rs[1]))
            else:
                e("v_max3_u32 v%d, v%d, v%d, v%d\nv_max_u32 v%d, v%d, v%d" % (vt + k, rs[0], rs[1], rs[2], vt + k, vt + k, rs[3]))
        if n == 1:
            e("v_cmp_eq_u32 vcc, -1, v%d" % vt)
        else:
            rs = [vt + k for k in range(n)]
            t = vt + n
            e("v_max_u32 v%d, v%d, v%d" % (t, rs[0], rs[1]))
            rs = rs[2:]
            while rs:
                if len(rs) >= 2:
                    e("v_max3_u32 v%d, v%d, v%d, v%d" % (t, t, rs[0], rs[1]))
                    rs = rs[2:]
                else:
                    e("v_max_u32 v%d, v%d, v%d" % (t, t, rs[0]))
                    rs = []
            e("v_cmp_eq_u32 vcc, -1, v%d" % t)
        e("s_cbranch_vccz %s" % D)
        if n > 1:
            for k in range(n):
                e("v_cmp_eq_u32 s[%d:%d], -1, v%d" % (masks[k], masks[k] + 1, vt + k))
        if idle_sleep:
            Z = self.lab("Lgz")
            e("s_and_b64 s[%d:%d], s[%d:%d], s[%d:%d]" % (self.mbase + 12, self.mbase + 13, masks[0], masks[0] + 1, masks[1], masks[1] + 1))
            e("s_cmp_lg_u64 s[%d:%d], s[90:91]\ns_cbranch_scc1 %s\ns_sleep %d" % (self.mbase + 12, self.mbase + 13, Z, idle_sleep))
            self.label(Z)
        if sleep:
            e("s_sleep %d" % sleep)
        e("s_sub_u32 %s, %s, 1\ns_cmp_lg_u32 %s, 0\ns_cbranch_scc1 %s" % (strycnt, strycnt, strycnt, L))
        self.label(D)

    def gather_pipe(self, loads, regs, vt, depth=3, gap=2, preissued=0):
        e = self.e
        L = self.lab("Lgq")
        D = self.lab("Lgqd")
        n = len(loads)
        e("s_mov_b32 s59, %d\ns_mov_b64 s[90:91], exec" % self.spin)
        for r in range(depth - 1 - preissued):
            for l in loads:
                e(l)
            e("s_sleep %d" % gap)
        self.label(L)
        for l in loads:
            e(l)
        e("s_mov_b64 exec, s[90:91]")
        e("s_waitcnt vmcnt(%d)" % (n * (depth - 1)))
        rs = list(regs)
        e("v_max3_u32 v%d, v%d, v%d, v%d" % (vt, rs[0], rs[1], rs[2]))
        e("v_max3_u32 v%d, v%d, v%d, v%d" % (vt + 1, rs[3], rs[4], rs[5]))
        rs = rs[6:]
        i = 0
        while rs:
            e("v_max3_u32 v%d, v%d, v%d, v%d" % (vt + i, vt + i, rs[0], rs[1]))
            rs = rs[2:]
            i ^= 1
        e("v_max_u32 v%d, v%d, v%d" % (vt, vt, vt + 1))
        e("v_cmp_eq_u32 vcc, -1, v%d" % vt)
        e("s_cbranch_vccz %s" % D)
        e("s_mov_b64 exec, vcc")
        e("s_sub_u32 s59, s59, 1\ns_cmp_lg_u32 s59, 0\ns_cbranch_scc1 %s" % L)
        e("s_mov_b64 exec, s[90:91]")
        self.label(D)

    def ws_srd(self):
        if self.wsoff:
            self.e("s_add_u32 s40, s26, %d\ns_addc_u32 s41, s27, 0" % self.wsoff)
        else:
            self.e("s_mov_b32 s40, s26\ns_mov_b32 s41, s27")
        self.e("s_mov_b32 s42, %d\ns_mov_b32 s43, 0x00020000" % WS_SIZE)

    def set_flag(self, addr, vt0, vt1):
        self.e("s_mov_b64 exec, 1\nv_mov_b32 v%d, %d\nv_mov_b32 v%d, 1\nds_write_b32 v%d, v%d\ns_mov_b64 exec, -1" % (vt0, addr, vt1, vt0, vt1))

    def comm(self):
        e = self.e
        self.label("L_comm")
        e("""
v_lshlrev_b32 v1, 3, v0
v_add_u32 v1, %d, v1
v_mov_b32 v2, 0
v_mov_b32 v3, 0
ds_write_b64 v1, v[2:3]
v_mov_b32 v4, -1
v_mov_b32 v5, -1
v_mov_b32 v6, -1
v_mov_b32 v7, -1
v_lshlrev_b32 v8, 4, v0
""" % FULL)
        self.tile_ids()
        self.ct_id()
        e("""
s_lshl_b32 s45, s33, 2
s_add_u32 s45, s45, s35
v_lshrrev_b32 v9, 3, v0
v_mul_u32_u24 v9, %d, v9
v_and_b32 v10, 7, v0
v_lshl_add_u32 v9, v10, 4, v9
v_lshrrev_b32 v13, 4, v0
v_mul_u32_u24 v13, 2304, v13
v_and_b32 v10, 15, v0
v_lshl_add_u32 v13, v10, 4, v13
s_waitcnt lgkmcnt(0)
s_barrier
""" % C_STRIDE)
        if "tlb" in self.abl:
            self.tlb_warm()
        if "nocomm" in self.abl:
            e("s_waitcnt lgkmcnt(0)")
            self.set_flag(FLAG_CLR, 21, 22)
            self.set_flag(FLAG_Q, 21, 22)
            self.set_flag(FLAG_H, 21, 22)
            self.set_flag(FLAG_SC, 21, 22)
            e("s_endpgm")
        self.ws_srd()
        if "clrlate" in self.abl:
            e("s_cmp_ge_u32 s31, 26\ns_cselect_b32 s47, %d, 40\nv_mov_b32 v15, %d" % (P_K + 40, FULL))
            self.wait_lds("v15", "s46", "s47", "v14", cached=False, sleep=4)
        o0 = len(self.o)
        e("""
s_mov_b32 s48, s24
s_mov_b32 s49, s25
s_mov_b32 s50, 256
s_mov_b32 s51, 0x00020000
s_lshl_b32 s46, s45, 10
s_add_u32 s46, s46, %d
buffer_store_dwordx4 v[4:7], v8, s[40:43], s46 offen sc1
s_lshl_b32 s47, s45, 6
s_add_u32 s47, s47, %d
s_mov_b64 exec, 15
buffer_store_dwordx4 v[4:7], v8, s[40:43], s47 offen sc1
s_mov_b64 exec, -1
s_mul_i32 s52, s37, %d
s_add_u32 s52, s52, %d
s_cmp_ge_u32 s31, 26
s_cbranch_scc1 L_cm_dn
s_lshl_b32 s46, s44, 7
s_mov_b32 exec_hi, 0
buffer_store_dwordx4 v[4:7], v9, s[40:43], s46 offen sc1
s_mov_b32 exec_hi, -1
s_cmp_lt_u32 s31, 8
s_cbranch_scc1 L_cm_nop
s_lshl_b32 s46, s38, 8
s_add_u32 s46, s46, s52
buffer_store_dwordx4 v[4:7], v13, s[40:43], s46 offen sc1
s_branch L_cm_nop
L_cm_dn:
s_mul_i32 s46, s38, 768
s_add_u32 s46, s46, s52
buffer_store_dwordx4 v[4:7], v13, s[40:43], s46 offen sc1
buffer_store_dwordx4 v[4:7], v13, s[40:43], s46 offen offset:256 sc1
buffer_store_dwordx4 v[4:7], v13, s[40:43], s46 offen offset:512 sc1
L_cm_nop:
""" % (WS_OP, WS_ST, PART_ROW, WS_PART))
        if "clr1" in self.abl or "clr0" in self.abl:
            for i in range(o0, len(self.o)):
                if "buffer_store" in self.o[i] and ("s47 offen" not in self.o[i] or "clr0" in self.abl):
                    self.o[i] = "    s_nop 0"
        e("""
s_and_b32 s46, s2, 3
s_lshl_b32 s46, s46, 3
s_lshl_b32 s46, 1, s46
v_mov_b32 v10, s46
s_and_b32 s46, s2, 0xfc
v_mov_b32 v11, 0
v_lshlrev_b32 v12, 2, v0
s_waitcnt vmcnt(0)
s_mov_b64 exec, 1
%s
s_mov_b64 exec, -1
""" % ("s_nop 0" if "noat" in self.abl else "buffer_atomic_add v10, v11, s[48:51], s46 offen sc1"))
        self.set_flag(FLAG_CLR, 21, 22)
        self.stamp(7)
        if "comm_clr" in self.abl:
            self.set_flag(FLAG_Q, 21, 22)
            self.set_flag(FLAG_H, 21, 22)
            self.set_flag(FLAG_SC, 21, 22)
            e("s_endpgm")
        e("s_mov_b32 s47, %d\ns_cmp_ge_u32 s31, 26\ns_cselect_b32 s47, %d, s47\nv_mov_b32 v15, %d" % (self.qpos - self.fgap, P_K + self.qposd - self.fgap, FULL))
        self.wait_lds("v15", "s46", "s47", "v14", cached=False, sleep=4)
        self.stamp(8)
        L = self.lab("Lfl")
        D = self.lab("Lfld")
        e("s_mov_b32 s59, %d\ns_mov_b32 s46, 0x01010101" % self.spin)
        self.label(L)
        e("""
buffer_load_dword v14, v12, s[48:51], 0 offen sc1
s_waitcnt vmcnt(0)
v_cmp_ne_u32 vcc, s46, v14
s_cbranch_vccz %s
s_sleep 16
s_sub_u32 s59, s59, 1
s_cmp_lg_u32 s59, 0
s_cbranch_scc1 %s
""" % (D, L))
        self.label(D)
        self.stamp(0)
        self.rawstamp(9, "s59")
        if "comm_fl" in self.abl:
            self.set_flag(FLAG_Q, 21, 22)
            self.set_flag(FLAG_H, 21, 22)
            self.set_flag(FLAG_SC, 21, 22)
            e("s_endpgm")
        e("s_add_u32 s47, s47, %d" % self.fgap)
        self.wait_lds("v15", "s46", "s47", "v14", cached=False, sleep=4)
        e("""
s_mul_i32 s46, s34, %d
s_lshl_b32 s47, s32, 9
s_add_u32 s46, s46, s47
s_mov_b32 exec_hi, 0
""" % C_STRIDE)
        self.gather(["buffer_load_dwordx4 v[16:19], v8, s[40:43], s46 offen sc1"], [16, 17, 18, 19], 20)
        e("v_add_u32 v21, %d, v8\nds_write_b128 v21, v[16:19]\ns_waitcnt lgkmcnt(0)" % QL)
        self.set_flag(FLAG_Q, 21, 22)
        self.stamp(1)
        self.rawstamp(10, "s59")
        if "comm_q" in self.abl:
            self.set_flag(FLAG_H, 21, 22)
            self.set_flag(FLAG_SC, 21, 22)
            e("s_endpgm")
        e("s_cmp_lt_u32 s31, 26\ns_cbranch_scc1 L_cm_noh")
        for i in range(3):
            e("""
v_add_u32 v16, %d, v0
v_mul_u32_u24 v17, 1821, v16
v_lshrrev_b32 v17, 16, v17
v_mul_u32_u24 v18, 36, v17
v_sub_u32 v18, v16, v18
v_mul_u32_u24 v19, %d, v17
v_lshl_add_u32 v%d, v18, 4, v19
v_mul_u32_u24 v19, %d, v17
v_lshrrev_b32 v20, 2, v18
v_lshl_add_u32 v19, v20, 6, v19
v_and_b32 v20, 1, v18
v_lshl_add_u32 v19, v20, 5, v19
v_bfe_u32 v20, v18, 1, 1
v_lshl_add_u32 v19, v20, 3, v19
v_add_u32 v%d, %d, v19
""" % (64 * i, C_STRIDE, 24 + i, H_STRIDE, 27 + i, XN))
        e("""
v_cmp_gt_u32 vcc, 16, v0
s_nop 1
v_cndmask_b32 v26, v24, v26, vcc
v_cndmask_b32 v29, v27, v29, vcc
s_sub_u32 s46, s37, 16
s_mul_i32 s46, s46, 576
s_add_u32 s47, s46, %d
s_add_u32 s46, s46, %d
""" % (8704 * 2, 4096 * 2))
        self.wait_lds("v15", "s48", str(P_K + self.hpos), "v14", cached=False, sleep=4)
        loads = []
        for i in range(3):
            loads.append("buffer_load_dwordx4 v[%d:%d], v%d, s[40:43], s46 offen sc1" % (48 + 4 * i, 51 + 4 * i, 24 + i))
            loads.append("buffer_load_dwordx4 v[%d:%d], v%d, s[40:43], s47 offen sc1" % (60 + 4 * i, 63 + 4 * i, 24 + i))
        self.gather(loads, [r for i in range(3) for r in list(range(48 + 4 * i, 52 + 4 * i)) + list(range(60 + 4 * i, 64 + 4 * i))], 72)
        c0 = -2.0 * LOG2E * 0.7978845608028654
        e("s_mov_b32 s46, %s\ns_mov_b32 s47, %s\ns_mov_b32 s56, 0xffff0000" % (f32(c0), f32(c0 * 0.044715)))
        e("v_mov_b32 v20, s46")
        for r in range(12):
            g = 48 + r
            u = 60 + r
            e("""
v_lshlrev_b32 v16, 16, v%(g)d
v_and_b32 v17, s56, v%(g)d
v_mul_f32 v18, v16, v16
v_mul_f32 v19, v17, v17
v_fma_f32 v18, v18, s47, v20
v_fma_f32 v19, v19, s47, v20
v_mul_f32 v18, v18, v16
v_mul_f32 v19, v19, v17
v_exp_f32 v18, v18
v_exp_f32 v19, v19
s_nop 0
v_add_f32 v18, 1.0, v18
v_add_f32 v19, 1.0, v19
v_rcp_f32 v18, v18
v_rcp_f32 v19, v19
s_nop 0
v_mul_f32 v18, v18, v16
v_mul_f32 v19, v19, v17
v_cvt_pk_bf16_f32 v18, v18, v19
v_lshlrev_b32 v16, 16, v%(u)d
v_and_b32 v17, s56, v%(u)d
v_and_b32 v19, s56, v18
v_lshlrev_b32 v18, 16, v18
v_mul_f32 v18, v18, v16
v_mul_f32 v19, v19, v17
v_cvt_pk_bf16_f32 v%(g)d, v18, v19
""" % dict(g=g, u=u))
        for i in range(3):
            e("ds_write2_b64 v%d, v[%d:%d], v[%d:%d] offset0:0 offset1:2" % (27 + i, 48 + 4 * i, 49 + 4 * i, 50 + 4 * i, 51 + 4 * i))
        e("s_waitcnt lgkmcnt(0)")
        self.set_flag(FLAG_H, 21, 22)
        self.label("L_cm_noh")
        e("v_mov_b32 v16, %d" % CNT_STAT)
        self.wait_lds("v16", "s46", "4", "v17", cached=False, sleep=2)
        self.stamp(2)
        e("""
v_and_b32 v16, 7, v0
v_lshlrev_b32 v16, 3, v16
v_add_u32 v17, %d, v16
ds_read_b64 v[18:19], v17
s_mov_b32 s56, %s
v_and_b32 v27, 1, v0
v_lshlrev_b32 v27, 4, v27
v_bfe_u32 v28, v0, 1, 2
v_lshl_add_u32 v27, v28, 2, v27
v_add_u32 v27, %d, v27
s_waitcnt lgkmcnt(0)
v_max_f32_dpp v20, v18, v18 row_ror:2 row_mask:0xf bank_mask:0xf
s_nop 1
v_max_f32_dpp v20, v20, v20 row_ror:4 row_mask:0xf bank_mask:0xf
v_sub_f32 v22, v18, v20
v_mul_f32 v22, s56, v22
v_exp_f32 v22, v22
s_nop 0
v_mul_f32 v21, v22, v19
ds_write_b32 v27, v22
s_nop 0
v_add_f32_dpp v21, v21, v21 row_ror:2 row_mask:0xf bank_mask:0xf
s_nop 1
v_add_f32_dpp v21, v21, v21 row_ror:4 row_mask:0xf bank_mask:0xf
s_lshl_b32 s47, s45, 6
s_add_u32 s47, s47, %d
s_mov_b64 exec, 0xff
buffer_store_dwordx2 v[20:21], v16, s[40:43], s47 offen sc1
s_mov_b64 exec, -1
s_waitcnt lgkmcnt(0)
""" % (STW, f32(LOG2E), SC, WS_ST))
        self.set_flag(FLAG_SC, 23, 24)
        self.stamp(3)
        self.flush_stamps([(0, 4), (1, 5), (2, 6), (3, 7), (7, 16), (8, 17), (9, 18), (10, 19)])
        e("s_endpgm")

    def tlb_warm(self):
        e = self.e
        e("""
s_lshl_b32 s52, s33, 21
s_add_u32 s52, s52, 0x180000
s_lshl_b32 s53, s35, 17
s_add_u32 s52, s52, s53
s_load_dword s78, s[6:7], s52
s_load_dword s78, s[8:9], s52
s_cmp_ge_u32 s31, 26
s_cbranch_scc1 L_tw_dn
s_cmp_lt_u32 s31, 17
s_cselect_b32 s60, s16, s18
s_cselect_b32 s61, s17, s19
s_cmp_lt_u32 s31, 8
s_cselect_b32 s60, s10, s60
s_cselect_b32 s61, s11, s61
s_mov_b32 s53, 0x180000
s_load_dword s78, s[60:61], s53
s_mov_b32 s53, 0x300000
s_load_dword s78, s[60:61], s53
s_mov_b32 s53, 0x47ff00
s_load_dword s78, s[60:61], s53
s_cbranch_scc1 L_tw_end
s_mul_i32 s53, s37, 294912
s_load_dword s78, s[12:13], s53
s_add_u32 s53, s53, 294000
s_load_dword s78, s[12:13], s53
s_branch L_tw_end
L_tw_dn:
s_sub_u32 s53, s37, 16
s_mul_i32 s53, s53, 331776
s_load_dword s78, s[20:21], s53
s_add_u32 s53, s53, 331000
s_load_dword s78, s[20:21], s53
L_tw_end:
""")

    def ct_id(self):
        self.e("""
s_lshl_b32 s44, s30, 3
s_add_u32 s44, s44, s31
s_mul_i32 s46, s30, 9
s_add_u32 s46, s46, s31
s_add_u32 s47, s46, 56
s_add_u32 s46, s46, 119
s_cmp_lt_u32 s31, 17
s_cselect_b32 s46, s47, s46
s_cmp_lt_u32 s31, 8
s_cselect_b32 s44, s44, s46
""")

    def free_write(self, sval):
        self.e("s_mov_b64 exec, 1\nv_mov_b32 v4, %s\nds_write_b32 v3, v4\ns_mov_b64 exec, -1" % sval)

    def cons(self):
        e = self.e
        self.label("L_cons")
        if self.stamps:
            for k in range(15):
                e("s_mov_b64 s[%d:%d], 0" % (self.sreg(k), self.sreg(k) + 1))
        e("""
s_sub_u32 s36, s36, 2
v_mov_b32 v2, %d
s_lshl_b32 s44, s36, 2
s_add_u32 s44, s44, %d
v_mov_b32 v3, s44
s_mov_b32 s50, 0
v_and_b32 v8, 15, v0
v_lshrrev_b32 v9, 4, v0
v_lshrrev_b32 v10, 2, v0
v_and_b32 v11, 3, v0
s_mov_b32 s56, 0xffff0000
v_mul_u32_u24 v12, 1152, v9
v_lshl_add_u32 v12, v8, 4, v12
v_mov_b32 v13, 0x40000000
v_cmp_gt_u32 vcc, 8, v8
v_bfe_u32 v7, v0, 3, 2
v_lshlrev_b32 v7, 5, v7
v_cndmask_b32 v13, v13, v12, vcc
v_lshl_add_u32 v7, v10, 7, v7
v_lshl_add_u32 v7, v11, 3, v7
s_waitcnt lgkmcnt(0)
s_mov_b32 s60, s4
s_mov_b32 s61, s5
s_mov_b32 s62, 4608
s_mov_b32 s63, 0x00020000
""" % (FULL, FREE))
        self.ws_srd()
        if "nocons" in self.abl:
            e("s_barrier")
            self.free_write("0x10000")
            e("s_endpgm")
        e("""
s_cmp_ge_u32 s31, 26
s_cbranch_scc1 L_cs_nocol
""")
        if "nox" not in self.abl:
            e("""
buffer_load_dwordx4 v[32:35], v12, s[60:63], 0 offen
buffer_load_dwordx4 v[36:39], v12, s[60:63], 0 offen offset:256
buffer_load_dwordx4 v[40:43], v12, s[60:63], 0 offen offset:512
buffer_load_dwordx4 v[44:47], v12, s[60:63], 0 offen offset:768
buffer_load_dwordx4 v[48:51], v13, s[60:63], 0 offen offset:1024
""")
        e("s_barrier")
        e("""
v_mul_u32_u24 v14, %d, v9
v_lshrrev_b32 v15, 2, v8
v_lshl_add_u32 v14, v15, 6, v14
v_and_b32 v15, 1, v8
v_lshl_add_u32 v14, v15, 5, v14
v_bfe_u32 v15, v8, 1, 1
v_lshl_add_u32 v14, v15, 3, v14
v_add_u32 v14, %d, v14
s_lshl_b32 s44, s36, 5
v_xor_b32 v15, s44, v7
v_mul_u32_u24 v16, %d, v11
v_lshl_add_u32 v16, v9, 4, v16
v_add_u32 v16, %d, v16
s_waitcnt vmcnt(0)
""" % (XN_STRIDE, XN, XN_STRIDE, XN))
        for k in range(20):
            e("v_lshlrev_b32 v%d, 16, v%d\nv_and_b32 v%d, s56, v%d" % (64 + 2 * k, 32 + k, 65 + 2 * k, 32 + k))
        e("v_add_f32 v52, v64, v65\nv_add_f32 v53, v66, v67")
        for k in range(2, 20):
            e("v_add_f32 v52, v52, v%d\nv_add_f32 v53, v53, v%d" % (64 + 2 * k, 65 + 2 * k))
        e("v_add_f32 v52, v52, v53")
        for ror in (8, 4, 2, 1):
            e("s_nop 1\nv_add_f32_dpp v52, v52, v52 row_ror:%d row_mask:0xf bank_mask:0xf" % ror)
        e("v_mul_f32 v52, %s, v52" % f32(1.0 / 576))
        e("v_cndmask_b32 v55, 0, v52, vcc")
        e("v_mov_b32 v53, 0\nv_mov_b32 v54, 0")
        for k in range(20):
            m = 55 if k >= 16 else 52
            e("v_sub_f32 v56, v%d, v%d\nv_sub_f32 v57, v%d, v%d\nv_fmac_f32 v53, v56, v56\nv_fmac_f32 v54, v57, v57" % (64 + 2 * k, m, 65 + 2 * k, m))
        e("v_add_f32 v53, v53, v54")
        for ror in (8, 4, 2, 1):
            e("s_nop 1\nv_add_f32_dpp v53, v53, v53 row_ror:%d row_mask:0xf bank_mask:0xf" % ror)
        e("""
v_mul_f32 v53, %s, v53
v_cvt_pk_bf16_f32 v52, v52, v53
v_and_b32 v53, s56, v52
v_lshlrev_b32 v52, 16, v52
v_add_f32 v53, %s, v53
v_cvt_pk_bf16_f32 v53, v53, v53
v_and_b32 v53, s56, v53
v_sqrt_f32 v53, v53
s_nop 0
v_cvt_pk_bf16_f32 v53, v53, v53
v_and_b32 v53, s56, v53
v_rcp_f32 v54, v53
""" % (f32(1.0 / 576), f32(1e-5)))
        for k in range(20):
            a, b = 64 + 2 * k, 65 + 2 * k
            e("""
v_sub_f32 v%(a)d, v%(a)d, v52
v_sub_f32 v%(b)d, v%(b)d, v52
v_cvt_pk_bf16_f32 v56, v%(a)d, v%(b)d
v_lshlrev_b32 v%(a)d, 16, v56
v_and_b32 v%(b)d, s56, v56
v_mul_f32 v57, v%(a)d, v54
v_mul_f32 v58, v%(b)d, v54
v_fma_f32 v%(a)d, -v57, v53, v%(a)d
v_fma_f32 v%(b)d, -v58, v53, v%(b)d
v_fmac_f32 v57, v%(a)d, v54
v_fmac_f32 v58, v%(b)d, v54
v_cvt_pk_bf16_f32 v%(d)d, v57, v58
""" % dict(a=a, b=b, d=32 + k))
        for t in range(4):
            e("ds_write2_b64 v14, v[%d:%d], v[%d:%d] offset0:%d offset1:%d" % (32 + 4 * t, 33 + 4 * t, 34 + 4 * t, 35 + 4 * t, 32 * t, 32 * t + 2))
        e("s_mov_b64 exec, vcc\nds_write2_b64 v14, v[48:49], v[50:51] offset0:128 offset1:130\ns_mov_b64 exec, -1")
        e("v_mov_b32 v20, 0\nv_mov_b32 v21, 0\nv_mov_b32 v22, 0\nv_mov_b32 v23, 0\ns_mov_b32 s51, 4")
        self.stamp(0)
        L = self.lab("Lcol")
        self.label(L)
        self.wait_lds("v2", "s50", "s51", "v4")
        e("""
ds_read_b64_tr_b16 v[24:25], v15
ds_read_b64_tr_b16 v[26:27], v15 offset:2048
ds_read_b128 v[28:31], v16
v_add_u32 v15, 4096, v15
v_add_u32 v16, 64, v16
s_add_u32 s51, s51, 4
s_cmp_le_u32 s51, %d
s_waitcnt lgkmcnt(0)
v_mfma_f32_16x16x32_bf16 v[20:23], v[24:27], v[28:31], v[20:23]
s_cbranch_scc1 %s
""" % (P_K, L))
        self.ct_id()
        e("""
s_lshl_b32 s44, s44, 7
s_lshl_b32 s45, s36, 5
s_add_u32 s45, s45, %d
v_lshlrev_b32 v17, 7, v11
v_lshl_add_u32 v17, v9, 3, v17
v_add_u32 v17, s45, v17
v_mov_b32 v18, %d
v_mov_b32 v19, 1
v_cvt_pk_bf16_f32 v24, v20, v21
v_cvt_pk_bf16_f32 v25, v22, v23
s_mov_b32 exec_lo, 0x000f000f
s_mov_b32 exec_hi, 0x000f000f
ds_write_b64 v17, v[24:25]
s_mov_b64 exec, 1
ds_add_rtn_u32 v18, v18, v19
s_mov_b64 exec, -1
v_lshlrev_b32 v17, 4, v0
v_add_u32 v17, %d, v17
v_lshrrev_b32 v19, 3, v0
v_mul_u32_u24 v19, %d, v19
v_and_b32 v20, 7, v0
v_lshl_add_u32 v19, v20, 4, v19
s_waitcnt lgkmcnt(0)
v_readfirstlane_b32 s45, v18
s_cmp_lg_u32 s45, 3
s_cbranch_scc1 L_cs_k
ds_read_b128 v[24:27], v17
v_mov_b32 v18, %d
""" % (OB, CNT_C, OB, C_STRIDE, FLAG_CLR))
        self.wait_lds("v18", "s45", "1", "v4", cached=False)
        e("""
s_mov_b32 exec_hi, 0
%s
s_mov_b32 exec_hi, -1
s_branch L_cs_k
L_cs_nocol:
s_barrier
L_cs_k:
""" % ("s_nop 0" if "nocst" in self.abl else "buffer_store_dwordx4 v[24:27], v19, s[40:43], s44 offen sc1"))
        self.stamp(1)
        e("""
v_and_b32 v5, 7, v0
v_lshlrev_b32 v5, 1, v5
v_xor_b32 v5, v5, v9
v_lshlrev_b32 v5, 4, v5
v_lshl_add_u32 v5, v8, 8, v5
v_and_b32 v6, 7, v10
v_lshlrev_b32 v6, 5, v6
v_lshl_add_u32 v6, v10, 8, v6
v_lshl_add_u32 v6, v11, 3, v6
s_lshl_b32 s52, s36, 2
s_add_u32 s51, s52, %d
s_lshl_b32 s53, s51, 10
""" % P_K)
        self.free_write("s51")

        def advance():
            e("s_add_u32 s51, s51, 16\ns_add_u32 s53, s53, 16384\ns_sub_u32 s54, s53, %d\ns_cmp_ge_u32 s53, %d\ns_cselect_b32 s53, s54, s53" % (RING_BYTES, RING_BYTES))

        for i in range(8):
            e("s_add_u32 s55, s51, 4")
            self.wait_lds("v2", "s50", "s55", "v4")
            r = 128 + 16 * i
            e("""
v_add_u32 v12, s53, v5
v_xor_b32 v13, 64, v12
v_xor_b32 v14, 0x80, v12
v_xor_b32 v15, 0xc0, v12
ds_read_b128 v[%d:%d], v12
ds_read_b128 v[%d:%d], v13
ds_read_b128 v[%d:%d], v14
ds_read_b128 v[%d:%d], v15
""" % (r, r + 3, r + 4, r + 7, r + 8, r + 11, r + 12, r + 15))
            advance()
            if i & 1:
                e("s_waitcnt lgkmcnt(0)")
                self.free_write("s51")
        self.stamp(2)
        e("v_mov_b32 v12, %d" % FLAG_Q)
        self.wait_lds("v12", "s54", "1", "v4", cached=False)
        e("""
v_and_b32 v12, 1, v0
v_lshlrev_b32 v12, 8, v12
v_lshl_add_u32 v12, v9, 4, v12
v_add_u32 v12, %d, v12
ds_read_b128 v[32:35], v12
ds_read_b128 v[36:39], v12 offset:64
ds_read_b128 v[40:43], v12 offset:128
ds_read_b128 v[44:47], v12 offset:192
s_mov_b32 s57, %s
s_mov_b32 s58, %s
s_waitcnt lgkmcnt(0)
""" % (QL, f32(128 ** -0.5), f32(LOG2E)))
        for s in range(4):
            for i in range(8):
                c = "0" if s == 0 else "v[%d:%d]" % (48 + 4 * i, 51 + 4 * i)
                e("v_mfma_f32_16x16x32_bf16 v[%d:%d], v[%d:%d], v[%d:%d], %s" % (48 + 4 * i, 51 + 4 * i, 128 + 16 * i + 4 * s, 131 + 16 * i + 4 * s, 32 + 4 * s, 35 + 4 * s, c))
        e("s_nop 1")
        for k in range(16):
            a, b = 48 + 2 * k, 49 + 2 * k
            e("""
v_cvt_pk_bf16_f32 v12, v%(a)d, v%(b)d
v_lshlrev_b32 v%(a)d, 16, v12
v_and_b32 v%(b)d, s56, v12
v_mul_f32 v%(a)d, s57, v%(a)d
v_mul_f32 v%(b)d, s57, v%(b)d
v_cvt_pk_bf16_f32 v12, v%(a)d, v%(b)d
v_lshlrev_b32 v%(a)d, 16, v12
v_and_b32 v%(b)d, s56, v12
""" % dict(a=a, b=b))
        e("v_max3_f32 v12, v48, v49, v50")
        for k in range(51, 79, 2):
            e("v_max3_f32 v12, v12, v%d, v%d" % (k, k + 1))
        e("""
v_max_f32 v12, v12, v79
v_mov_b32 v13, v12
s_nop 1
v_permlane16_swap_b32 v12, v13
s_nop 0
v_max_f32 v12, v12, v13
v_mov_b32 v13, v12
s_nop 1
v_permlane32_swap_b32 v12, v13
s_nop 0
v_max_f32 v12, v12, v13
""")
        for k in range(32):
            e("v_sub_f32 v%d, v%d, v12" % (48 + k, 48 + k))
        for k in range(32):
            e("v_mul_f32 v%d, s58, v%d" % (48 + k, 48 + k))
        for k in range(32):
            e("v_exp_f32 v%d, v%d" % (48 + k, 48 + k))
        e("v_add_f32 v13, v48, v49\nv_add_f32 v14, v50, v51")
        for k in range(52, 80, 2):
            e("v_add_f32 v13, v13, v%d\nv_add_f32 v14, v14, v%d" % (k, k + 1))
        for k in range(16):
            e("v_cvt_pk_bf16_f32 v%d, v%d, v%d" % (80 + k, 48 + 2 * k, 49 + 2 * k))
        e("""
v_add_f32 v13, v13, v14
v_mov_b32 v14, v13
s_nop 1
v_permlane16_swap_b32 v13, v14
s_nop 0
v_add_f32 v13, v13, v14
v_mov_b32 v14, v13
s_nop 1
v_permlane32_swap_b32 v13, v14
s_nop 0
v_add_f32 v13, v13, v14
s_lshl_b32 s54, s36, 4
s_add_u32 s54, s54, %d
v_lshlrev_b32 v14, 3, v0
v_add_u32 v14, s54, v14
s_mov_b64 exec, 3
ds_write_b64 v14, v[12:13]
s_mov_b64 exec, 1
v_mov_b32 v14, %d
v_mov_b32 v15, 1
s_waitcnt lgkmcnt(0)
ds_add_u32 v14, v15
s_mov_b64 exec, -1
""" % (STW, CNT_STAT))
        self.stamp(3)
        self.tile_ids()
        e("""
v_and_b32 v24, 1, v0
v_lshlrev_b32 v24, 9, v24
v_lshl_add_u32 v24, v9, 4, v24
s_lshl_b32 s54, s36, 10
s_add_u32 s54, s54, %d
v_add_u32 v24, s54, v24
v_mov_b32 v25, %d
v_mov_b32 v26, 1
v_lshlrev_b32 v27, 4, v0
v_add_u32 v28, %d, v27
v_lshrrev_b32 v29, 5, v0
v_lshlrev_b32 v29, 4, v29
v_add_u32 v29, %d, v29
s_lshl_b32 s49, s33, 2
s_add_u32 s49, s49, s35
s_lshl_b32 s49, s49, 10
s_add_u32 s49, s49, %d
v_mov_b32 v30, %d
""" % (OW, CNT_O, OW, SC, WS_OP, FLAG_SC))
        for i in range(4):
            fr = 128 + 32 * (i & 1)
            for h in range(2):
                e("s_add_u32 s55, s51, 4")
                if i == 3 and h == 1:
                    self.wait_lds("v30", "s54", "1", "v4", cached=False)
                    e("ds_read_b128 v[32:35], v29")
                self.wait_lds("v2", "s50", "s55", "v4")
                e("v_add_u32 v12, s53, v6")
                for t in range(8):
                    if t:
                        e("v_xor_b32 v%d, %d, v12" % (16 + t, 32 * t))
                for t in range(8):
                    e("ds_read_b64_tr_b16 v[%d:%d], v%d" % (fr + 4 * t + 2 * h, fr + 4 * t + 2 * h + 1, 16 + t if t else 12))
                advance()
            for t in range(8):
                e("s_waitcnt lgkmcnt(%d)" % (7 - t))
                c = "0" if i == 0 else "v[%d:%d]" % (96 + 4 * t, 99 + 4 * t)
                e("v_mfma_f32_16x16x32_bf16 v[%d:%d], v[%d:%d], v[%d:%d], %s" % (96 + 4 * t, 99 + 4 * t, fr + 4 * t, fr + 4 * t + 3, 80 + 4 * i, 83 + 4 * i, c))
            if i < 3:
                self.free_write("s51")
        if "nopost" in self.abl:
            self.free_write("0x10000")
            e("s_branch L_cs_end")
        e("""
s_mov_b32 exec_lo, 0x00030003
s_mov_b32 exec_hi, 0x00030003
v_mov_b32 v4, %d
""" % P_W)
        for t in range(8):
            if t == 6:
                e("s_nop 1")
            e("ds_write_b128 v24, v[%d:%d] offset:%d" % (96 + 4 * t, 99 + 4 * t, 64 * t))
        e("""
s_mov_b64 exec, 1
ds_add_rtn_u32 v16, v25, v26
ds_write_b32 v3, v4
s_mov_b64 exec, -1
s_waitcnt lgkmcnt(1)
v_readfirstlane_b32 s54, v16
s_cmp_lg_u32 s54, 3
s_cbranch_scc1 L_cs_nolast
ds_read_b128 v[96:99], v28
ds_read_b128 v[100:103], v28 offset:1024
ds_read_b128 v[104:107], v28 offset:2048
ds_read_b128 v[108:111], v28 offset:3072
s_waitcnt lgkmcnt(3)
""")
        for k in range(4):
            e("v_mul_f32 v%d, v%d, v32" % (96 + k, 96 + k))
        for w in range(1, 4):
            e("s_waitcnt lgkmcnt(%d)" % (3 - w))
            for k in range(4):
                e("v_fmac_f32 v%d, v%d, v%d" % (96 + k, 96 + 4 * w + k, 32 + w))
        e("buffer_store_dwordx4 v[96:99], v27, s[40:43], s49 offen sc1")
        self.stamp(10)
        self.label("L_cs_nolast")
        self.stamp(4)
        e("""
s_cmp_lt_u32 s31, 8
s_cbranch_scc1 L_cs_red
s_cmp_ge_u32 s31, 26
s_cbranch_scc1 L_cs_down
""")
        if "notile" in self.abl:
            e("s_branch L_cs_end")
        ringw = (P_W % RING_KB) * 1024
        e("""
v_lshlrev_b32 v20, 16, v9
v_lshl_add_u32 v20, v8, 4, v20
v_lshlrev_b32 v22, 12, v9
v_lshl_add_u32 v22, v11, 6, v22
s_lshl_b32 s46, s37, 12
s_lshl_b32 s47, s36, 8
s_add_u32 s46, s46, s47
s_add_u32 s46, s46, %d
s_lshl_b32 s47, s37, 8
s_lshr_b32 s48, s36, 1
s_lshl_b32 s48, s48, 3
s_add_u32 s47, s47, s48
s_add_u32 s47, s47, %d
s_lshl_b32 s54, s36, 13
s_add_u32 s54, s54, %d
v_add_u32 v12, s54, v7
v_xor_b32 v13, 32, v12
v_xor_b32 v14, 64, v12
v_xor_b32 v15, 0x60, v12
s_lshl_b32 s55, s36, 3
s_add_u32 s55, s55, %d
v_lshlrev_b32 v24, 8, v11
v_lshl_add_u32 v24, v9, 4, v24
s_lshl_b32 s54, s36, 10
s_add_u32 s54, s54, %d
v_add_u32 v24, s54, v24
v_mov_b32 v25, %d
v_add_u32 v28, %d, v27
v_mul_u32_u24 v29, 2304, v9
v_lshl_add_u32 v29, v8, 4, v29
s_mul_i32 s44, s37, %d
s_lshl_b32 s45, s38, 8
s_add_u32 s44, s44, s45
s_add_u32 s44, s44, %d
s_lshl_b32 s54, s36, 9
s_add_u32 s54, s54, %d
v_lshlrev_b32 v21, 7, v9
v_bfe_u32 v16, v0, 3, 1
v_lshl_add_u32 v21, v16, 6, v21
v_lshl_add_u32 v21, v11, 4, v21
v_bfe_u32 v16, v0, 2, 1
v_lshl_add_u32 v21, v16, 3, v21
v_add_u32 v21, s54, v21
v_lshlrev_b32 v23, 7, v11
v_lshl_add_u32 v23, v9, 4, v23
v_add_u32 v23, s54, v23
""" % (WS_OP, WS_ST, ringw, P_W + 8, RW, CNT_P, RW, PART_ROW, WS_PART, OB))
        self.wait_lds("v2", "s50", str(P_W + 32 - max(self.W, self.Wlate) - self.gearly), "v4")
        sloads = ["buffer_load_dwordx2 v[232:233], v22, s[40:43], s47 offen sc1"]
        loads = ["buffer_load_dwordx4 v[%d:%d], v20, s[40:43], s46 offen offset:%d sc1" % (216 + 4 * k, 219 + 4 * k, 1024 * k) for k in range(4)]
        for l in sloads + loads:
            e(l)
        self.stamp(8)
        self.wait_lds("v2", "s50", "s55", "v4")
        for s in range(2):
            for q in range(4):
                r = 128 + 16 * s + 4 * q
                e("ds_read_b64_tr_b16 v[%d:%d], v%d offset:%d" % (r, r + 1, 12 + q, 4096 * s))
                e("ds_read_b64_tr_b16 v[%d:%d], v%d offset:%d" % (r + 2, r + 3, 12 + q, 4096 * s + 2048))
        Ls = self.lab("Lst")
        Lsd = self.lab("Lstd")
        e("s_mov_b32 s59, %d\ns_waitcnt vmcnt(4)" % self.spin)
        self.label(Ls)
        e("""
v_max_u32 v16, v232, v233
v_cmp_eq_u32 vcc, -1, v16
s_cbranch_vccz %s
%s
s_sub_u32 s59, s59, 1
s_cmp_lg_u32 s59, 0
s_waitcnt vmcnt(0)
s_cbranch_scc1 %s
""" % (Lsd, "\n".join(sloads), Ls))
        self.label(Lsd)
        e("""
v_max_f32_dpp v16, v232, v232 quad_perm:[1,0,3,2] row_mask:0xf bank_mask:0xf
s_nop 1
v_max_f32_dpp v16, v16, v16 quad_perm:[2,3,0,1] row_mask:0xf bank_mask:0xf
v_sub_f32 v232, v232, v16
v_mul_f32 v232, s58, v232
v_exp_f32 v232, v232
s_nop 0
v_mul_f32 v16, v232, v233
s_nop 1
v_add_f32_dpp v16, v16, v16 quad_perm:[1,0,3,2] row_mask:0xf bank_mask:0xf
s_nop 1
v_add_f32_dpp v16, v16, v16 quad_perm:[2,3,0,1] row_mask:0xf bank_mask:0xf
v_rcp_f32 v16, v16
s_nop 0
v_mul_f32 v232, v232, v16
""")
        if self.pipe:
            Dn = self.lab("Lgo")
            e("s_mov_b32 s59, %d\ns_waitcnt vmcnt(0)" % self.spin)
            e("v_max3_u32 v36, v216, v217, v218\nv_max3_u32 v37, v219, v220, v221")
            for i, r in enumerate(range(222, 232, 2)):
                e("v_max3_u32 v%d, v%d, v%d, v%d" % (36 + (i & 1), 36 + (i & 1), r, r + 1))
            e("v_max_u32 v36, v36, v37\nv_cmp_eq_u32 vcc, -1, v36\ns_cbranch_vccz %s" % Dn)
            self.gather_pipe(loads, list(range(216, 232)), 36, depth=self.pipe)
            self.label(Dn)
        else:
            self.gather(loads, list(range(216, 232)), 36, sleep=self.tsleep, preissued=True)
        self.stamp(5)
        self.rawstamp(7, "s59")
        for k in range(4):
            e("v_mul_f32_dpp v%d, v232, v%d quad_perm:[0,0,0,0] row_mask:0xf bank_mask:0xf" % (240 + k, 216 + k))
        for j in range(1, 4):
            for k in range(4):
                e("v_fmac_f32_dpp v%d, v232, v%d quad_perm:[%d,%d,%d,%d] row_mask:0xf bank_mask:0xf" % (240 + k, 216 + 4 * j + k, j, j, j, j))
        e("""
v_cvt_pk_bf16_f32 v244, v240, v241
v_cvt_pk_bf16_f32 v245, v242, v243
ds_write_b64 v21, v[244:245]
ds_read_b128 v[232:235], v23
ds_read_b128 v[236:239], v23 offset:64
""")
        e("s_waitcnt lgkmcnt(0)\ns_nop 0")
        for s in range(2):
            for q in range(4):
                r = 128 + 16 * s + 4 * q
                c = "0" if s == 0 else "v[%d:%d]" % (240 + 4 * q, 243 + 4 * q)
                e("v_mfma_f32_16x16x32_bf16 v[%d:%d], v[%d:%d], v[%d:%d], %s" % (240 + 4 * q, 243 + 4 * q, r, r + 3, 232 + 4 * s, 235 + 4 * s, c))
        e("""
s_mov_b32 exec_lo, 0x000f000f
s_mov_b32 exec_hi, 0x000f000f
s_nop 2
ds_write_b128 v24, v[240:243]
s_nop 0
ds_write_b128 v24, v[244:247] offset:64
s_nop 0
ds_write_b128 v24, v[248:251] offset:128
s_nop 0
ds_write_b128 v24, v[252:255] offset:192
s_mov_b64 exec, 1
ds_add_rtn_u32 v16, v25, v26
s_mov_b64 exec, -1
s_waitcnt lgkmcnt(0)
v_readfirstlane_b32 s54, v16
s_cmp_lg_u32 s54, 3
s_cbranch_scc1 L_cs_end
ds_read_b128 v[96:99], v28
ds_read_b128 v[100:103], v28 offset:1024
ds_read_b128 v[104:107], v28 offset:2048
ds_read_b128 v[108:111], v28 offset:3072
s_waitcnt lgkmcnt(2)
v_add_f32 v96, v96, v100
v_add_f32 v97, v97, v101
v_add_f32 v98, v98, v102
v_add_f32 v99, v99, v103
s_waitcnt lgkmcnt(0)
v_add_f32 v104, v104, v108
v_add_f32 v105, v105, v109
v_add_f32 v106, v106, v110
v_add_f32 v107, v107, v111
v_add_f32 v96, v96, v104
v_add_f32 v97, v97, v105
v_add_f32 v98, v98, v106
v_add_f32 v99, v99, v107
buffer_store_dwordx4 v[96:99], v29, s[40:43], s44 offen sc1
""")
        self.stamp(6)
        e("s_branch L_cs_end")
        self.label("L_cs_down")
        e("""
v_bfe_u32 v13, v0, 3, 2
v_mul_u32_u24 v14, 384, v10
v_lshl_add_u32 v14, v11, 3, v14
v_add_u32 v14, %d, v14
s_mul_i32 s54, s36, 3
v_xor_b32 v16, s54, v13
v_lshl_add_u32 v16, v16, 5, v14
s_add_u32 s54, s54, 1
v_xor_b32 v17, s54, v13
v_lshl_add_u32 v17, v17, 5, v14
s_add_u32 s54, s54, 1
v_xor_b32 v18, s54, v13
v_lshl_add_u32 v18, v18, 5, v14
v_mul_u32_u24 v12, 5462, v0
v_lshrrev_b32 v12, 16, v12
v_mul_u32_u24 v19, 12, v12
v_sub_u32 v19, v0, v19
v_mul_u32_u24 v12, 2304, v12
v_lshl_add_u32 v19, v19, 4, v12
s_mov_b32 s46, %d
s_cmp_lt_u32 s36, 2
s_cselect_b32 s46, %d, s46
s_mul_i32 s45, s36, 768
s_add_u32 s45, s45, s46
v_mul_u32_u24 v21, 192, v11
v_lshl_add_u32 v21, v9, 4, v21
v_add_u32 v21, s45, v21
v_add_u32 v22, s45, v27
s_mul_i32 s44, s37, %d
s_mul_i32 s45, s38, 768
s_add_u32 s44, s44, s45
s_mul_i32 s45, s36, 192
s_add_u32 s44, s44, s45
s_add_u32 s44, s44, %d
v_mov_b32 v12, %d
""" % (ringw, XN + 2304 - 1536, OB, PART_ROW, WS_PART, FLAG_H))
        self.wait_lds("v12", "s54", "1", "v4", cached=False)
        e("""
v_mul_u32_u24 v20, %d, v11
v_lshl_add_u32 v20, v9, 4, v20
v_add_u32 v20, %d, v20
s_mov_b32 s51, %d
""" % (H_STRIDE, XN, P_W + 12))
        for k in range(12):
            e("v_mov_b32 v%d, 0" % (240 + k))
        L = self.lab("Ldn")
        self.label(L)
        self.wait_lds("v2", "s50", "s51", "v4")
        e("ds_read_b128 v[232:235], v20")
        for q in range(3):
            r = 192 + 4 * q
            e("ds_read_b64_tr_b16 v[%d:%d], v%d" % (r, r + 1, 16 + q))
            e("ds_read_b64_tr_b16 v[%d:%d], v%d offset:6144" % (r + 2, r + 3, 16 + q))
        e("v_add_u32 v20, 64, v20")
        for q in range(3):
            e("v_add_u32 v%d, 12288, v%d" % (16 + q, 16 + q))
        e("s_add_u32 s51, s51, 12\ns_cmp_le_u32 s51, %d" % (P_W + 108))
        for q in range(3):
            r = 192 + 4 * q
            e("s_waitcnt lgkmcnt(%d)" % (4 - 2 * q))
            e("v_mfma_f32_16x16x32_bf16 v[%d:%d], v[%d:%d], v[232:235], v[%d:%d]" % (240 + 4 * q, 243 + 4 * q, r, r + 3, 240 + 4 * q, 243 + 4 * q))
        e("s_cbranch_scc1 %s" % L)
        e("""
s_mov_b32 exec_lo, 0x000f000f
s_mov_b32 exec_hi, 0x000f000f
s_nop 4
ds_write_b128 v21, v[240:243]
s_nop 0
ds_write_b128 v21, v[244:247] offset:64
s_nop 0
ds_write_b128 v21, v[248:251] offset:128
s_mov_b32 exec_lo, -1
s_mov_b32 exec_hi, 0xffff
ds_read_b128 v[240:243], v22
s_waitcnt lgkmcnt(0)
buffer_store_dwordx4 v[240:243], v19, s[40:43], s44 offen sc1
""")
        self.stamp(6)
        e("s_branch L_cs_end")
        self.label("L_cs_red")
        if "nored" in self.abl:
            e("s_branch L_cs_end")
        e("""
s_lshl_b32 s44, s30, 3
s_add_u32 s44, s44, s31
s_lshl_b32 s45, s36, 6
s_add_u32 s44, s44, s45
s_cmp_ge_u32 s44, 72
s_cbranch_scc1 L_cs_end
s_lshl_b32 s54, s44, 6
v_and_b32 v17, 7, v0
v_lshlrev_b32 v42, 3, v17
buffer_load_dwordx2 v[40:41], v42, s[60:63], s54 offen
v_bfe_u32 v16, v0, 3, 2
v_lshrrev_b32 v18, 5, v0
v_lshl_add_u32 v16, v18, 4, v16
v_mul_u32_u24 v16, %d, v16
v_lshl_add_u32 v16, v17, 4, v16
s_lshl_b32 s44, s44, 7
s_add_u32 s44, s44, %d
s_add_u32 s45, s44, %d
s_add_u32 s46, s45, %d
s_add_u32 s47, s46, %d
s_mov_b32 s57, %s
s_mov_b32 s60, s22
s_mov_b32 s61, s23
""" % (PART_ROW, WS_PART, 4 * PART_ROW, 4 * PART_ROW, 4 * PART_ROW, f32(-LOG2E)))
        self.stamp(8)
        loads = ["buffer_load_dwordx4 v[%d:%d], v16, s[40:43], s%d offen sc1" % (48 + 4 * k, 51 + 4 * k, 44 + k) for k in range(4)]
        Lp = self.lab("Lpr")
        Lq = self.lab("Lprd")
        e("s_mov_b32 s59, %d\ns_mov_b32 exec_lo, 1\ns_mov_b32 exec_hi, 1" % self.spin)
        self.label(Lp)
        e("""
buffer_load_dword v48, v16, s[40:43], s44 offen sc1
buffer_load_dword v56, v16, s[40:43], s46 offen sc1
s_waitcnt vmcnt(0)
v_min_u32 v64, v48, v56
v_cmp_ne_u32 vcc, -1, v64
s_cbranch_vccnz %s
s_sleep %d
s_sub_u32 s59, s59, 1
s_cmp_lg_u32 s59, 0
s_cbranch_scc1 %s
""" % (Lq, self.isleep, Lp))
        self.label(Lq)
        e("""
s_mov_b64 exec, -1
v_lshlrev_b32 v76, 16, v40
v_and_b32 v77, s56, v40
v_lshlrev_b32 v78, 16, v41
v_and_b32 v79, s56, v41
""")
        if self.pipe:
            self.gather_pipe(loads, list(range(48, 64)), 64, depth=self.pipe)
        else:
            self.gather(loads, list(range(48, 64)), 64, sleep=self.tsleep)
        self.stamp(5)
        self.rawstamp(7, "s59")
        for k in range(4):
            e("v_add_f32 v%d, v%d, v%d" % (64 + k, 48 + k, 52 + k))
        for k in range(4):
            e("v_add_f32 v%d, v%d, v%d" % (68 + k, 56 + k, 60 + k))
        for k in range(4):
            e("v_add_f32 v%d, v%d, v%d" % (64 + k, 64 + k, 68 + k))
        for k in range(4):
            e("v_add_f32_dpp v%d, v%d, v%d row_ror:8 row_mask:0xf bank_mask:0xf" % (64 + k, 64 + k, 64 + k))
        for k in range(4):
            e("v_mov_b32 v%d, v%d" % (68 + k, 64 + k))
        e("s_nop 0")
        for k in range(4):
            e("v_permlane16_swap_b32 v%d, v%d" % (64 + k, 68 + k))
        for k in range(4):
            e("v_add_f32 v%d, v%d, v%d" % (64 + k, 64 + k, 68 + k))
        e("""
v_cvt_pk_bf16_f32 v68, v64, v65
v_cvt_pk_bf16_f32 v69, v66, v67
v_lshlrev_b32 v64, 16, v68
v_and_b32 v65, s56, v68
v_lshlrev_b32 v66, 16, v69
v_and_b32 v67, s56, v69
""")
        for k in range(4):
            e("v_mul_f32 v%d, s57, v%d" % (72 + k, 64 + k))
        for k in range(4):
            e("v_exp_f32 v%d, v%d" % (72 + k, 72 + k))
        for k in range(4):
            e("v_add_f32 v%d, 1.0, v%d" % (72 + k, 72 + k))
        for k in range(4):
            e("v_rcp_f32 v%d, v%d" % (72 + k, 72 + k))
        for k in range(4):
            e("v_mul_f32 v%d, v%d, v%d" % (72 + k, 72 + k, 64 + k))
        e("""
v_cvt_pk_bf16_f32 v68, v72, v73
v_cvt_pk_bf16_f32 v69, v74, v75
s_nop 1
v_permlane32_swap_b32 v70, v68
v_permlane32_swap_b32 v71, v69
s_nop 0
""")
        self.o[-3] = "    v_permlane32_swap_b32 v68, v70"
        self.o[-2] = "    v_permlane32_swap_b32 v69, v71"
        e("""
v_lshlrev_b32 v72, 16, v70
v_and_b32 v73, s56, v70
v_lshlrev_b32 v74, 16, v71
v_and_b32 v75, s56, v71
""")
        for k in range(4):
            e("v_mul_f32 v%d, v%d, v%d" % (64 + k, 64 + k, 72 + k))
        e("""
v_cvt_pk_bf16_f32 v68, v64, v65
v_cvt_pk_bf16_f32 v69, v66, v67
v_lshlrev_b32 v64, 16, v68
v_and_b32 v65, s56, v68
v_lshlrev_b32 v66, 16, v69
v_and_b32 v67, s56, v69
v_add_f32 v64, v64, v76
v_add_f32 v65, v65, v77
v_add_f32 v66, v66, v78
v_add_f32 v67, v67, v79
v_cvt_pk_bf16_f32 v68, v64, v65
v_cvt_pk_bf16_f32 v69, v66, v67
s_mov_b64 exec, 0xff
buffer_store_dwordx2 v[68:69], v42, s[60:63], s54 offen
""")
        self.stamp(6)
        self.label("L_cs_end")
        if self.stamps:
            e("s_waitcnt vmcnt(0)")
            self.stamp(9)
            self.flush_stamps([(4, 32), (10, 33), (8, 34), (5, 35), (6, 36), (9, 37), (7, 38)], wave_off=True)
            e("s_cmp_lg_u32 s36, 0\ns_cbranch_scc1 L_end")
            self.flush_stamps([(0, 11), (1, 12), (2, 13), (3, 14), (4, 8), (5, 15), (7, 22), (8, 23), (6, 24), (9, 10)])
        self.label("L_end")
        e("s_endpgm")

    def build(self):
        hdr = open("cdna_kernels/%s.s.ref" % KN).read().split("\n")
        head = []
        for l in hdr:
            if l.startswith("; @launch"):
                break
            head.append(l)
        head.append("; @launch grid=(256,1,1) block=(384,1,1) lds=%d" % LDS_TOTAL)
        head += ['.amdgcn_target "amdgcn-amd-amdhsa--gfx950"', ".text", ".globl %s_kernel" % KN, ".p2align 8",
                 ".type %s_kernel,@function" % KN, "%s_kernel:" % KN]
        self.prologue()
        self.loader()
        self.comm()
        self.cons()
        tail = """.section .rodata,"a"
.p2align 6
.amdhsa_kernel %s_kernel
  .amdhsa_next_free_vgpr 256
  .amdhsa_next_free_sgpr 102
  .amdhsa_accum_offset 256
  .amdhsa_group_segment_fixed_size 0
  .amdhsa_kernarg_size 96
  .amdhsa_user_sgpr_count 2
  .amdhsa_user_sgpr_kernarg_segment_ptr 1
  .amdhsa_system_sgpr_workgroup_id_x 1
.end_amdhsa_kernel
""" % KN
        return "\n".join(head + self.o) + "\n" + tail


if __name__ == "__main__":
    import argparse
    ap = argparse.ArgumentParser()
    ap.add_argument("out")
    ap.add_argument("--stamps", action="store_true")
    ap.add_argument("--W", type=int, default=20)
    ap.add_argument("--nont", action="store_true")
    ap.add_argument("--tsleep", type=int, default=1)
    ap.add_argument("--csleep", type=int, default=0)
    ap.add_argument("--abl", type=str, default="")
    ap.add_argument("--gearly", type=int, default=-16)
    ap.add_argument("--isleep", type=int, default=4)
    ap.add_argument("--Wlate", type=int, default=0)
    ap.add_argument("--pipe", type=int, default=3)
    ap.add_argument("--qpos", type=int, default=120)
    ap.add_argument("--qposd", type=int, default=130)
    ap.add_argument("--noprobe", action="store_true")
    ap.add_argument("--wsoff", type=lambda x: int(x, 0), default=0)
    a = ap.parse_args()
    open(a.out, "w").write(Gen(W=a.W, stamps=a.stamps, nt=not a.nont, tsleep=a.tsleep, csleep=a.csleep, abl=a.abl.split(","), gearly=a.gearly, isleep=a.isleep, wsoff=a.wsoff, qpos=a.qpos, qposd=a.qposd, probe=not a.noprobe, Wlate=a.Wlate, pipe=a.pipe).build())
```

```python
import sys, struct

KN = "recurrent_scan__sliding_block_cached__geglu_ffn__decode"

RING_KB = 148
RING_BYTES = RING_KB * 1024
AUX = RING_BYTES
XN = AUX
XN_STRIDE = 1216
H_STRIDE = 576
QL = AUX + 4864
OW = AUX + 5376
FULL = AUX + 9472
FREE = AUX + 9728
STW = AUX + 9744
SC = AUX + 9808
CNT_STAT = AUX + 9840
CNT_O = AUX + 9844
FLAG_Q = AUX + 9848
FLAG_H = AUX + 9852
FLAG_SC = AUX + 9856
CNT_P = AUX + 9860
CNT_C = AUX + 9864
FLAG_CLR = AUX + 9868
WCLS = AUX + 9872
OB = AUX + 9984
LDS_TOTAL = AUX + 9984 + 2048

WS_CQ = 0
CQ_STRIDE = 8192
WS_CGU = 0x8000
CGU_STRIDE = 18432
SH_BASE = 0x8000
WS_ST = 0x1A000
WS_OP = 0x1E000
WS_PART = 0x5E000
PART_ROW = 9216
WS_SIZE = 0x5E000 + 32 * 9216
RW = XN

P_K, P_V, P_W = 72, 200, 328

def f32(x):
    return "0x%08x" % struct.unpack("<I", struct.pack("<f", x))[0]

LOG2E = 1.4426950408889634


class Gen:
    def __init__(self, W=20, stamps=False, nt=True, spin=1 << 16, sleep=True, tsleep=1, csleep=0, abl=(), gearly=-16, isleep=12, wsoff=0, qpos=120, qposd=130, probe=True, Wlate=None, gpos=(28,), wrole=(20, 22, 22, 24), cpf=0, ilv=0, Wc3=0, Wcol=0, pipe=3, outflag="", adapt=False, wlevels=(16, 20, 24, 28), wthr=(-20, 20, 55)):
        self.o = []
        self.n = 0
        self.W = W
        self.wrole = wrole
        self.cpf = cpf
        self.ilv = ilv
        self.Wc3 = Wc3
        self.Wcol = Wcol
        self.gpos = gpos
        self.outflag = outflag
        self.adapt = adapt
        self.wlevels = wlevels
        self.wthr = wthr
        self.pipe = pipe
        self.Wlate = Wlate or W
        self.stamps = stamps
        self.nt = " nt" if nt else ""
        self.spin = spin
        self.sleep = sleep
        self.qpos = qpos
        self.qposd = qposd
        self.fgap = 32
        self.mbase = 4
        self.hpos = 190
        self.probe = probe
        self.gearly = gearly
        self.wsoff = wsoff
        self.isleep = isleep
        self.tsleep = tsleep
        self.abl = set(abl)
        self.csleep = csleep

    def e(self, s):
        for line in s.strip("\n").split("\n"):
            self.o.append(line if line.rstrip().endswith(":") and not line.startswith(" ") else "    " + line.strip())

    def lab(self, p="L"):
        self.n += 1
        return "%s_%d" % (p, self.n)

    def label(self, l):
        self.o.append(l + ":")

    def sreg(self, k):
        return 70 + 2 * k if k < 10 else 92 + 2 * (k - 10)

    def stamp(self, k):
        if self.stamps:
            self.e("s_memrealtime s[%d:%d]" % (self.sreg(k), self.sreg(k) + 1))

    def rawstamp(self, k, expr_reg):
        if self.stamps:
            self.e("s_sub_u32 s%d, %d, %s\ns_mov_b32 s%d, 0" % (self.sreg(k), self.spin, expr_reg, self.sreg(k) + 1))

    def flush_stamps(self, items, wave_off=False):
        if not self.stamps:
            return
        self.e("""
s_waitcnt lgkmcnt(0)
s_add_u32 s64, s26, 0x10000000
s_addc_u32 s65, s27, 0
s_mov_b32 s66, 0x100000
s_mov_b32 s67, 0x00020000
s_mul_i32 s68, s2, 512
s_mov_b64 exec, 1
""")
        if wave_off:
            self.e("s_lshl_b32 s64, s36, 6\ns_add_u32 s68, s68, s64\ns_add_u32 s64, s26, 0x10000000")
        for k, slot in items:
            self.e("""
v_mov_b32 v250, s%d
v_mov_b32 v251, s%d
v_mov_b32 v252, %d
buffer_store_dwordx2 v[250:251], v252, s[64:67], s68 offen
s_nop 1
""" % (self.sreg(k), self.sreg(k) + 1, slot * 8))

    def wait_lds(self, vaddr, sreg, thr, vtmp, cached=True, sleep=0):
        l = self.lab("Lw")
        d = self.lab("Ld")
        if cached:
            self.e("s_cmp_ge_i32 %s, %s\ns_cbranch_scc1 %s" % (sreg, thr, d))
        self.label(l)
        self.e("ds_read_b32 %s, %s\ns_waitcnt lgkmcnt(0)\nv_readfirstlane_b32 %s, %s" % (vtmp, vaddr, sreg, vtmp))
        self.e("s_cmp_ge_i32 %s, %s\ns_cbranch_scc1 %s" % (sreg, thr, d))
        sleep = sleep or self.csleep
        if sleep:
            self.e("s_sleep %d" % sleep)
        self.e("s_sub_i32 s69, s69, 1\ns_cmp_gt_i32 s69, 0\ns_cbranch_scc1 %s" % l)
        self.label(d)

    def prologue(self):
        self.e("""
s_cmp_ge_u32 s2, 256
s_cbranch_scc1 L_end
s_load_dwordx16 s[4:19], s[0:1], 0
s_load_dwordx8 s[20:27], s[0:1], 64
v_lshrrev_b32 v1, 6, v0
v_and_b32 v0, 63, v0
s_and_b32 s30, s2, 7
s_mov_b32 s69, 0x400000
v_readfirstlane_b32 s36, v1
s_lshr_b32 s31, s2, 3
s_lshr_b32 s32, s31, 4
s_lshl_b32 s33, s30, 1
s_add_u32 s32, s32, s33
s_lshr_b32 s34, s31, 2
s_and_b32 s34, s34, 3
s_and_b32 s35, s31, 3
s_lshl_b32 s33, s34, 4
s_add_u32 s33, s33, s32
s_cmp_eq_u32 s36, %d
s_cbranch_scc1 L_comm
s_cmp_lg_u32 s36, 0
s_cbranch_scc1 L_cons
""" % (4 if "perm" in self.abl else 1))

    def tile_ids(self):
        self.e("""
s_sub_u32 s38, s31, 8
s_cmp_ge_u32 s38, 9
s_cselect_b32 s37, 1, 0
s_cselect_b32 s39, 9, 0
s_sub_u32 s38, s38, s39
s_cmp_ge_u32 s31, 26
s_cbranch_scc0 %(l)s
s_sub_u32 s38, s31, 26
s_cmp_ge_u32 s38, 3
s_cselect_b32 s37, 17, 16
s_cselect_b32 s39, 3, 0
s_sub_u32 s38, s38, s39
%(l)s:
s_lshl_b32 s39, s30, 1
s_add_u32 s37, s37, s39
""" % dict(l=self.lab("Lt")))

    def loader(self):
        W = self.W
        nt = self.nt
        e = self.e
        self.stamp(0)
        e("s_setprio 3")
        e("""
v_lshrrev_b32 v8, 4, v0
v_and_b32 v9, 15, v0
v_lshlrev_b32 v10, 1, v8
v_xor_b32 v11, v9, v10
v_lshlrev_b32 v11, 4, v11
v_lshl_add_u32 v1, v8, 8, v11
v_xor_b32 v2, 0x80, v1
""")
        e("""
s_movk_i32 s41, 0x2400
s_cmp_lt_u32 s31, 8
s_cselect_b32 s40, 0x2000, s41
v_lshrrev_b32 v12, 3, v0
v_and_b32 v13, 7, v0
v_xor_b32 v13, v13, v10
v_lshlrev_b32 v13, 4, v13
v_mul_u32_u24 v20, 1152, v12
v_add_u32 v20, v20, v13
v_add_u32 v21, 8192, v20
v_add_u32 v22, 8192, v21
v_add_u32 v23, 8192, v22
v_mul_lo_u32 v12, v12, s40
v_add_u32 v3, v12, v13
s_lshl_b32 s41, s40, 3
s_sub_u32 s42, s41, 1024
v_add_u32 v4, s42, v3
v_add_u32 v5, s42, v4
v_add_u32 v6, s42, v5
s_lshl_b32 s41, s41, 2
""")
        for i in range(3):
            e("""
v_add_u32 v12, %d, v0
v_mul_u32_u24 v13, 2731, v12
v_lshrrev_b32 v13, 16, v13
v_mul_u32_u24 v14, 24, v13
v_sub_u32 v14, v12, v14
v_and_b32 v15, 6, v13
v_xor_b32 v14, v14, v15
v_mul_u32_u24 v13, 1152, v13
v_lshl_add_u32 v%d, v14, 4, v13
""" % (64 * i, 17 + i))
        e("""
v_mov_b32 v7, v17
v_add_u32 v8, 0xfffffc00, v18
v_add_u32 v9, 0xfffff800, v19
v_lshlrev_b32 v10, 2, v0
v_add_u32 v10, %d, v10
v_mov_b32 v11, %d
v_mov_b32 v17, %d
v_mov_b32 v18, %d
""" % (FULL, FREE, W, WCLS))
        self.tile_ids()
        e("""
s_lshl_b32 s43, s30, 3
s_add_u32 s43, s43, s31
s_mul_i32 s44, s30, 9
s_add_u32 s44, s44, s31
s_sub_u32 s45, s44, 8
s_sub_u32 s44, s44, 17
s_cmp_lt_u32 s31, 17
s_cselect_b32 s44, s45, s44
s_cmp_lt_u32 s31, 8
s_cselect_b32 s43, s43, s44
s_lshl_b32 s51, s43, 7
s_lshl_b32 s46, s33, 21
s_add_u32 s46, s46, 0x180000
s_lshl_b32 s47, s35, 17
s_add_u32 s46, s46, s47
s_mov_b32 s63, 0x00020000
s_mov_b32 s55, 0
""")
        cur = [W]

        def run(pats, step_reg_or_imm, n_iter, check_free, label=None):
            n = len(pats)
            L = self.lab("Lrun")
            e("s_mov_b32 s52, %d" % n_iter)
            self.label(L)
            if check_free:
                ok = self.lab("Lok")
                sl = self.lab("Lsl")
                e("s_add_i32 s54, s53, %d\ns_cmp_le_i32 s54, s55\ns_cbranch_scc1 %s" % (n - RING_KB, ok))
                self.label(sl)
                e("""
ds_read_b128 v[12:15], v11
s_waitcnt lgkmcnt(0)
v_min_u32 v12, v12, v13
v_min3_u32 v12, v12, v14, v15
s_nop 0
v_readfirstlane_b32 s55, v12
s_cmp_le_i32 s54, s55
s_cbranch_scc1 %s
s_sub_i32 s69, s69, 1
s_cmp_gt_i32 s69, 0
s_cbranch_scc1 %s
""" % (ok, sl))
                self.label(ok)
            e("s_mov_b32 m0, s50")
            e("s_add_u32 s50, s50, %d" % (n * 1024))
            for i, p in enumerate(pats):
                off = " offset:%d" % (i * 1024) if i else ""
                e("buffer_load_dwordx4 v%d, s[60:63], s51 offen%s%s lds" % (p, off, nt))
            e("s_add_u32 s51, s51, %s" % step_reg_or_imm)
            e("s_cmp_eq_u32 s50, %d\ns_cselect_b32 s50, 0, s50" % RING_BYTES)
            e("s_add_u32 s53, s53, %d" % n)
            lv = sorted(set(self.wrole), reverse=True)
            if len(lv) > 1:
                dn = self.lab("Lwd")
                for i, w in enumerate(lv):
                    e("s_waitcnt vmcnt(%d)" % w)
                    if i < len(lv) - 1:
                        e("s_cmp_ge_u32 s57, %d\ns_cbranch_scc1 %s" % (w, dn))
                self.label(dn)
                e("s_sub_u32 s54, s53, s57\nv_mov_b32 v16, s54\nds_write_b32 v10, v16")
            else:
                e("s_waitcnt vmcnt(%d)" % cur[0])
                e("s_sub_u32 s54, s53, %d\nv_mov_b32 v16, s54\nds_write_b32 v10, v16" % cur[0])
            e("s_sub_u32 s52, s52, 1\ns_cmp_lg_u32 s52, 0\ns_cbranch_scc1 %s" % L)

        def batch(pats, srd, soff, step):
            n = len(pats)
            e("s_mov_b32 m0, s50")
            e("s_add_u32 s50, s50, %d" % (n * 1024))
            for i, p in enumerate(pats):
                off = " offset:%d" % (i * 1024) if i else ""
                e("buffer_load_dwordx4 v%d, s[%d:%d], %s offen%s%s lds" % (p, srd, srd + 3, soff, off, nt))
            e("s_add_u32 %s, %s, %s" % (soff, soff, step))
            e("s_add_u32 s53, s53, %d" % n)
            e("s_waitcnt vmcnt(%d)" % cur[0])
            e("s_sub_u32 s54, s53, %d\nv_mov_b32 v16, s54\nds_write_b32 v10, v16" % cur[0])

        def ilv_run():
            L = self.lab("Lilv")
            M = self.lab("Lilm")
            e("s_mov_b32 s64, s6\ns_mov_b32 s65, s7\ns_mov_b32 s66, 0x8000000\ns_mov_b32 s67, 0x00020000\ns_mov_b32 s52, 9\ns_branch %s" % M)
            self.label(L)
            batch([3, 4, 5, 6], 60, "s51", "s41")
            self.label(M)
            batch([3, 4, 5, 6], 60, "s51", "s41")
            batch([1, 2, 1, 2], 64, "s46", "4096")
            e("s_sub_u32 s52, s52, 1\ns_cmp_lg_u32 s52, 0\ns_cbranch_scc1 %s" % L)
            e("s_mov_b32 s56, 23\ns_branch L_ld_k")

        def stream(W, sfx):
            cur[0] = W
            o0 = len(self.o)
            e("""
s_cmp_ge_u32 s31, 26
s_cbranch_scc1 L_ld_nocol
s_cmp_lt_u32 s31, 17
s_cselect_b32 s60, s16, s18
s_cselect_b32 s61, s17, s19
s_cmp_lt_u32 s31, 8
s_cselect_b32 s60, s10, s60
s_cselect_b32 s61, s11, s61
""")
            for i, p in enumerate([3, 4, 5, 6]):
                off = " offset:%d" % (i * 1024) if i else ""
                e("buffer_load_dwordx4 v%d, s[60:63], s51 offen%s%s lds" % (p, off, nt))
            e("s_add_u32 s51, s51, s41")
            e("s_barrier")
            e("s_mov_b32 s56, 32")
            if self.ilv == 2:
                ilv_run()
            elif self.ilv == 1:
                e("s_and_b32 s54, s43, 7\ns_cmp_lg_u32 s54, 3\ns_cbranch_scc1 L_ld_noilv")
                ilv_run()
                self.label("L_ld_noilv")
            if self.Wc3:
                e("s_and_b32 s54, s43, 7\ns_cmp_eq_u32 s54, 3\ns_cbranch_scc1 L_ld_c3")
            cur[0] = self.Wcol or W
            run([3, 4, 5, 6], "s41", 17, False)
            e("s_branch L_ld_k")
            if self.Wc3:
                self.label("L_ld_c3")
                cur[0] = self.Wc3
                run([3, 4, 5, 6], "s41", 17, False)
                e("s_branch L_ld_k")
            cur[0] = W
            self.label("L_ld_nocol")
            e("s_mov_b32 s50, %d\ns_mov_b32 s53, %d\ns_mov_b32 s56, 32\ns_barrier" % (P_K * 1024, P_K))
            self.label("L_ld_k")
            self.stamp(1)
            e("s_mov_b32 s60, s6\ns_mov_b32 s61, s7\ns_mov_b32 s62, 0x8000000\ns_mov_b32 s51, s46")
            if "fine" in self.abl:
                for q in range(4):
                    run([1, 2, 1, 2], "4096", 8, True)
                    self.stamp(4 + q)
                e("s_mov_b32 s60, s8\ns_mov_b32 s61, s9\ns_mov_b32 s51, s46")
                for q in range(4):
                    run([1, 2, 1, 2], "4096", 8, True)
                    if q < 3:
                        self.stamp(8 + q)
            else:
                o1 = len(self.o)
                run([1, 2, 1, 2], "4096", 32, True)
                self.o[o1] = "    s_mov_b32 s52, s56"
                e("s_mov_b32 s60, s8\ns_mov_b32 s61, s9\ns_sub_u32 s51, s51, 0x20000")
                run([1, 2, 1, 2], "4096", 32, True)
            self.stamp(2)
            e("""
s_cmp_ge_u32 s31, 26
s_cbranch_scc1 L_ld_down
s_cmp_lt_u32 s31, 8
s_cbranch_scc1 L_ld_drain
s_mov_b32 s60, s12
s_mov_b32 s61, s13
s_mov_b32 s62, %d
s_mul_i32 s51, s37, 294912
s_lshl_b32 s54, s38, 7
s_add_u32 s51, s51, s54
""" % (4096 * 1152))
            run([20, 21, 22, 23], "36864", 8, True)
            e("s_branch L_ld_drain")
            self.label("L_ld_down")
            e("""
s_mov_b32 s60, s20
s_mov_b32 s61, s21
s_mov_b32 s62, %d
s_sub_u32 s51, s37, 16
s_mul_i32 s51, s51, 331776
s_mul_i32 s54, s38, 384
s_add_u32 s51, s51, s54
""" % (4608 * 1152))
            run([7, 8, 9], "9216", 36, True)
            self.label("L_ld_drain")
            for w in (28, 24, 20, 16, 12, 8, 4, 0):
                if w < max(self.wrole):
                    e("s_waitcnt vmcnt(%d)\ns_sub_u32 s54, s53, %d\nv_mov_b32 v16, s54\nds_write_b32 v10, v16" % (w, w))
            self.stamp(3)
            if self.stamps:
                e("s_getreg_b32 s%d, hwreg(HW_REG_HW_ID)\ns_mov_b32 s%d, 0" % (self.sreg(12), self.sreg(12) + 1))
            self.flush_stamps([(0, 0), (1, 1), (2, 2), (3, 3), (12, 21)] + ([(4 + q, 25 + q) for q in range(7)] if "fine" in self.abl else []))
            e("s_endpgm")
            for i in range(o0, len(self.o)):
                self.o[i] = self.o[i].replace("L_ld_", "L_ld%s_" % sfx)

        wg_, wq_, wd_, w3_ = self.wrole
        e("""
s_mov_b32 s57, %d
s_cmp_lt_u32 s31, 8
s_cselect_b32 s57, %d, s57
s_and_b32 s54, s43, 7
s_cmp_eq_u32 s54, 3
s_cselect_b32 s57, %d, s57
s_cmp_ge_u32 s31, 26
s_cselect_b32 s57, %d, s57
s_mul_i32 s62, s40, 576
s_mov_b32 s50, 4096
s_mov_b32 s53, 4
s_mov_b32 m0, 0
s_waitcnt lgkmcnt(0)
""" % (wg_, wq_, w3_, wd_))
        stream(self.W, "a")

    def gather(self, loads, regs, vt, strycnt="s59", sleep=8, preissued=False, idle_sleep=0):
        e = self.e
        L = self.lab("Lg")
        D = self.lab("Lgd")
        P = self.lab("Lgp")
        n = len(loads)
        per = len(regs) // n
        assert n <= 6
        masks = [(self.mbase + 2 * k) for k in range(n)]
        e("s_mov_b32 %s, %d\ns_mov_b64 s[90:91], exec" % (strycnt, self.spin))
        if not preissued:
            for l in loads:
                e(l)
        e("s_branch %s" % P)
        self.label(L)
        for k, l in enumerate(loads):
            if n > 1:
                S = self.lab("Lgs")
                e("s_mov_b64 exec, s[%d:%d]\ns_cbranch_execz %s" % (masks[k], masks[k] + 1, S))
                e(l)
                self.label(S)
            else:
                e("s_mov_b64 exec, vcc")
                e(l)
        e("s_mov_b64 exec, s[90:91]")
        self.label(P)
        e("s_waitcnt vmcnt(0)")
        for k in range(n):
            rs = list(regs[k * per:(k + 1) * per])
            if len(rs) == 2:
                e("v_max_u32 v%d, v%d, v%d" % (vt + k, rs[0], rs[1]))
            else:
                e("v_max3_u32 v%d, v%d, v%d, v%d\nv_max_u32 v%d, v%d, v%d" % (vt + k, rs[0], rs[1], rs[2], vt + k, vt + k, rs[3]))
        if n == 1:
            e("v_cmp_eq_u32 vcc, -1, v%d" % vt)
        else:
            rs = [vt + k for k in range(n)]
            t = vt + n
            e("v_max_u32 v%d, v%d, v%d" % (t, rs[0], rs[1]))
            rs = rs[2:]
            while rs:
                if len(rs) >= 2:
                    e("v_max3_u32 v%d, v%d, v%d, v%d" % (t, t, rs[0], rs[1]))
                    rs = rs[2:]
                else:
                    e("v_max_u32 v%d, v%d, v%d" % (t, t, rs[0]))
                    rs = []
            e("v_cmp_eq_u32 vcc, -1, v%d" % t)
        e("s_cbranch_vccz %s" % D)
        if n > 1:
            for k in range(n):
                e("v_cmp_eq_u32 s[%d:%d], -1, v%d" % (masks[k], masks[k] + 1, vt + k))
        if idle_sleep:
            Z = self.lab("Lgz")
            e("s_and_b64 s[%d:%d], s[%d:%d], s[%d:%d]" % (self.mbase + 12, self.mbase + 13, masks[0], masks[0] + 1, masks[1], masks[1] + 1))
            e("s_cmp_lg_u64 s[%d:%d], s[90:91]\ns_cbranch_scc1 %s\ns_sleep %d" % (self.mbase + 12, self.mbase + 13, Z, idle_sleep))
            self.label(Z)
        if sleep:
            e("s_sleep %d" % sleep)
        e("s_sub_u32 %s, %s, 1\ns_cmp_lg_u32 %s, 0\ns_cbranch_scc1 %s" % (strycnt, strycnt, strycnt, L))
        self.label(D)

    def gather_pipe(self, loads, regs, vt, depth=3, gap=2, preissued=0):
        e = self.e
        L = self.lab("Lgq")
        D = self.lab("Lgqd")
        n = len(loads)
        e("s_mov_b32 s59, %d\ns_mov_b64 s[90:91], exec" % self.spin)
        for r in range(depth - 1 - preissued):
            for l in loads:
                e(l)
            e("s_sleep %d" % gap)
        self.label(L)
        for l in loads:
            e(l)
        e("s_mov_b64 exec, s[90:91]")
        e("s_waitcnt vmcnt(%d)" % (n * (depth - 1)))
        rs = list(regs)
        e("v_max3_u32 v%d, v%d, v%d, v%d" % (vt, rs[0], rs[1], rs[2]))
        e("v_max3_u32 v%d, v%d, v%d, v%d" % (vt + 1, rs[3], rs[4], rs[5]))
        rs = rs[6:]
        i = 0
        while rs:
            e("v_max3_u32 v%d, v%d, v%d, v%d" % (vt + i, vt + i, rs[0], rs[1]))
            rs = rs[2:]
            i ^= 1
        e("v_max_u32 v%d, v%d, v%d" % (vt, vt, vt + 1))
        e("v_cmp_eq_u32 vcc, -1, v%d" % vt)
        e("s_cbranch_vccz %s" % D)
        e("s_mov_b64 exec, vcc")
        e("s_sub_u32 s59, s59, 1\ns_cmp_lg_u32 s59, 0\ns_cbranch_scc1 %s" % L)
        e("s_mov_b64 exec, s[90:91]")
        self.label(D)

    def ws_srd(self):
        if self.wsoff:
            self.e("s_add_u32 s40, s26, %d\ns_addc_u32 s41, s27, 0" % self.wsoff)
        else:
            self.e("s_mov_b32 s40, s26\ns_mov_b32 s41, s27")
        self.e("s_mov_b32 s42, %d\ns_mov_b32 s43, 0x00020000" % WS_SIZE)

    def set_flag(self, addr, vt0, vt1):
        self.e("s_mov_b64 exec, 1\nv_mov_b32 v%d, %d\nv_mov_b32 v%d, 1\nds_write_b32 v%d, v%d\ns_mov_b64 exec, -1" % (vt0, addr, vt1, vt0, vt1))

    def comm(self):
        e = self.e
        self.label("L_comm")
        e("""
v_lshlrev_b32 v1, 3, v0
v_add_u32 v1, %d, v1
v_mov_b32 v2, 0
v_mov_b32 v3, 0
ds_write_b64 v1, v[2:3]
v_mov_b32 v4, -1
v_mov_b32 v5, -1
v_mov_b32 v6, -1
v_mov_b32 v7, -1
v_lshlrev_b32 v8, 4, v0
v_mov_b32 v10, %d
v_mov_b32 v11, %d
ds_write_b32 v10, v11
s_memrealtime s[28:29]
""" % (FULL, WCLS, self.W))
        self.tile_ids()
        self.ct_id()
        share = (WS_SIZE - SH_BASE) // 64
        assert share * 64 == WS_SIZE - SH_BASE and share % 128 == 0
        e("""
s_lshl_b32 s45, s33, 2
s_add_u32 s45, s45, s35
s_movk_i32 s46, %d
s_cmp_lt_u32 s31, 8
s_cselect_b32 s46, %d, s46
s_cselect_b32 s47, 0, %d
s_mul_i32 s52, s44, %d
s_lshl_b32 s44, s44, 7
s_add_u32 s44, s44, s47
v_lshrrev_b32 v9, 3, v0
v_mul_lo_u32 v9, v9, s46
v_and_b32 v10, 7, v0
v_lshl_add_u32 v9, v10, 4, v9
v_lshlrev_b32 v12, 2, v0
v_add_u32 v13, %d, v8
v_mov_b32 v23, %d
s_waitcnt lgkmcnt(0)
s_barrier
""" % (CGU_STRIDE, CQ_STRIDE, WS_CGU - 64 * 128, share, OB, CNT_C))
        if self.cpf:
            e("s_getpc_b64 s[54:55]")
            self.label("L_pc")
            e("s_sub_u32 s54, s54, L_pc-%s_kernel\ns_subb_u32 s55, s55, 0\ns_mul_i32 s56, s31, %d" % (KN, self.cpf * 128))
            for k in range(self.cpf):
                e("s_min_u32 s57, s56, L_code_end-%s_kernel-4\ns_load_dword s78, s[54:55], s57\ns_add_u32 s56, s56, 128" % KN)
        if "nocomm" in self.abl:
            e("s_waitcnt lgkmcnt(0)")
            self.set_flag(FLAG_Q, 21, 22)
            self.set_flag(FLAG_H, 21, 22)
            self.set_flag(FLAG_SC, 21, 22)
            e("s_endpgm")
        self.ws_srd()

        def c_store():
            self.wait_lds("v23", "s46", "4", "v14", cached=False, sleep=2)
            e("""
s_mov_b32 exec_hi, 0
ds_read_b128 v[16:19], v13
s_waitcnt lgkmcnt(0)
buffer_store_dwordx4 v[16:19], v9, s[40:43], s44 offen sc1
s_mov_b32 exec_hi, -1
""")
        e("""
s_mov_b32 s48, s24
s_mov_b32 s49, s25
s_mov_b32 s50, 256
s_mov_b32 s51, 0x00020000
s_cmp_ge_u32 s31, 8
s_cbranch_scc1 L_cm_noclr
s_mov_b32 exec_hi, 0
buffer_store_dwordx4 v[4:7], v9, s[40:43], s44 offen sc1
s_mov_b32 exec_hi, -1
s_add_u32 s52, s52, %d
""" % SH_BASE)
        for i in range(share // 1024):
            e("buffer_store_dwordx4 v[4:7], v8, s[40:43], s52 offen offset:%d sc1" % ((i % 4) * 1024))
            if i % 4 == 3:
                e("s_add_u32 s52, s52, 4096")
        rem = (share % 1024) // 16
        e("s_mov_b32 exec_hi, 0x%x" % ((1 << (rem - 32)) - 1))
        e("buffer_store_dwordx4 v[4:7], v8, s[40:43], s52 offen offset:%d sc1" % (((share // 1024) % 4) * 1024))
        e("""
s_lshr_b32 s46, s44, 5
v_mov_b32 v10, 1
v_mov_b32 v11, 0
s_mov_b64 exec, 1
s_waitcnt vmcnt(0)
buffer_store_dword v10, v11, s[48:51], s46 offen sc1
s_mov_b64 exec, -1
""")
        self.stamp(7)
        c_store()
        self.label("L_cm_noclr")
        e("s_mov_b32 s47, %d\ns_cmp_ge_u32 s31, 26\ns_cselect_b32 s47, %d, s47\nv_mov_b32 v15, %d" % (self.qpos - self.fgap, P_K + self.qposd - self.fgap, FULL))
        self.wait_lds("v15", "s46", "s47", "v14", cached=False, sleep=4)
        self.stamp(8)
        L = self.lab("Lfl")
        D = self.lab("Lfld")
        e("s_mov_b32 s59, %d\ns_mov_b32 s46, 1" % self.spin)
        self.label(L)
        e("""
buffer_load_dword v14, v12, s[48:51], 0 offen sc1
s_waitcnt vmcnt(0)
v_cmp_ne_u32 vcc, s46, v14
s_cbranch_vccz %s
s_sleep 16
s_sub_u32 s59, s59, 1
s_cmp_lg_u32 s59, 0
s_cbranch_scc1 %s
""" % (D, L))
        if "nofl" in self.abl:
            del self.o[-8:]
        self.label(D)
        self.stamp(0)
        self.rawstamp(9, "s59")
        e("s_cmp_lt_u32 s31, 8\ns_cbranch_scc1 L_cm_nocs\ns_cmp_ge_u32 s31, 26\ns_cbranch_scc1 L_cm_nocs")
        c_store()
        self.label("L_cm_nocs")
        if "comm_fl" in self.abl:
            self.set_flag(FLAG_Q, 21, 22)
            self.set_flag(FLAG_H, 21, 22)
            self.set_flag(FLAG_SC, 21, 22)
            e("s_endpgm")
        e("s_add_u32 s47, s47, %d" % self.fgap)
        self.wait_lds("v15", "s46", "s47", "v14", cached=False, sleep=4)
        e("""
s_mul_i32 s46, s34, %d
s_lshl_b32 s47, s32, 9
s_add_u32 s46, s46, s47
s_mov_b32 exec_hi, 0
""" % CQ_STRIDE)
        if "noq" not in self.abl:
            self.gather(["buffer_load_dwordx4 v[16:19], v8, s[40:43], s46 offen sc1"], [16, 17, 18, 19], 20)
        e("v_add_u32 v21, %d, v8\nds_write_b128 v21, v[16:19]\ns_waitcnt lgkmcnt(0)" % QL)
        self.set_flag(FLAG_Q, 21, 22)
        self.stamp(1)
        self.rawstamp(10, "s59")
        if "comm_q" in self.abl:
            self.set_flag(FLAG_H, 21, 22)
            self.set_flag(FLAG_SC, 21, 22)
            e("s_endpgm")
        e("s_cmp_lt_u32 s31, 26\ns_cbranch_scc1 L_cm_noh")
        for i in range(3):
            e("""
v_add_u32 v16, %d, v0
v_mul_u32_u24 v17, 1821, v16
v_lshrrev_b32 v17, 16, v17
v_mul_u32_u24 v18, 36, v17
v_sub_u32 v18, v16, v18
v_mul_u32_u24 v19, %d, v17
v_lshl_add_u32 v%d, v18, 4, v19
v_mul_u32_u24 v19, %d, v17
v_lshrrev_b32 v20, 2, v18
v_lshl_add_u32 v19, v20, 6, v19
v_and_b32 v20, 1, v18
v_lshl_add_u32 v19, v20, 5, v19
v_bfe_u32 v20, v18, 1, 1
v_lshl_add_u32 v19, v20, 3, v19
v_add_u32 v%d, %d, v19
""" % (64 * i, CGU_STRIDE, 24 + i, H_STRIDE, 27 + i, XN))
        e("""
v_cmp_gt_u32 vcc, 16, v0
s_nop 1
v_cndmask_b32 v26, v24, v26, vcc
v_cndmask_b32 v29, v27, v29, vcc
s_sub_u32 s46, s37, 16
s_mul_i32 s46, s46, 576
s_add_u32 s47, s46, %d
s_add_u32 s46, s46, %d
""" % (WS_CGU + 9216, WS_CGU))
        self.wait_lds("v15", "s48", str(P_K + self.hpos), "v14", cached=False, sleep=4)
        loads = []
        for i in range(3):
            loads.append("buffer_load_dwordx4 v[%d:%d], v%d, s[40:43], s46 offen sc1" % (48 + 4 * i, 51 + 4 * i, 24 + i))
            loads.append("buffer_load_dwordx4 v[%d:%d], v%d, s[40:43], s47 offen sc1" % (60 + 4 * i, 63 + 4 * i, 24 + i))
        self.gather(loads, [r for i in range(3) for r in list(range(48 + 4 * i, 52 + 4 * i)) + list(range(60 + 4 * i, 64 + 4 * i))], 72)
        c0 = -2.0 * LOG2E * 0.7978845608028654
        e("s_mov_b32 s46, %s\ns_mov_b32 s47, %s\ns_mov_b32 s56, 0xffff0000" % (f32(c0), f32(c0 * 0.044715)))
        e("v_mov_b32 v20, s46")
        for r in range(12):
            g = 48 + r
            u = 60 + r
            e("""
v_lshlrev_b32 v16, 16, v%(g)d
v_and_b32 v17, s56, v%(g)d
v_mul_f32 v18, v16, v16
v_mul_f32 v19, v17, v17
v_fma_f32 v18, v18, s47, v20
v_fma_f32 v19, v19, s47, v20
v_mul_f32 v18, v18, v16
v_mul_f32 v19, v19, v17
v_exp_f32 v18, v18
v_exp_f32 v19, v19
s_nop 0
v_add_f32 v18, 1.0, v18
v_add_f32 v19, 1.0, v19
v_rcp_f32 v18, v18
v_rcp_f32 v19, v19
s_nop 0
v_mul_f32 v18, v18, v16
v_mul_f32 v19, v19, v17
v_cvt_pk_bf16_f32 v18, v18, v19
v_lshlrev_b32 v16, 16, v%(u)d
v_and_b32 v17, s56, v%(u)d
v_and_b32 v19, s56, v18
v_lshlrev_b32 v18, 16, v18
v_mul_f32 v18, v18, v16
v_mul_f32 v19, v19, v17
v_cvt_pk_bf16_f32 v%(g)d, v18, v19
""" % dict(g=g, u=u))
        for i in range(3):
            e("ds_write2_b64 v%d, v[%d:%d], v[%d:%d] offset0:0 offset1:2" % (27 + i, 48 + 4 * i, 49 + 4 * i, 50 + 4 * i, 51 + 4 * i))
        e("s_waitcnt lgkmcnt(0)")
        self.set_flag(FLAG_H, 21, 22)
        self.label("L_cm_noh")
        e("v_mov_b32 v16, %d" % CNT_STAT)
        self.wait_lds("v16", "s46", "4", "v17", cached=False, sleep=2)
        self.stamp(2)
        e("""
v_and_b32 v16, 7, v0
v_lshlrev_b32 v16, 3, v16
v_add_u32 v17, %d, v16
ds_read_b64 v[18:19], v17
s_mov_b32 s56, %s
v_and_b32 v27, 1, v0
v_lshlrev_b32 v27, 4, v27
v_bfe_u32 v28, v0, 1, 2
v_lshl_add_u32 v27, v28, 2, v27
v_add_u32 v27, %d, v27
s_waitcnt lgkmcnt(0)
v_max_f32_dpp v20, v18, v18 row_ror:2 row_mask:0xf bank_mask:0xf
s_nop 1
v_max_f32_dpp v20, v20, v20 row_ror:4 row_mask:0xf bank_mask:0xf
v_sub_f32 v22, v18, v20
v_mul_f32 v22, s56, v22
v_exp_f32 v22, v22
s_nop 0
v_mul_f32 v21, v22, v19
ds_write_b32 v27, v22
s_nop 0
v_add_f32_dpp v21, v21, v21 row_ror:2 row_mask:0xf bank_mask:0xf
s_nop 1
v_add_f32_dpp v21, v21, v21 row_ror:4 row_mask:0xf bank_mask:0xf
s_lshl_b32 s47, s45, 6
s_add_u32 s47, s47, %d
s_mov_b64 exec, 0xff
buffer_store_dwordx2 v[20:21], v16, s[40:43], s47 offen sc1
s_mov_b64 exec, -1
s_waitcnt lgkmcnt(0)
""" % (STW, f32(LOG2E), SC, WS_ST))
        self.set_flag(FLAG_SC, 23, 24)
        self.stamp(3)
        self.flush_stamps([(0, 4), (1, 5), (2, 6), (3, 7), (7, 16), (8, 17), (9, 18), (10, 19)])
        e("s_endpgm")

    def tlb_warm(self):
        e = self.e
        e("""
s_lshl_b32 s52, s33, 21
s_add_u32 s52, s52, 0x180000
s_lshl_b32 s53, s35, 17
s_add_u32 s52, s52, s53
s_load_dword s78, s[6:7], s52
s_load_dword s78, s[8:9], s52
s_cmp_ge_u32 s31, 26
s_cbranch_scc1 L_tw_dn
s_cmp_lt_u32 s31, 17
s_cselect_b32 s60, s16, s18
s_cselect_b32 s61, s17, s19
s_cmp_lt_u32 s31, 8
s_cselect_b32 s60, s10, s60
s_cselect_b32 s61, s11, s61
s_mov_b32 s53, 0x180000
s_load_dword s78, s[60:61], s53
s_mov_b32 s53, 0x300000
s_load_dword s78, s[60:61], s53
s_mov_b32 s53, 0x47ff00
s_load_dword s78, s[60:61], s53
s_cbranch_scc1 L_tw_end
s_mul_i32 s53, s37, 294912
s_load_dword s78, s[12:13], s53
s_add_u32 s53, s53, 294000
s_load_dword s78, s[12:13], s53
s_branch L_tw_end
L_tw_dn:
s_sub_u32 s53, s37, 16
s_mul_i32 s53, s53, 331776
s_load_dword s78, s[20:21], s53
s_add_u32 s53, s53, 331000
s_load_dword s78, s[20:21], s53
L_tw_end:
""")

    def ct_id(self):
        self.e("""
s_lshl_b32 s44, s30, 3
s_add_u32 s44, s44, s31
s_mul_i32 s46, s30, 9
s_add_u32 s46, s46, s31
s_add_u32 s47, s46, 56
s_add_u32 s46, s46, 119
s_cmp_lt_u32 s31, 17
s_cselect_b32 s46, s47, s46
s_cmp_lt_u32 s31, 8
s_cselect_b32 s44, s44, s46
""")

    def free_write(self, sval):
        self.e("s_mov_b64 exec, 1\nv_mov_b32 v4, %s\nds_write_b32 v3, v4\ns_mov_b64 exec, -1" % sval)

    def cons(self):
        e = self.e
        self.label("L_cons")
        if self.stamps:
            for k in range(15):
                e("s_mov_b64 s[%d:%d], 0" % (self.sreg(k), self.sreg(k) + 1))
        if "perm" in self.abl:
            e("s_min_u32 s36, s36, 4\ns_add_u32 s36, s36, 1")
        e("""
s_sub_u32 s36, s36, 2
v_mov_b32 v2, %d
s_lshl_b32 s44, s36, 2
s_add_u32 s44, s44, %d
v_mov_b32 v3, s44
s_mov_b32 s50, 0
v_and_b32 v8, 15, v0
v_lshrrev_b32 v9, 4, v0
v_lshrrev_b32 v10, 2, v0
v_and_b32 v11, 3, v0
s_mov_b32 s56, 0xffff0000
v_mul_u32_u24 v12, 1152, v9
v_lshl_add_u32 v12, v8, 4, v12
v_mov_b32 v13, 0x40000000
v_cmp_gt_u32 vcc, 8, v8
v_bfe_u32 v7, v0, 3, 2
v_lshlrev_b32 v7, 5, v7
v_cndmask_b32 v13, v13, v12, vcc
v_lshl_add_u32 v7, v10, 7, v7
v_lshl_add_u32 v7, v11, 3, v7
s_waitcnt lgkmcnt(0)
s_mov_b32 s60, s4
s_mov_b32 s61, s5
s_mov_b32 s62, 4608
s_mov_b32 s63, 0x00020000
""" % (FULL, FREE))
        self.ws_srd()
        if "nocons" in self.abl:
            e("s_barrier")
            self.free_write("0x10000")
            e("s_endpgm")
        if "conssleep" in self.abl or "consspin" in self.abl:
            e("s_barrier")
            self.free_write("0x10000")
            self.wait_lds("v2", "s50", "328", "v4", sleep=(32 if "conssleep" in self.abl else 0))
            e("s_endpgm")
        if "nocolc" in self.abl:
            e("s_branch L_cs_nocol")
        e("""
s_cmp_ge_u32 s31, 26
s_cbranch_scc1 L_cs_nocol
""")
        if "nox" not in self.abl:
            e("""
buffer_load_dwordx4 v[32:35], v12, s[60:63], 0 offen
buffer_load_dwordx4 v[36:39], v12, s[60:63], 0 offen offset:256
buffer_load_dwordx4 v[40:43], v12, s[60:63], 0 offen offset:512
buffer_load_dwordx4 v[44:47], v12, s[60:63], 0 offen offset:768
buffer_load_dwordx4 v[48:51], v13, s[60:63], 0 offen offset:1024
""")
        e("s_barrier")
        e("""
v_mul_u32_u24 v14, %d, v9
v_lshrrev_b32 v15, 2, v8
v_lshl_add_u32 v14, v15, 6, v14
v_and_b32 v15, 1, v8
v_lshl_add_u32 v14, v15, 5, v14
v_bfe_u32 v15, v8, 1, 1
v_lshl_add_u32 v14, v15, 3, v14
v_add_u32 v14, %d, v14
s_lshl_b32 s44, s36, 5
v_xor_b32 v15, s44, v7
v_mul_u32_u24 v16, %d, v11
v_lshl_add_u32 v16, v9, 4, v16
v_add_u32 v16, %d, v16
s_waitcnt vmcnt(0)
""" % (XN_STRIDE, XN, XN_STRIDE, XN))
        for k in range(20):
            e("v_lshlrev_b32 v%d, 16, v%d\nv_and_b32 v%d, s56, v%d" % (64 + 2 * k, 32 + k, 65 + 2 * k, 32 + k))
        e("v_add_f32 v52, v64, v65\nv_add_f32 v53, v66, v67")
        for k in range(2, 20):
            e("v_add_f32 v52, v52, v%d\nv_add_f32 v53, v53, v%d" % (64 + 2 * k, 65 + 2 * k))
        e("v_add_f32 v52, v52, v53")
        for ror in (8, 4, 2, 1):
            e("s_nop 1\nv_add_f32_dpp v52, v52, v52 row_ror:%d row_mask:0xf bank_mask:0xf" % ror)
        e("v_mul_f32 v52, %s, v52" % f32(1.0 / 576))
        e("v_cndmask_b32 v55, 0, v52, vcc")
        e("v_mov_b32 v53, 0\nv_mov_b32 v54, 0")
        for k in range(20):
            m = 55 if k >= 16 else 52
            e("v_sub_f32 v56, v%d, v%d\nv_sub_f32 v57, v%d, v%d\nv_fmac_f32 v53, v56, v56\nv_fmac_f32 v54, v57, v57" % (64 + 2 * k, m, 65 + 2 * k, m))
        e("v_add_f32 v53, v53, v54")
        for ror in (8, 4, 2, 1):
            e("s_nop 1\nv_add_f32_dpp v53, v53, v53 row_ror:%d row_mask:0xf bank_mask:0xf" % ror)
        e("""
v_mul_f32 v53, %s, v53
v_cvt_pk_bf16_f32 v52, v52, v53
v_and_b32 v53, s56, v52
v_lshlrev_b32 v52, 16, v52
v_add_f32 v53, %s, v53
v_cvt_pk_bf16_f32 v53, v53, v53
v_and_b32 v53, s56, v53
v_sqrt_f32 v53, v53
s_nop 0
v_cvt_pk_bf16_f32 v53, v53, v53
v_and_b32 v53, s56, v53
v_rcp_f32 v54, v53
""" % (f32(1.0 / 576), f32(1e-5)))
        for k in range(20):
            a, b = 64 + 2 * k, 65 + 2 * k
            e("""
v_sub_f32 v%(a)d, v%(a)d, v52
v_sub_f32 v%(b)d, v%(b)d, v52
v_cvt_pk_bf16_f32 v56, v%(a)d, v%(b)d
v_lshlrev_b32 v%(a)d, 16, v56
v_and_b32 v%(b)d, s56, v56
v_mul_f32 v57, v%(a)d, v54
v_mul_f32 v58, v%(b)d, v54
v_fma_f32 v%(a)d, -v57, v53, v%(a)d
v_fma_f32 v%(b)d, -v58, v53, v%(b)d
v_fmac_f32 v57, v%(a)d, v54
v_fmac_f32 v58, v%(b)d, v54
v_cvt_pk_bf16_f32 v%(d)d, v57, v58
""" % dict(a=a, b=b, d=32 + k))
        for t in range(4):
            e("ds_write2_b64 v14, v[%d:%d], v[%d:%d] offset0:%d offset1:%d" % (32 + 4 * t, 33 + 4 * t, 34 + 4 * t, 35 + 4 * t, 32 * t, 32 * t + 2))
        e("s_mov_b64 exec, vcc\nds_write2_b64 v14, v[48:49], v[50:51] offset0:128 offset1:130\ns_mov_b64 exec, -1")
        e("v_mov_b32 v20, 0\nv_mov_b32 v21, 0\nv_mov_b32 v22, 0\nv_mov_b32 v23, 0\ns_mov_b32 s51, 4")
        self.stamp(0)
        L = self.lab("Lcol")
        self.label(L)
        self.wait_lds("v2", "s50", "s51", "v4")
        e("""
ds_read_b64_tr_b16 v[24:25], v15
ds_read_b64_tr_b16 v[26:27], v15 offset:2048
ds_read_b128 v[28:31], v16
v_add_u32 v15, 4096, v15
v_add_u32 v16, 64, v16
s_add_u32 s51, s51, 4
s_cmp_le_u32 s51, %d
s_waitcnt lgkmcnt(0)
v_mfma_f32_16x16x32_bf16 v[20:23], v[24:27], v[28:31], v[20:23]
s_cbranch_scc1 %s
""" % (P_K, L))
        e("""
s_lshl_b32 s45, s36, 5
s_add_u32 s45, s45, %d
v_lshlrev_b32 v17, 7, v11
v_lshl_add_u32 v17, v9, 3, v17
v_add_u32 v17, s45, v17
v_mov_b32 v18, %d
v_mov_b32 v19, 1
s_nop 2
v_cvt_pk_bf16_f32 v24, v20, v21
v_cvt_pk_bf16_f32 v25, v22, v23
s_mov_b32 exec_lo, 0x000f000f
s_mov_b32 exec_hi, 0x000f000f
ds_write_b64 v17, v[24:25]
s_mov_b64 exec, 1
ds_add_u32 v18, v19
s_mov_b64 exec, -1
s_branch L_cs_k
L_cs_nocol:
s_barrier
L_cs_k:
""" % (OB, CNT_C))
        self.stamp(1)
        if "colonly" in self.abl:
            self.free_write("0x10000")
            e("s_endpgm")
        e("""
v_and_b32 v5, 7, v0
v_lshlrev_b32 v5, 1, v5
v_xor_b32 v5, v5, v9
v_lshlrev_b32 v5, 4, v5
v_lshl_add_u32 v5, v8, 8, v5
v_and_b32 v6, 7, v10
v_lshlrev_b32 v6, 5, v6
v_lshl_add_u32 v6, v10, 8, v6
v_lshl_add_u32 v6, v11, 3, v6
s_lshl_b32 s52, s36, 2
s_add_u32 s51, s52, %d
s_lshl_b32 s53, s51, 10
""" % P_K)
        self.free_write("s51")

        def advance():
            e("s_add_u32 s51, s51, 16\ns_add_u32 s53, s53, 16384\ns_sub_u32 s54, s53, %d\ns_cmp_ge_u32 s53, %d\ns_cselect_b32 s53, s54, s53" % (RING_BYTES, RING_BYTES))

        for i in range(8):
            e("s_add_u32 s55, s51, 4")
            self.wait_lds("v2", "s50", "s55", "v4")
            r = 128 + 16 * i
            e("""
v_add_u32 v12, s53, v5
v_xor_b32 v13, 64, v12
v_xor_b32 v14, 0x80, v12
v_xor_b32 v15, 0xc0, v12
ds_read_b128 v[%d:%d], v12
ds_read_b128 v[%d:%d], v13
ds_read_b128 v[%d:%d], v14
ds_read_b128 v[%d:%d], v15
""" % (r, r + 3, r + 4, r + 7, r + 8, r + 11, r + 12, r + 15))
            advance()
            if i & 1:
                e("s_waitcnt lgkmcnt(0)")
                self.free_write("s51")
        self.stamp(2)
        e("v_mov_b32 v12, %d" % FLAG_Q)
        self.wait_lds("v12", "s54", "1", "v4", cached=False)
        e("""
v_and_b32 v12, 1, v0
v_lshlrev_b32 v12, 8, v12
v_lshl_add_u32 v12, v9, 4, v12
v_add_u32 v12, %d, v12
ds_read_b128 v[32:35], v12
ds_read_b128 v[36:39], v12 offset:64
ds_read_b128 v[40:43], v12 offset:128
ds_read_b128 v[44:47], v12 offset:192
s_mov_b32 s57, %s
s_mov_b32 s58, %s
s_waitcnt lgkmcnt(0)
""" % (QL, f32(128 ** -0.5), f32(LOG2E)))
        for s in range(4):
            for i in range(8):
                c = "0" if s == 0 else "v[%d:%d]" % (48 + 4 * i, 51 + 4 * i)
                e("v_mfma_f32_16x16x32_bf16 v[%d:%d], v[%d:%d], v[%d:%d], %s" % (48 + 4 * i, 51 + 4 * i, 128 + 16 * i + 4 * s, 131 + 16 * i + 4 * s, 32 + 4 * s, 35 + 4 * s, c))
        e("s_nop 1")
        for k in range(16):
            a, b = 48 + 2 * k, 49 + 2 * k
            e("""
v_cvt_pk_bf16_f32 v12, v%(a)d, v%(b)d
v_lshlrev_b32 v%(a)d, 16, v12
v_and_b32 v%(b)d, s56, v12
v_mul_f32 v%(a)d, s57, v%(a)d
v_mul_f32 v%(b)d, s57, v%(b)d
v_cvt_pk_bf16_f32 v12, v%(a)d, v%(b)d
v_lshlrev_b32 v%(a)d, 16, v12
v_and_b32 v%(b)d, s56, v12
""" % dict(a=a, b=b))
        e("v_max3_f32 v12, v48, v49, v50")
        for k in range(51, 79, 2):
            e("v_max3_f32 v12, v12, v%d, v%d" % (k, k + 1))
        e("""
v_max_f32 v12, v12, v79
v_mov_b32 v13, v12
s_nop 1
v_permlane16_swap_b32 v12, v13
s_nop 0
v_max_f32 v12, v12, v13
v_mov_b32 v13, v12
s_nop 1
v_permlane32_swap_b32 v12, v13
s_nop 0
v_max_f32 v12, v12, v13
""")
        for k in range(32):
            e("v_sub_f32 v%d, v%d, v12" % (48 + k, 48 + k))
        for k in range(32):
            e("v_mul_f32 v%d, s58, v%d" % (48 + k, 48 + k))
        for k in range(32):
            e("v_exp_f32 v%d, v%d" % (48 + k, 48 + k))
        e("v_add_f32 v13, v48, v49\nv_add_f32 v14, v50, v51")
        for k in range(52, 80, 2):
            e("v_add_f32 v13, v13, v%d\nv_add_f32 v14, v14, v%d" % (k, k + 1))
        for k in range(16):
            e("v_cvt_pk_bf16_f32 v%d, v%d, v%d" % (80 + k, 48 + 2 * k, 49 + 2 * k))
        e("""
v_add_f32 v13, v13, v14
v_mov_b32 v14, v13
s_nop 1
v_permlane16_swap_b32 v13, v14
s_nop 0
v_add_f32 v13, v13, v14
v_mov_b32 v14, v13
s_nop 1
v_permlane32_swap_b32 v13, v14
s_nop 0
v_add_f32 v13, v13, v14
s_lshl_b32 s54, s36, 4
s_add_u32 s54, s54, %d
v_lshlrev_b32 v14, 3, v0
v_add_u32 v14, s54, v14
s_mov_b64 exec, 3
ds_write_b64 v14, v[12:13]
s_mov_b64 exec, 1
v_mov_b32 v14, %d
v_mov_b32 v15, 1
s_waitcnt lgkmcnt(0)
ds_add_u32 v14, v15
s_mov_b64 exec, -1
""" % (STW, CNT_STAT))
        self.stamp(3)
        self.tile_ids()
        e("""
v_and_b32 v24, 1, v0
v_lshlrev_b32 v24, 9, v24
v_lshl_add_u32 v24, v9, 4, v24
s_lshl_b32 s54, s36, 10
s_add_u32 s54, s54, %d
v_add_u32 v24, s54, v24
v_mov_b32 v25, %d
v_mov_b32 v26, 1
v_lshlrev_b32 v27, 4, v0
v_add_u32 v28, %d, v27
v_lshrrev_b32 v29, 5, v0
v_lshlrev_b32 v29, 4, v29
v_add_u32 v29, %d, v29
s_lshl_b32 s49, s33, 2
s_add_u32 s49, s49, s35
s_lshl_b32 s49, s49, 10
s_add_u32 s49, s49, %d
v_mov_b32 v30, %d
""" % (OW, CNT_O, OW, SC, WS_OP, FLAG_SC))
        for i in range(4):
            fr = 128 + 32 * (i & 1)
            for h in range(2):
                e("s_add_u32 s55, s51, 4")
                if i == 3 and h == 1:
                    self.wait_lds("v30", "s54", "1", "v4", cached=False)
                    e("ds_read_b128 v[32:35], v29")
                self.wait_lds("v2", "s50", "s55", "v4")
                e("v_add_u32 v12, s53, v6")
                for t in range(8):
                    if t:
                        e("v_xor_b32 v%d, %d, v12" % (16 + t, 32 * t))
                for t in range(8):
                    e("ds_read_b64_tr_b16 v[%d:%d], v%d" % (fr + 4 * t + 2 * h, fr + 4 * t + 2 * h + 1, 16 + t if t else 12))
                advance()
            for t in range(8):
                e("s_waitcnt lgkmcnt(%d)" % (7 - t))
                c = "0" if i == 0 else "v[%d:%d]" % (96 + 4 * t, 99 + 4 * t)
                e("v_mfma_f32_16x16x32_bf16 v[%d:%d], v[%d:%d], v[%d:%d], %s" % (96 + 4 * t, 99 + 4 * t, fr + 4 * t, fr + 4 * t + 3, 80 + 4 * i, 83 + 4 * i, c))
            if i < 3:
                self.free_write("s51")
        if "nopost" in self.abl:
            self.free_write("0x10000")
            e("s_branch L_cs_end")
        e("""
s_mov_b32 exec_lo, 0x00030003
s_mov_b32 exec_hi, 0x00030003
v_mov_b32 v4, %d
""" % P_W)
        for t in range(8):
            if t == 6:
                e("s_nop 1")
            e("ds_write_b128 v24, v[%d:%d] offset:%d" % (96 + 4 * t, 99 + 4 * t, 64 * t))
        e("""
s_mov_b64 exec, 1
ds_add_rtn_u32 v16, v25, v26
ds_write_b32 v3, v4
s_mov_b64 exec, -1
s_waitcnt lgkmcnt(1)
v_readfirstlane_b32 s54, v16
s_cmp_lg_u32 s54, 3
s_cbranch_scc1 L_cs_nolast
ds_read_b128 v[96:99], v28
ds_read_b128 v[100:103], v28 offset:1024
ds_read_b128 v[104:107], v28 offset:2048
ds_read_b128 v[108:111], v28 offset:3072
s_waitcnt lgkmcnt(3)
""")
        for k in range(4):
            e("v_mul_f32 v%d, v%d, v32" % (96 + k, 96 + k))
        for w in range(1, 4):
            e("s_waitcnt lgkmcnt(%d)" % (3 - w))
            for k in range(4):
                e("v_fmac_f32 v%d, v%d, v%d" % (96 + k, 96 + 4 * w + k, 32 + w))
        e("buffer_store_dwordx4 v[96:99], v27, s[40:43], s49 offen sc1")
        self.stamp(10)
        self.label("L_cs_nolast")
        self.stamp(4)
        e("""
s_cmp_lt_u32 s31, 8
s_cbranch_scc1 L_cs_red
s_cmp_ge_u32 s31, 26
s_cbranch_scc1 L_cs_down
""")
        if "notile" in self.abl:
            e("s_branch L_cs_end")
        ringw = (P_W % RING_KB) * 1024
        e("""
v_lshlrev_b32 v20, 16, v9
v_lshl_add_u32 v20, v8, 4, v20
v_lshlrev_b32 v22, 12, v9
v_lshl_add_u32 v22, v11, 6, v22
s_lshl_b32 s46, s37, 12
s_lshl_b32 s47, s36, 8
s_add_u32 s46, s46, s47
s_add_u32 s46, s46, %d
s_lshl_b32 s47, s37, 8
s_lshr_b32 s48, s36, 1
s_lshl_b32 s48, s48, 3
s_add_u32 s47, s47, s48
s_add_u32 s47, s47, %d
s_lshl_b32 s54, s36, 13
s_add_u32 s54, s54, %d
v_add_u32 v12, s54, v7
v_xor_b32 v13, 32, v12
v_xor_b32 v14, 64, v12
v_xor_b32 v15, 0x60, v12
s_lshl_b32 s55, s36, 3
s_add_u32 s55, s55, %d
v_lshlrev_b32 v24, 8, v11
v_lshl_add_u32 v24, v9, 4, v24
s_lshl_b32 s54, s36, 10
s_add_u32 s54, s54, %d
v_add_u32 v24, s54, v24
v_mov_b32 v25, %d
v_add_u32 v28, %d, v27
v_mul_u32_u24 v29, 2304, v9
v_lshl_add_u32 v29, v8, 4, v29
s_mul_i32 s44, s37, %d
s_lshl_b32 s45, s38, 8
s_add_u32 s44, s44, s45
s_add_u32 s44, s44, %d
s_lshl_b32 s54, s36, 9
s_add_u32 s54, s54, %d
v_lshlrev_b32 v21, 7, v9
v_bfe_u32 v16, v0, 3, 1
v_lshl_add_u32 v21, v16, 6, v21
v_lshl_add_u32 v21, v11, 4, v21
v_bfe_u32 v16, v0, 2, 1
v_lshl_add_u32 v21, v16, 3, v21
v_add_u32 v21, s54, v21
v_lshlrev_b32 v23, 7, v11
v_lshl_add_u32 v23, v9, 4, v23
v_add_u32 v23, s54, v23
""" % (WS_OP, WS_ST, ringw, P_W + 8, RW, CNT_P, RW, PART_ROW, WS_PART, OB))
        sloads = ["buffer_load_dwordx2 v[232:233], v22, s[40:43], s47 offen sc1"]
        loads = ["buffer_load_dwordx4 v[%d:%d], v20, s[40:43], s46 offen offset:%d sc1" % (216 + 4 * k, 219 + 4 * k, 1024 * k) for k in range(4)]
        self.gather(sloads, [232, 233], 16, sleep=2)
        e("""
v_max_f32_dpp v16, v232, v232 quad_perm:[1,0,3,2] row_mask:0xf bank_mask:0xf
s_nop 1
v_max_f32_dpp v16, v16, v16 quad_perm:[2,3,0,1] row_mask:0xf bank_mask:0xf
v_sub_f32 v232, v232, v16
v_mul_f32 v232, s58, v232
v_exp_f32 v232, v232
s_nop 0
v_mul_f32 v16, v232, v233
s_nop 1
v_add_f32_dpp v16, v16, v16 quad_perm:[1,0,3,2] row_mask:0xf bank_mask:0xf
s_nop 1
v_add_f32_dpp v16, v16, v16 quad_perm:[2,3,0,1] row_mask:0xf bank_mask:0xf
v_rcp_f32 v16, v16
s_nop 0
v_mul_f32 v232, v232, v16
""")
        for g in self.gpos:
            self.wait_lds("v2", "s50", str(P_W + g), "v4")
            for l in loads:
                e(l)
        self.stamp(8)
        self.wait_lds("v2", "s50", "s55", "v4")
        for s in range(2):
            for q in range(4):
                r = 128 + 16 * s + 4 * q
                e("ds_read_b64_tr_b16 v[%d:%d], v%d offset:%d" % (r, r + 1, 12 + q, 4096 * s))
                e("ds_read_b64_tr_b16 v[%d:%d], v%d offset:%d" % (r + 2, r + 3, 12 + q, 4096 * s + 2048))
        Lo = self.lab("Lgo")
        Dn = self.lab("Lgod")
        e("s_mov_b32 s59, %d" % self.spin)
        self.label(Lo)
        e("s_waitcnt vmcnt(%d)" % (4 * (len(self.gpos) - 1)))
        e("v_max3_u32 v36, v216, v217, v218\nv_max3_u32 v37, v219, v220, v221")
        for i, r in enumerate(range(222, 232, 2)):
            e("v_max3_u32 v%d, v%d, v%d, v%d" % (36 + (i & 1), 36 + (i & 1), r, r + 1))
        e("v_max_u32 v36, v36, v37\nv_cmp_eq_u32 vcc, -1, v36\ns_cbranch_vccz %s" % Dn)
        e("s_mov_b64 exec, vcc")
        for l in loads:
            e(l)
        e("s_mov_b64 exec, -1\ns_sub_u32 s59, s59, 1\ns_cmp_lg_u32 s59, 0\ns_cbranch_scc1 %s" % Lo)
        self.label(Dn)
        self.stamp(5)
        self.rawstamp(7, "s59")
        for k in range(4):
            e("v_mul_f32_dpp v%d, v232, v%d quad_perm:[0,0,0,0] row_mask:0xf bank_mask:0xf" % (240 + k, 216 + k))
        for j in range(1, 4):
            for k in range(4):
                e("v_fmac_f32_dpp v%d, v232, v%d quad_perm:[%d,%d,%d,%d] row_mask:0xf bank_mask:0xf" % (240 + k, 216 + 4 * j + k, j, j, j, j))
        e("""
v_cvt_pk_bf16_f32 v244, v240, v241
v_cvt_pk_bf16_f32 v245, v242, v243
ds_write_b64 v21, v[244:245]
ds_read_b128 v[232:235], v23
ds_read_b128 v[236:239], v23 offset:64
""")
        e("s_waitcnt lgkmcnt(0)\ns_nop 0")
        for s in range(2):
            for q in range(4):
                r = 128 + 16 * s + 4 * q
                c = "0" if s == 0 else "v[%d:%d]" % (240 + 4 * q, 243 + 4 * q)
                e("v_mfma_f32_16x16x32_bf16 v[%d:%d], v[%d:%d], v[%d:%d], %s" % (240 + 4 * q, 243 + 4 * q, r, r + 3, 232 + 4 * s, 235 + 4 * s, c))
        e("""
s_mov_b32 exec_lo, 0x000f000f
s_mov_b32 exec_hi, 0x000f000f
s_nop 2
ds_write_b128 v24, v[240:243]
s_nop 0
ds_write_b128 v24, v[244:247] offset:64
s_nop 0
ds_write_b128 v24, v[248:251] offset:128
s_nop 0
ds_write_b128 v24, v[252:255] offset:192
s_mov_b64 exec, 1
ds_add_rtn_u32 v16, v25, v26
s_mov_b64 exec, -1
s_waitcnt lgkmcnt(0)
v_readfirstlane_b32 s54, v16
s_cmp_lg_u32 s54, 3
s_cbranch_scc1 L_cs_end
ds_read_b128 v[96:99], v28
ds_read_b128 v[100:103], v28 offset:1024
ds_read_b128 v[104:107], v28 offset:2048
ds_read_b128 v[108:111], v28 offset:3072
s_waitcnt lgkmcnt(2)
v_add_f32 v96, v96, v100
v_add_f32 v97, v97, v101
v_add_f32 v98, v98, v102
v_add_f32 v99, v99, v103
s_waitcnt lgkmcnt(0)
v_add_f32 v104, v104, v108
v_add_f32 v105, v105, v109
v_add_f32 v106, v106, v110
v_add_f32 v107, v107, v111
v_add_f32 v96, v96, v104
v_add_f32 v97, v97, v105
v_add_f32 v98, v98, v106
v_add_f32 v99, v99, v107
buffer_store_dwordx4 v[96:99], v29, s[40:43], s44 offen sc1
""")
        self.stamp(6)
        e("s_branch L_cs_end")
        self.label("L_cs_down")
        e("""
v_bfe_u32 v13, v0, 3, 2
v_mul_u32_u24 v14, 384, v10
v_lshl_add_u32 v14, v11, 3, v14
v_add_u32 v14, %d, v14
s_mul_i32 s54, s36, 3
v_xor_b32 v16, s54, v13
v_lshl_add_u32 v16, v16, 5, v14
s_add_u32 s54, s54, 1
v_xor_b32 v17, s54, v13
v_lshl_add_u32 v17, v17, 5, v14
s_add_u32 s54, s54, 1
v_xor_b32 v18, s54, v13
v_lshl_add_u32 v18, v18, 5, v14
v_mul_u32_u24 v12, 5462, v0
v_lshrrev_b32 v12, 16, v12
v_mul_u32_u24 v19, 12, v12
v_sub_u32 v19, v0, v19
v_mul_u32_u24 v12, 2304, v12
v_lshl_add_u32 v19, v19, 4, v12
s_mov_b32 s46, %d
s_cmp_lt_u32 s36, 2
s_cselect_b32 s46, %d, s46
s_mul_i32 s45, s36, 768
s_add_u32 s45, s45, s46
v_mul_u32_u24 v21, 192, v11
v_lshl_add_u32 v21, v9, 4, v21
v_add_u32 v21, s45, v21
v_add_u32 v22, s45, v27
s_mul_i32 s44, s37, %d
s_mul_i32 s45, s38, 768
s_add_u32 s44, s44, s45
s_mul_i32 s45, s36, 192
s_add_u32 s44, s44, s45
s_add_u32 s44, s44, %d
v_mov_b32 v12, %d
""" % (ringw, XN + 2304 - 1536, OB, PART_ROW, WS_PART, FLAG_H))
        self.wait_lds("v12", "s54", "1", "v4", cached=False)
        e("""
v_mul_u32_u24 v20, %d, v11
v_lshl_add_u32 v20, v9, 4, v20
v_add_u32 v20, %d, v20
s_mov_b32 s51, %d
""" % (H_STRIDE, XN, P_W + 12))
        for k in range(12):
            e("v_mov_b32 v%d, 0" % (240 + k))
        L = self.lab("Ldn")
        self.label(L)
        self.wait_lds("v2", "s50", "s51", "v4")
        e("ds_read_b128 v[232:235], v20")
        for q in range(3):
            r = 192 + 4 * q
            e("ds_read_b64_tr_b16 v[%d:%d], v%d" % (r, r + 1, 16 + q))
            e("ds_read_b64_tr_b16 v[%d:%d], v%d offset:6144" % (r + 2, r + 3, 16 + q))
        e("v_add_u32 v20, 64, v20")
        for q in range(3):
            e("v_add_u32 v%d, 12288, v%d" % (16 + q, 16 + q))
        e("s_add_u32 s51, s51, 12\ns_cmp_le_u32 s51, %d" % (P_W + 108))
        for q in range(3):
            r = 192 + 4 * q
            e("s_waitcnt lgkmcnt(%d)" % (4 - 2 * q))
            e("v_mfma_f32_16x16x32_bf16 v[%d:%d], v[%d:%d], v[232:235], v[%d:%d]" % (240 + 4 * q, 243 + 4 * q, r, r + 3, 240 + 4 * q, 243 + 4 * q))
        e("s_cbranch_scc1 %s" % L)
        e("""
s_mov_b32 exec_lo, 0x000f000f
s_mov_b32 exec_hi, 0x000f000f
s_nop 4
ds_write_b128 v21, v[240:243]
s_nop 0
ds_write_b128 v21, v[244:247] offset:64
s_nop 0
ds_write_b128 v21, v[248:251] offset:128
s_mov_b32 exec_lo, -1
s_mov_b32 exec_hi, 0xffff
ds_read_b128 v[240:243], v22
s_waitcnt lgkmcnt(0)
buffer_store_dwordx4 v[240:243], v19, s[40:43], s44 offen sc1
""")
        self.stamp(6)
        e("s_branch L_cs_end")
        self.label("L_cs_red")
        if "nored" in self.abl:
            e("s_branch L_cs_end")
        e("""
s_lshl_b32 s44, s30, 3
s_add_u32 s44, s44, s31
s_lshl_b32 s45, s36, 6
s_add_u32 s44, s44, s45
s_cmp_ge_u32 s44, 72
s_cbranch_scc1 L_cs_end
s_lshl_b32 s54, s44, 6
v_and_b32 v17, 7, v0
v_lshlrev_b32 v42, 3, v17
buffer_load_dwordx2 v[40:41], v42, s[60:63], s54 offen
v_bfe_u32 v16, v0, 3, 2
v_lshrrev_b32 v18, 5, v0
v_lshl_add_u32 v16, v18, 4, v16
v_mul_u32_u24 v16, %d, v16
v_lshl_add_u32 v16, v17, 4, v16
s_lshl_b32 s44, s44, 7
s_add_u32 s44, s44, %d
s_add_u32 s45, s44, %d
s_add_u32 s46, s45, %d
s_add_u32 s47, s46, %d
s_mov_b32 s57, %s
s_mov_b32 s60, s22
s_mov_b32 s61, s23
""" % (PART_ROW, WS_PART, 4 * PART_ROW, 4 * PART_ROW, 4 * PART_ROW, f32(-LOG2E)))
        self.stamp(8)
        loads = ["buffer_load_dwordx4 v[%d:%d], v16, s[40:43], s%d offen sc1" % (48 + 4 * k, 51 + 4 * k, 44 + k) for k in range(4)]
        Lp = self.lab("Lpr")
        Lq = self.lab("Lprd")
        e("s_mov_b32 s59, %d\ns_mov_b32 exec_lo, 1\ns_mov_b32 exec_hi, 1" % self.spin)
        self.label(Lp)
        e("""
buffer_load_dword v48, v16, s[40:43], s44 offen sc1
buffer_load_dword v56, v16, s[40:43], s46 offen sc1
s_waitcnt vmcnt(0)
v_min_u32 v64, v48, v56
v_cmp_ne_u32 vcc, -1, v64
s_cbranch_vccnz %s
s_sleep %d
s_sub_u32 s59, s59, 1
s_cmp_lg_u32 s59, 0
s_cbranch_scc1 %s
""" % (Lq, self.isleep, Lp))
        self.label(Lq)
        e("""
s_mov_b64 exec, -1
v_lshlrev_b32 v76, 16, v40
v_and_b32 v77, s56, v40
v_lshlrev_b32 v78, 16, v41
v_and_b32 v79, s56, v41
""")
        if self.pipe:
            self.gather_pipe(loads, list(range(48, 64)), 64, depth=self.pipe)
        else:
            self.gather(loads, list(range(48, 64)), 64, sleep=self.tsleep)
        self.stamp(5)
        self.rawstamp(7, "s59")
        for k in range(4):
            e("v_add_f32 v%d, v%d, v%d" % (64 + k, 48 + k, 52 + k))
        for k in range(4):
            e("v_add_f32 v%d, v%d, v%d" % (68 + k, 56 + k, 60 + k))
        for k in range(4):
            e("v_add_f32 v%d, v%d, v%d" % (64 + k, 64 + k, 68 + k))
        for k in range(4):
            e("v_add_f32_dpp v%d, v%d, v%d row_ror:8 row_mask:0xf bank_mask:0xf" % (64 + k, 64 + k, 64 + k))
        for k in range(4):
            e("v_mov_b32 v%d, v%d" % (68 + k, 64 + k))
        e("s_nop 0")
        for k in range(4):
            e("v_permlane16_swap_b32 v%d, v%d" % (64 + k, 68 + k))
        for k in range(4):
            e("v_add_f32 v%d, v%d, v%d" % (64 + k, 64 + k, 68 + k))
        e("""
v_cvt_pk_bf16_f32 v68, v64, v65
v_cvt_pk_bf16_f32 v69, v66, v67
v_lshlrev_b32 v64, 16, v68
v_and_b32 v65, s56, v68
v_lshlrev_b32 v66, 16, v69
v_and_b32 v67, s56, v69
""")
        for k in range(4):
            e("v_mul_f32 v%d, s57, v%d" % (72 + k, 64 + k))
        for k in range(4):
            e("v_exp_f32 v%d, v%d" % (72 + k, 72 + k))
        for k in range(4):
            e("v_add_f32 v%d, 1.0, v%d" % (72 + k, 72 + k))
        for k in range(4):
            e("v_rcp_f32 v%d, v%d" % (72 + k, 72 + k))
        for k in range(4):
            e("v_mul_f32 v%d, v%d, v%d" % (72 + k, 72 + k, 64 + k))
        e("""
v_cvt_pk_bf16_f32 v68, v72, v73
v_cvt_pk_bf16_f32 v69, v74, v75
s_nop 1
v_permlane32_swap_b32 v70, v68
v_permlane32_swap_b32 v71, v69
s_nop 0
""")
        self.o[-3] = "    v_permlane32_swap_b32 v68, v70"
        self.o[-2] = "    v_permlane32_swap_b32 v69, v71"
        e("""
v_lshlrev_b32 v72, 16, v70
v_and_b32 v73, s56, v70
v_lshlrev_b32 v74, 16, v71
v_and_b32 v75, s56, v71
""")
        for k in range(4):
            e("v_mul_f32 v%d, v%d, v%d" % (64 + k, 64 + k, 72 + k))
        e("""
v_cvt_pk_bf16_f32 v68, v64, v65
v_cvt_pk_bf16_f32 v69, v66, v67
v_lshlrev_b32 v64, 16, v68
v_and_b32 v65, s56, v68
v_lshlrev_b32 v66, 16, v69
v_and_b32 v67, s56, v69
v_add_f32 v64, v64, v76
v_add_f32 v65, v65, v77
v_add_f32 v66, v66, v78
v_add_f32 v67, v67, v79
v_cvt_pk_bf16_f32 v68, v64, v65
v_cvt_pk_bf16_f32 v69, v66, v67
s_mov_b64 exec, 0xff
buffer_store_dwordx2 v[68:69], v42, s[60:63], s54 offen%s
""" % self.outflag)
        self.stamp(6)
        self.label("L_cs_end")
        if self.stamps:
            e("s_waitcnt vmcnt(0)")
            self.stamp(9)
            self.flush_stamps([(4, 32), (10, 33), (8, 34), (5, 35), (6, 36), (9, 37), (7, 38)], wave_off=True)
            e("s_cmp_lg_u32 s36, 0\ns_cbranch_scc1 L_end")
            self.flush_stamps([(0, 11), (1, 12), (2, 13), (3, 14), (4, 8), (5, 15), (7, 22), (8, 23), (6, 24), (9, 10)])
        self.label("L_end")
        e("s_endpgm")
        self.label("L_code_end")

    def build(self):
        hdr = open("cdna_kernels/%s.s.ref" % KN).read().split("\n")
        head = []
        for l in hdr:
            if l.startswith("; @launch"):
                break
            head.append(l)
        head.append("; @launch grid=(256,1,1) block=(384,1,1) lds=%d" % LDS_TOTAL)
        head += ['.amdgcn_target "amdgcn-amd-amdhsa--gfx950"', ".text", ".globl %s_kernel" % KN, ".p2align 8",
                 ".type %s_kernel,@function" % KN, "%s_kernel:" % KN]
        self.prologue()
        self.loader()
        self.comm()
        self.cons()
        tail = """.section .rodata,"a"
.p2align 6
.amdhsa_kernel %s_kernel
  .amdhsa_next_free_vgpr 256
  .amdhsa_next_free_sgpr 102
  .amdhsa_accum_offset 256
  .amdhsa_group_segment_fixed_size 0
  .amdhsa_kernarg_size 96
  .amdhsa_user_sgpr_count 2
  .amdhsa_user_sgpr_kernarg_segment_ptr 1
  .amdhsa_system_sgpr_workgroup_id_x 1
.end_amdhsa_kernel
""" % KN
        return "\n".join(head + self.o) + "\n" + tail


if __name__ == "__main__":
    import argparse
    ap = argparse.ArgumentParser()
    ap.add_argument("out")
    ap.add_argument("--stamps", action="store_true")
    ap.add_argument("--W", type=int, default=20)
    ap.add_argument("--nont", action="store_true")
    ap.add_argument("--tsleep", type=int, default=1)
    ap.add_argument("--csleep", type=int, default=0)
    ap.add_argument("--abl", type=str, default="")
    ap.add_argument("--gearly", type=int, default=-16)
    ap.add_argument("--isleep", type=int, default=4)
    ap.add_argument("--Wlate", type=int, default=0)
    ap.add_argument("--pipe", type=int, default=3)
    ap.add_argument("--adapt", action="store_true")
    ap.add_argument("--wlevels", type=str, default="16,20,24,28")
    ap.add_argument("--wthr", type=str, default="-20,20,55")
    ap.add_argument("--outflag", type=str, default="")
    ap.add_argument("--gpos", type=str, default="28")
    ap.add_argument("--Wc3", type=int, default=0)
    ap.add_argument("--Wcol", type=int, default=0)
    ap.add_argument("--ilv", type=int, default=0)
    ap.add_argument("--cpf", type=int, default=0)
    ap.add_argument("--wrole", type=str, default="20,22,22,24")
    ap.add_argument("--qpos", type=int, default=120)
    ap.add_argument("--qposd", type=int, default=130)
    ap.add_argument("--noprobe", action="store_true")
    ap.add_argument("--wsoff", type=lambda x: int(x, 0), default=0)
    a = ap.parse_args()
    open(a.out, "w").write(Gen(W=a.W, stamps=a.stamps, nt=not a.nont, tsleep=a.tsleep, csleep=a.csleep, abl=a.abl.split(","), gearly=a.gearly, isleep=a.isleep, wsoff=a.wsoff, qpos=a.qpos, qposd=a.qposd, probe=not a.noprobe, Wlate=a.Wlate, pipe=a.pipe, wrole=tuple(int(x) for x in a.wrole.split(",")), cpf=a.cpf, ilv=a.ilv, Wc3=a.Wc3, Wcol=a.Wcol, gpos=tuple(int(x) for x in a.gpos.split(",")), outflag=(" " + a.outflag.replace("_", " ") if a.outflag else ""), adapt=a.adapt, wlevels=tuple(int(x) for x in a.wlevels.split(",")), wthr=tuple(int(x) for x in a.wthr.split(","))).build())
```

```python
import sys, struct

KN = "recurrent_scan__sliding_block_cached__geglu_ffn__decode"

RING_KB = 148
RING_BYTES = RING_KB * 1024
AUX = RING_BYTES
XN = AUX
XN_STRIDE = 1216
H_STRIDE = 576
QL = AUX + 4864
OW = AUX + 5376
FULL = AUX + 9472
FREE = AUX + 9728
STW = AUX + 9744
SC = AUX + 9808
CNT_STAT = AUX + 9840
CNT_O = AUX + 9844
FLAG_Q = AUX + 9848
FLAG_H = AUX + 9852
FLAG_SC = AUX + 9856
CNT_P = AUX + 9860
CNT_C = AUX + 9864
FLAG_CLR = AUX + 9868
WCLS = AUX + 9872
OB = AUX + 9984
LDS_TOTAL = AUX + 9984 + 2048

WS_CQ = 0
CQ_STRIDE = 8192
WS_CGU = 0x8000
CGU_STRIDE = 18432
SH_BASE = 0x8000
WS_ST = 0x1A000
WS_OP = 0x1E000
WS_PART = 0x5E000
PART_ROW = 9216
WS_SIZE = 0x5E000 + 32 * 9216
RW = XN

P_K, P_V, P_W = 72, 200, 328

def f32(x):
    return "0x%08x" % struct.unpack("<I", struct.pack("<f", x))[0]

LOG2E = 1.4426950408889634


class Gen:
    def __init__(self, W=20, stamps=False, nt=True, spin=1 << 16, sleep=True, tsleep=1, csleep=0, abl=(), gearly=-16, isleep=12, wsoff=0, qpos=120, qposd=130, probe=True, Wlate=None, gpos=(28,), npre=6, wrole=(20, 22, 22, 24), cpf=0, ilv=0, Wc3=0, Wcol=0, pipe=3, outflag="", adapt=False, wlevels=(16, 20, 24, 28), wthr=(-20, 20, 55)):
        self.o = []
        self.n = 0
        self.W = W
        self.npre = npre
        self.wrole = wrole
        self.cpf = cpf
        self.ilv = ilv
        self.Wc3 = Wc3
        self.Wcol = Wcol
        self.gpos = gpos
        self.outflag = outflag
        self.adapt = adapt
        self.wlevels = wlevels
        self.wthr = wthr
        self.pipe = pipe
        self.Wlate = Wlate or W
        self.stamps = stamps
        self.nt = " nt" if nt else ""
        self.spin = spin
        self.sleep = sleep
        self.qpos = qpos
        self.qposd = qposd
        self.fgap = 32
        self.mbase = 4
        self.hpos = 190
        self.probe = probe
        self.gearly = gearly
        self.wsoff = wsoff
        self.isleep = isleep
        self.tsleep = tsleep
        self.abl = set(abl)
        self.csleep = csleep

    def e(self, s):
        for line in s.strip("\n").split("\n"):
            self.o.append(line if line.rstrip().endswith(":") and not line.startswith(" ") else "    " + line.strip())

    def lab(self, p="L"):
        self.n += 1
        return "%s_%d" % (p, self.n)

    def label(self, l):
        self.o.append(l + ":")

    def sreg(self, k):
        return 70 + 2 * k if k < 10 else 92 + 2 * (k - 10)

    def stamp(self, k):
        if self.stamps:
            self.e("s_memrealtime s[%d:%d]" % (self.sreg(k), self.sreg(k) + 1))

    def rawstamp(self, k, expr_reg):
        if self.stamps:
            self.e("s_sub_u32 s%d, %d, %s\ns_mov_b32 s%d, 0" % (self.sreg(k), self.spin, expr_reg, self.sreg(k) + 1))

    def flush_stamps(self, items, wave_off=False):
        if not self.stamps:
            return
        self.e("""
s_waitcnt lgkmcnt(0)
s_add_u32 s64, s26, 0x10000000
s_addc_u32 s65, s27, 0
s_mov_b32 s66, 0x100000
s_mov_b32 s67, 0x00020000
s_mul_i32 s68, s2, 512
s_mov_b64 exec, 1
""")
        if wave_off:
            self.e("s_lshl_b32 s64, s36, 6\ns_add_u32 s68, s68, s64\ns_add_u32 s64, s26, 0x10000000")
        for k, slot in items:
            self.e("""
v_mov_b32 v250, s%d
v_mov_b32 v251, s%d
v_mov_b32 v252, %d
buffer_store_dwordx2 v[250:251], v252, s[64:67], s68 offen
s_nop 1
""" % (self.sreg(k), self.sreg(k) + 1, slot * 8))

    def wait_lds(self, vaddr, sreg, thr, vtmp, cached=True, sleep=0):
        l = self.lab("Lw")
        d = self.lab("Ld")
        if cached:
            self.e("s_cmp_ge_i32 %s, %s\ns_cbranch_scc1 %s" % (sreg, thr, d))
        self.label(l)
        self.e("ds_read_b32 %s, %s\ns_waitcnt lgkmcnt(0)\nv_readfirstlane_b32 %s, %s" % (vtmp, vaddr, sreg, vtmp))
        self.e("s_cmp_ge_i32 %s, %s\ns_cbranch_scc1 %s" % (sreg, thr, d))
        sleep = sleep or self.csleep
        if sleep:
            self.e("s_sleep %d" % sleep)
        self.e("s_sub_i32 s69, s69, 1\ns_cmp_gt_i32 s69, 0\ns_cbranch_scc1 %s" % l)
        self.label(d)

    def prologue(self):
        self.e("""
s_cmp_ge_u32 s2, 256
s_cbranch_scc1 L_end
s_load_dwordx16 s[4:19], s[0:1], 0
s_load_dwordx8 s[20:27], s[0:1], 64
v_lshrrev_b32 v1, 6, v0
v_and_b32 v0, 63, v0
s_and_b32 s30, s2, 7
s_mov_b32 s69, 0x400000
v_readfirstlane_b32 s36, v1
s_lshr_b32 s31, s2, 3
s_lshr_b32 s32, s31, 4
s_lshl_b32 s33, s30, 1
s_add_u32 s32, s32, s33
s_lshr_b32 s34, s31, 2
s_and_b32 s34, s34, 3
s_and_b32 s35, s31, 3
s_lshl_b32 s33, s34, 4
s_add_u32 s33, s33, s32
s_cmp_eq_u32 s36, %d
s_cbranch_scc1 L_comm
s_cmp_lg_u32 s36, 0
s_cbranch_scc1 L_cons
""" % (4 if "perm" in self.abl else 1))

    def tile_ids(self):
        self.e("""
s_sub_u32 s38, s31, 8
s_cmp_ge_u32 s38, 9
s_cselect_b32 s37, 1, 0
s_cselect_b32 s39, 9, 0
s_sub_u32 s38, s38, s39
s_cmp_ge_u32 s31, 26
s_cbranch_scc0 %(l)s
s_sub_u32 s38, s31, 26
s_cmp_ge_u32 s38, 3
s_cselect_b32 s37, 17, 16
s_cselect_b32 s39, 3, 0
s_sub_u32 s38, s38, s39
%(l)s:
s_lshl_b32 s39, s30, 1
s_add_u32 s37, s37, s39
""" % dict(l=self.lab("Lt")))

    def loader(self):
        W = self.W
        nt = self.nt
        e = self.e
        self.stamp(0)
        e("s_setprio 3")
        e("""
v_lshrrev_b32 v8, 4, v0
v_and_b32 v9, 15, v0
v_lshlrev_b32 v10, 1, v8
v_xor_b32 v11, v9, v10
v_lshlrev_b32 v11, 4, v11
v_lshl_add_u32 v1, v8, 8, v11
v_xor_b32 v2, 0x80, v1
""")
        e("""
s_movk_i32 s41, 0x2400
s_cmp_lt_u32 s31, 8
s_cselect_b32 s40, 0x2000, s41
v_lshrrev_b32 v12, 3, v0
v_and_b32 v13, 7, v0
v_xor_b32 v13, v13, v10
v_lshlrev_b32 v13, 4, v13
v_mul_u32_u24 v20, 1152, v12
v_add_u32 v20, v20, v13
v_add_u32 v21, 8192, v20
v_add_u32 v22, 8192, v21
v_add_u32 v23, 8192, v22
v_mul_lo_u32 v12, v12, s40
v_add_u32 v3, v12, v13
s_lshl_b32 s41, s40, 3
s_sub_u32 s42, s41, 1024
v_add_u32 v4, s42, v3
v_add_u32 v5, s42, v4
v_add_u32 v6, s42, v5
s_lshl_b32 s41, s41, 2
""")
        for i in range(3):
            e("""
v_add_u32 v12, %d, v0
v_mul_u32_u24 v13, 2731, v12
v_lshrrev_b32 v13, 16, v13
v_mul_u32_u24 v14, 24, v13
v_sub_u32 v14, v12, v14
v_and_b32 v15, 6, v13
v_xor_b32 v14, v14, v15
v_mul_u32_u24 v13, 1152, v13
v_lshl_add_u32 v%d, v14, 4, v13
""" % (64 * i, 17 + i))
        e("""
v_mov_b32 v7, v17
v_add_u32 v8, 0xfffffc00, v18
v_add_u32 v9, 0xfffff800, v19
v_lshlrev_b32 v10, 2, v0
v_add_u32 v10, %d, v10
v_mov_b32 v11, %d
v_mov_b32 v17, %d
v_mov_b32 v18, %d
""" % (FULL, FREE, W, WCLS))
        self.tile_ids()
        e("""
s_lshl_b32 s43, s30, 3
s_add_u32 s43, s43, s31
s_mul_i32 s44, s30, 9
s_add_u32 s44, s44, s31
s_sub_u32 s45, s44, 8
s_sub_u32 s44, s44, 17
s_cmp_lt_u32 s31, 17
s_cselect_b32 s44, s45, s44
s_cmp_lt_u32 s31, 8
s_cselect_b32 s43, s43, s44
s_lshl_b32 s51, s43, 7
s_lshl_b32 s46, s33, 21
s_add_u32 s46, s46, 0x180000
s_lshl_b32 s47, s35, 17
s_add_u32 s46, s46, s47
s_mov_b32 s63, 0x00020000
s_mov_b32 s55, 0
""")
        cur = [W]

        def run(pats, step_reg_or_imm, n_iter, check_free, label=None):
            n = len(pats)
            L = self.lab("Lrun")
            e("s_mov_b32 s52, %d" % n_iter)
            self.label(L)
            if check_free:
                ok = self.lab("Lok")
                sl = self.lab("Lsl")
                e("s_add_i32 s54, s53, %d\ns_cmp_le_i32 s54, s55\ns_cbranch_scc1 %s" % (n - RING_KB, ok))
                self.label(sl)
                e("""
ds_read_b128 v[12:15], v11
s_waitcnt lgkmcnt(0)
v_min_u32 v12, v12, v13
v_min3_u32 v12, v12, v14, v15
s_nop 0
v_readfirstlane_b32 s55, v12
s_cmp_le_i32 s54, s55
s_cbranch_scc1 %s
s_sub_i32 s69, s69, 1
s_cmp_gt_i32 s69, 0
s_cbranch_scc1 %s
""" % (ok, sl))
                self.label(ok)
            e("s_mov_b32 m0, s50")
            e("s_add_u32 s50, s50, %d" % (n * 1024))
            for i, p in enumerate(pats):
                off = " offset:%d" % (i * 1024) if i else ""
                e("buffer_load_dwordx4 v%d, s[60:63], s51 offen%s%s lds" % (p, off, nt))
            e("s_add_u32 s51, s51, %s" % step_reg_or_imm)
            e("s_cmp_eq_u32 s50, %d\ns_cselect_b32 s50, 0, s50" % RING_BYTES)
            e("s_add_u32 s53, s53, %d" % n)
            lv = sorted(set(self.wrole), reverse=True)
            if len(lv) > 1:
                dn = self.lab("Lwd")
                for i, w in enumerate(lv):
                    e("s_waitcnt vmcnt(%d)" % w)
                    if i < len(lv) - 1:
                        e("s_cmp_ge_u32 s57, %d\ns_cbranch_scc1 %s" % (w, dn))
                self.label(dn)
                e("s_sub_u32 s54, s53, s57\nv_mov_b32 v16, s54\nds_write_b32 v10, v16")
            else:
                e("s_waitcnt vmcnt(%d)" % cur[0])
                e("s_sub_u32 s54, s53, %d\nv_mov_b32 v16, s54\nds_write_b32 v10, v16" % cur[0])
            e("s_sub_u32 s52, s52, 1\ns_cmp_lg_u32 s52, 0\ns_cbranch_scc1 %s" % L)

        def batch(pats, srd, soff, step):
            n = len(pats)
            e("s_mov_b32 m0, s50")
            e("s_add_u32 s50, s50, %d" % (n * 1024))
            for i, p in enumerate(pats):
                off = " offset:%d" % (i * 1024) if i else ""
                e("buffer_load_dwordx4 v%d, s[%d:%d], %s offen%s%s lds" % (p, srd, srd + 3, soff, off, nt))
            e("s_add_u32 %s, %s, %s" % (soff, soff, step))
            e("s_add_u32 s53, s53, %d" % n)
            e("s_waitcnt vmcnt(%d)" % cur[0])
            e("s_sub_u32 s54, s53, %d\nv_mov_b32 v16, s54\nds_write_b32 v10, v16" % cur[0])

        def ilv_run():
            L = self.lab("Lilv")
            M = self.lab("Lilm")
            e("s_mov_b32 s64, s6\ns_mov_b32 s65, s7\ns_mov_b32 s66, 0x8000000\ns_mov_b32 s67, 0x00020000\ns_mov_b32 s52, 9\ns_branch %s" % M)
            self.label(L)
            batch([3, 4, 5, 6], 60, "s51", "s41")
            self.label(M)
            batch([3, 4, 5, 6], 60, "s51", "s41")
            batch([1, 2, 1, 2], 64, "s46", "4096")
            e("s_sub_u32 s52, s52, 1\ns_cmp_lg_u32 s52, 0\ns_cbranch_scc1 %s" % L)
            e("s_mov_b32 s56, 23\ns_branch L_ld_k")

        def stream(W, sfx):
            cur[0] = W
            o0 = len(self.o)
            e("""
s_cmp_ge_u32 s31, 26
s_cbranch_scc1 L_ld_nocol
s_cmp_lt_u32 s31, 17
s_cselect_b32 s60, s16, s18
s_cselect_b32 s61, s17, s19
s_cmp_lt_u32 s31, 8
s_cselect_b32 s60, s10, s60
s_cselect_b32 s61, s11, s61
""")
            def prefill(pats, step, nb):
                for k in range(nb):
                    if k:
                        e("s_add_u32 m0, m0, 4096\ns_add_u32 s51, s51, %s" % step)
                    for i, p in enumerate(pats):
                        off = " offset:%d" % (i * 1024) if i else ""
                        e("buffer_load_dwordx4 v%d, s[60:63], s51 offen%s%s lds" % (p, off, nt))
                e("s_add_u32 s51, s51, %s" % step)
            self.stamp(4)
            prefill([3, 4, 5, 6], "s41", self.npre)
            self.stamp(5)
            e("s_barrier")
            if "first" in self.abl:
                self.stamp(6)
                e("s_waitcnt vmcnt(%d)" % (4 * self.npre - 1))
                self.stamp(7)
                e("s_waitcnt vmcnt(%d)" % (4 * self.npre - 8))
                self.stamp(8)
            e("s_mov_b32 s56, 32")
            if self.ilv == 2:
                ilv_run()
            elif self.ilv == 1:
                e("s_and_b32 s54, s43, 7\ns_cmp_lg_u32 s54, 3\ns_cbranch_scc1 L_ld_noilv")
                ilv_run()
                self.label("L_ld_noilv")
            if self.Wc3:
                e("s_and_b32 s54, s43, 7\ns_cmp_eq_u32 s54, 3\ns_cbranch_scc1 L_ld_c3")
            cur[0] = self.Wcol or W
            run([3, 4, 5, 6], "s41", 18 - self.npre, False)
            e("s_branch L_ld_k")
            if self.Wc3:
                self.label("L_ld_c3")
                cur[0] = self.Wc3
                run([3, 4, 5, 6], "s41", 17, False)
                e("s_branch L_ld_k")
            cur[0] = W
            self.label("L_ld_nocol")
            e("s_mov_b32 m0, %d\ns_mov_b32 s60, s6\ns_mov_b32 s61, s7\ns_mov_b32 s62, 0x8000000\ns_mov_b32 s51, s46" % (P_K * 1024))
            prefill([1, 2, 1, 2], "4096", self.npre)
            e("s_mov_b32 s46, s51\ns_mov_b32 s50, %d\ns_mov_b32 s53, %d\ns_mov_b32 s56, %d\ns_barrier" % ((P_K + 4 * self.npre) * 1024, P_K + 4 * self.npre, 32 - self.npre))
            self.label("L_ld_k")
            self.stamp(1)
            e("s_mov_b32 s60, s6\ns_mov_b32 s61, s7\ns_mov_b32 s62, 0x8000000\ns_mov_b32 s51, s46")
            if "fine" in self.abl:
                for q in range(4):
                    run([1, 2, 1, 2], "4096", 8, True)
                    self.stamp(4 + q)
                e("s_mov_b32 s60, s8\ns_mov_b32 s61, s9\ns_mov_b32 s51, s46")
                for q in range(4):
                    run([1, 2, 1, 2], "4096", 8, True)
                    if q < 3:
                        self.stamp(8 + q)
            else:
                o1 = len(self.o)
                run([1, 2, 1, 2], "4096", 32, True)
                self.o[o1] = "    s_mov_b32 s52, s56"
                e("s_mov_b32 s60, s8\ns_mov_b32 s61, s9\ns_sub_u32 s51, s51, 0x20000")
                run([1, 2, 1, 2], "4096", 32, True)
            self.stamp(2)
            e("""
s_cmp_ge_u32 s31, 26
s_cbranch_scc1 L_ld_down
s_cmp_lt_u32 s31, 8
s_cbranch_scc1 L_ld_drain
s_mov_b32 s60, s12
s_mov_b32 s61, s13
s_mov_b32 s62, %d
s_mul_i32 s51, s37, 294912
s_lshl_b32 s54, s38, 7
s_add_u32 s51, s51, s54
""" % (4096 * 1152))
            run([20, 21, 22, 23], "36864", 8, True)
            e("s_branch L_ld_drain")
            self.label("L_ld_down")
            e("""
s_mov_b32 s60, s20
s_mov_b32 s61, s21
s_mov_b32 s62, %d
s_sub_u32 s51, s37, 16
s_mul_i32 s51, s51, 331776
s_mul_i32 s54, s38, 384
s_add_u32 s51, s51, s54
""" % (4608 * 1152))
            run([7, 8, 9], "9216", 36, True)
            self.label("L_ld_drain")
            for w in (28, 24, 20, 16, 12, 8, 4, 0):
                if w < max(self.wrole):
                    e("s_waitcnt vmcnt(%d)\ns_sub_u32 s54, s53, %d\nv_mov_b32 v16, s54\nds_write_b32 v10, v16" % (w, w))
            self.stamp(3)
            if self.stamps:
                e("s_getreg_b32 s%d, hwreg(HW_REG_HW_ID)\ns_mov_b32 s%d, 0" % (self.sreg(12), self.sreg(12) + 1))
            self.flush_stamps([(0, 0), (1, 1), (2, 2), (3, 3), (12, 21)] + ([(4 + q, 25 + q) for q in range(7)] if ("fine" in self.abl or "first" in self.abl) else []))
            e("s_endpgm")
            for i in range(o0, len(self.o)):
                self.o[i] = self.o[i].replace("L_ld_", "L_ld%s_" % sfx)

        wg_, wq_, wd_, w3_ = self.wrole
        e("""
s_mov_b32 s57, %d
s_cmp_lt_u32 s31, 8
s_cselect_b32 s57, %d, s57
s_and_b32 s54, s43, 7
s_cmp_eq_u32 s54, 3
s_cselect_b32 s57, %d, s57
s_cmp_ge_u32 s31, 26
s_cselect_b32 s57, %d, s57
s_mul_i32 s62, s40, 576
s_mov_b32 s50, %d
s_mov_b32 s53, %d
s_mov_b32 m0, 0
s_waitcnt lgkmcnt(0)
""" % (wg_, wq_, w3_, wd_, 4096 * self.npre, 4 * self.npre))
        stream(self.W, "a")

    def gather(self, loads, regs, vt, strycnt="s59", sleep=8, preissued=False, idle_sleep=0):
        e = self.e
        L = self.lab("Lg")
        D = self.lab("Lgd")
        P = self.lab("Lgp")
        n = len(loads)
        per = len(regs) // n
        assert n <= 6
        masks = [(self.mbase + 2 * k) for k in range(n)]
        e("s_mov_b32 %s, %d\ns_mov_b64 s[90:91], exec" % (strycnt, self.spin))
        if not preissued:
            for l in loads:
                e(l)
        e("s_branch %s" % P)
        self.label(L)
        for k, l in enumerate(loads):
            if n > 1:
                S = self.lab("Lgs")
                e("s_mov_b64 exec, s[%d:%d]\ns_cbranch_execz %s" % (masks[k], masks[k] + 1, S))
                e(l)
                self.label(S)
            else:
                e("s_mov_b64 exec, vcc")
                e(l)
        e("s_mov_b64 exec, s[90:91]")
        self.label(P)
        e("s_waitcnt vmcnt(0)")
        for k in range(n):
            rs = list(regs[k * per:(k + 1) * per])
            if len(rs) == 2:
                e("v_max_u32 v%d, v%d, v%d" % (vt + k, rs[0], rs[1]))
            else:
                e("v_max3_u32 v%d, v%d, v%d, v%d\nv_max_u32 v%d, v%d, v%d" % (vt + k, rs[0], rs[1], rs[2], vt + k, vt + k, rs[3]))
        if n == 1:
            e("v_cmp_eq_u32 vcc, -1, v%d" % vt)
        else:
            rs = [vt + k for k in range(n)]
            t = vt + n
            e("v_max_u32 v%d, v%d, v%d" % (t, rs[0], rs[1]))
            rs = rs[2:]
            while rs:
                if len(rs) >= 2:
                    e("v_max3_u32 v%d, v%d, v%d, v%d" % (t, t, rs[0], rs[1]))
                    rs = rs[2:]
                else:
                    e("v_max_u32 v%d, v%d, v%d" % (t, t, rs[0]))
                    rs = []
            e("v_cmp_eq_u32 vcc, -1, v%d" % t)
        e("s_cbranch_vccz %s" % D)
        if n > 1:
            for k in range(n):
                e("v_cmp_eq_u32 s[%d:%d], -1, v%d" % (masks[k], masks[k] + 1, vt + k))
        if idle_sleep:
            Z = self.lab("Lgz")
            e("s_and_b64 s[%d:%d], s[%d:%d], s[%d:%d]" % (self.mbase + 12, self.mbase + 13, masks[0], masks[0] + 1, masks[1], masks[1] + 1))
            e("s_cmp_lg_u64 s[%d:%d], s[90:91]\ns_cbranch_scc1 %s\ns_sleep %d" % (self.mbase + 12, self.mbase + 13, Z, idle_sleep))
            self.label(Z)
        if sleep:
            e("s_sleep %d" % sleep)
        e("s_sub_u32 %s, %s, 1\ns_cmp_lg_u32 %s, 0\ns_cbranch_scc1 %s" % (strycnt, strycnt, strycnt, L))
        self.label(D)

    def gather_pipe(self, loads, regs, vt, depth=3, gap=2, preissued=0):
        e = self.e
        L = self.lab("Lgq")
        D = self.lab("Lgqd")
        n = len(loads)
        e("s_mov_b32 s59, %d\ns_mov_b64 s[90:91], exec" % self.spin)
        for r in range(depth - 1 - preissued):
            for l in loads:
                e(l)
            e("s_sleep %d" % gap)
        self.label(L)
        for l in loads:
            e(l)
        e("s_mov_b64 exec, s[90:91]")
        e("s_waitcnt vmcnt(%d)" % (n * (depth - 1)))
        rs = list(regs)
        e("v_max3_u32 v%d, v%d, v%d, v%d" % (vt, rs[0], rs[1], rs[2]))
        e("v_max3_u32 v%d, v%d, v%d, v%d" % (vt + 1, rs[3], rs[4], rs[5]))
        rs = rs[6:]
        i = 0
        while rs:
            e("v_max3_u32 v%d, v%d, v%d, v%d" % (vt + i, vt + i, rs[0], rs[1]))
            rs = rs[2:]
            i ^= 1
        e("v_max_u32 v%d, v%d, v%d" % (vt, vt, vt + 1))
        e("v_cmp_eq_u32 vcc, -1, v%d" % vt)
        e("s_cbranch_vccz %s" % D)
        e("s_mov_b64 exec, vcc")
        e("s_sub_u32 s59, s59, 1\ns_cmp_lg_u32 s59, 0\ns_cbranch_scc1 %s" % L)
        e("s_mov_b64 exec, s[90:91]")
        self.label(D)

    def ws_srd(self):
        if self.wsoff:
            self.e("s_add_u32 s40, s26, %d\ns_addc_u32 s41, s27, 0" % self.wsoff)
        else:
            self.e("s_mov_b32 s40, s26\ns_mov_b32 s41, s27")
        self.e("s_mov_b32 s42, %d\ns_mov_b32 s43, 0x00020000" % WS_SIZE)

    def set_flag(self, addr, vt0, vt1):
        self.e("s_mov_b64 exec, 1\nv_mov_b32 v%d, %d\nv_mov_b32 v%d, 1\nds_write_b32 v%d, v%d\ns_mov_b64 exec, -1" % (vt0, addr, vt1, vt0, vt1))

    def comm(self):
        e = self.e
        self.label("L_comm")
        e("""
v_lshlrev_b32 v1, 3, v0
v_add_u32 v1, %d, v1
v_mov_b32 v2, 0
v_mov_b32 v3, 0
ds_write_b64 v1, v[2:3]
v_mov_b32 v4, -1
v_mov_b32 v5, -1
v_mov_b32 v6, -1
v_mov_b32 v7, -1
v_lshlrev_b32 v8, 4, v0
v_mov_b32 v10, %d
v_mov_b32 v11, %d
ds_write_b32 v10, v11
s_memrealtime s[28:29]
""" % (FULL, WCLS, self.W))
        self.tile_ids()
        self.ct_id()
        share = (WS_SIZE - SH_BASE) // 64
        assert share * 64 == WS_SIZE - SH_BASE and share % 128 == 0
        e("""
s_lshl_b32 s45, s33, 2
s_add_u32 s45, s45, s35
s_movk_i32 s46, %d
s_cmp_lt_u32 s31, 8
s_cselect_b32 s46, %d, s46
s_cselect_b32 s47, 0, %d
s_mul_i32 s52, s44, %d
s_lshl_b32 s44, s44, 7
s_add_u32 s44, s44, s47
v_lshrrev_b32 v9, 3, v0
v_mul_lo_u32 v9, v9, s46
v_and_b32 v10, 7, v0
v_lshl_add_u32 v9, v10, 4, v9
v_lshlrev_b32 v12, 2, v0
v_add_u32 v13, %d, v8
v_mov_b32 v23, %d
s_waitcnt lgkmcnt(0)
s_barrier
""" % (CGU_STRIDE, CQ_STRIDE, WS_CGU - 64 * 128, share, OB, CNT_C))
        if self.cpf:
            e("s_getpc_b64 s[54:55]")
            self.label("L_pc")
            e("s_sub_u32 s54, s54, L_pc-%s_kernel\ns_subb_u32 s55, s55, 0\ns_mul_i32 s56, s31, %d" % (KN, self.cpf * 128))
            for k in range(self.cpf):
                e("s_min_u32 s57, s56, L_code_end-%s_kernel-4\ns_load_dword s78, s[54:55], s57\ns_add_u32 s56, s56, 128" % KN)
        if "nocomm" in self.abl:
            e("s_waitcnt lgkmcnt(0)")
            self.set_flag(FLAG_Q, 21, 22)
            self.set_flag(FLAG_H, 21, 22)
            self.set_flag(FLAG_SC, 21, 22)
            e("s_endpgm")
        self.ws_srd()

        def c_store():
            self.wait_lds("v23", "s46", "4", "v14", cached=False, sleep=2)
            e("""
s_mov_b32 exec_hi, 0
ds_read_b128 v[16:19], v13
s_waitcnt lgkmcnt(0)
buffer_store_dwordx4 v[16:19], v9, s[40:43], s44 offen sc1
s_mov_b32 exec_hi, -1
""")
        e("""
s_mov_b32 s48, s24
s_mov_b32 s49, s25
s_mov_b32 s50, 256
s_mov_b32 s51, 0x00020000
s_cmp_ge_u32 s31, 8
s_cbranch_scc1 L_cm_noclr
s_mov_b32 exec_hi, 0
buffer_store_dwordx4 v[4:7], v9, s[40:43], s44 offen sc1
s_mov_b32 exec_hi, -1
s_add_u32 s52, s52, %d
""" % SH_BASE)
        for i in range(share // 1024):
            e("buffer_store_dwordx4 v[4:7], v8, s[40:43], s52 offen offset:%d sc1" % ((i % 4) * 1024))
            if i % 4 == 3:
                e("s_add_u32 s52, s52, 4096")
        rem = (share % 1024) // 16
        e("s_mov_b32 exec_hi, 0x%x" % ((1 << (rem - 32)) - 1))
        e("buffer_store_dwordx4 v[4:7], v8, s[40:43], s52 offen offset:%d sc1" % (((share // 1024) % 4) * 1024))
        e("""
s_lshr_b32 s46, s44, 5
v_mov_b32 v10, 1
v_mov_b32 v11, 0
s_mov_b64 exec, 1
s_waitcnt vmcnt(0)
buffer_store_dword v10, v11, s[48:51], s46 offen sc1
s_mov_b64 exec, -1
""")
        self.stamp(7)
        c_store()
        self.label("L_cm_noclr")
        e("s_mov_b32 s47, %d\ns_cmp_ge_u32 s31, 26\ns_cselect_b32 s47, %d, s47\nv_mov_b32 v15, %d" % (self.qpos - self.fgap, P_K + self.qposd - self.fgap, FULL))
        self.wait_lds("v15", "s46", "s47", "v14", cached=False, sleep=4)
        self.stamp(8)
        L = self.lab("Lfl")
        D = self.lab("Lfld")
        e("s_mov_b32 s59, %d\ns_mov_b32 s46, 1" % self.spin)
        self.label(L)
        e("""
buffer_load_dword v14, v12, s[48:51], 0 offen sc1
s_waitcnt vmcnt(0)
v_cmp_ne_u32 vcc, s46, v14
s_cbranch_vccz %s
s_sleep 16
s_sub_u32 s59, s59, 1
s_cmp_lg_u32 s59, 0
s_cbranch_scc1 %s
""" % (D, L))
        if "nofl" in self.abl:
            del self.o[-8:]
        self.label(D)
        self.stamp(0)
        self.rawstamp(9, "s59")
        e("s_cmp_lt_u32 s31, 8\ns_cbranch_scc1 L_cm_nocs\ns_cmp_ge_u32 s31, 26\ns_cbranch_scc1 L_cm_nocs")
        c_store()
        self.label("L_cm_nocs")
        if "comm_fl" in self.abl:
            self.set_flag(FLAG_Q, 21, 22)
            self.set_flag(FLAG_H, 21, 22)
            self.set_flag(FLAG_SC, 21, 22)
            e("s_endpgm")
        e("s_add_u32 s47, s47, %d" % self.fgap)
        self.wait_lds("v15", "s46", "s47", "v14", cached=False, sleep=4)
        e("""
s_mul_i32 s46, s34, %d
s_lshl_b32 s47, s32, 9
s_add_u32 s46, s46, s47
s_mov_b32 exec_hi, 0
""" % CQ_STRIDE)
        if "noq" not in self.abl:
            self.gather(["buffer_load_dwordx4 v[16:19], v8, s[40:43], s46 offen sc1"], [16, 17, 18, 19], 20)
        e("v_add_u32 v21, %d, v8\nds_write_b128 v21, v[16:19]\ns_waitcnt lgkmcnt(0)" % QL)
        self.set_flag(FLAG_Q, 21, 22)
        self.stamp(1)
        self.rawstamp(10, "s59")
        if "comm_q" in self.abl:
            self.set_flag(FLAG_H, 21, 22)
            self.set_flag(FLAG_SC, 21, 22)
            e("s_endpgm")
        e("s_cmp_lt_u32 s31, 26\ns_cbranch_scc1 L_cm_noh")
        for i in range(3):
            e("""
v_add_u32 v16, %d, v0
v_mul_u32_u24 v17, 1821, v16
v_lshrrev_b32 v17, 16, v17
v_mul_u32_u24 v18, 36, v17
v_sub_u32 v18, v16, v18
v_mul_u32_u24 v19, %d, v17
v_lshl_add_u32 v%d, v18, 4, v19
v_mul_u32_u24 v19, %d, v17
v_lshrrev_b32 v20, 2, v18
v_lshl_add_u32 v19, v20, 6, v19
v_and_b32 v20, 1, v18
v_lshl_add_u32 v19, v20, 5, v19
v_bfe_u32 v20, v18, 1, 1
v_lshl_add_u32 v19, v20, 3, v19
v_add_u32 v%d, %d, v19
""" % (64 * i, CGU_STRIDE, 24 + i, H_STRIDE, 27 + i, XN))
        e("""
v_cmp_gt_u32 vcc, 16, v0
s_nop 1
v_cndmask_b32 v26, v24, v26, vcc
v_cndmask_b32 v29, v27, v29, vcc
s_sub_u32 s46, s37, 16
s_mul_i32 s46, s46, 576
s_add_u32 s47, s46, %d
s_add_u32 s46, s46, %d
""" % (WS_CGU + 9216, WS_CGU))
        self.wait_lds("v15", "s48", str(P_K + self.hpos), "v14", cached=False, sleep=4)
        loads = []
        for i in range(3):
            loads.append("buffer_load_dwordx4 v[%d:%d], v%d, s[40:43], s46 offen sc1" % (48 + 4 * i, 51 + 4 * i, 24 + i))
            loads.append("buffer_load_dwordx4 v[%d:%d], v%d, s[40:43], s47 offen sc1" % (60 + 4 * i, 63 + 4 * i, 24 + i))
        self.gather(loads, [r for i in range(3) for r in list(range(48 + 4 * i, 52 + 4 * i)) + list(range(60 + 4 * i, 64 + 4 * i))], 72)
        c0 = -2.0 * LOG2E * 0.7978845608028654
        e("s_mov_b32 s46, %s\ns_mov_b32 s47, %s\ns_mov_b32 s56, 0xffff0000" % (f32(c0), f32(c0 * 0.044715)))
        e("v_mov_b32 v20, s46")
        for r in range(12):
            g = 48 + r
            u = 60 + r
            e("""
v_lshlrev_b32 v16, 16, v%(g)d
v_and_b32 v17, s56, v%(g)d
v_mul_f32 v18, v16, v16
v_mul_f32 v19, v17, v17
v_fma_f32 v18, v18, s47, v20
v_fma_f32 v19, v19, s47, v20
v_mul_f32 v18, v18, v16
v_mul_f32 v19, v19, v17
v_exp_f32 v18, v18
v_exp_f32 v19, v19
s_nop 0
v_add_f32 v18, 1.0, v18
v_add_f32 v19, 1.0, v19
v_rcp_f32 v18, v18
v_rcp_f32 v19, v19
s_nop 0
v_mul_f32 v18, v18, v16
v_mul_f32 v19, v19, v17
v_cvt_pk_bf16_f32 v18, v18, v19
v_lshlrev_b32 v16, 16, v%(u)d
v_and_b32 v17, s56, v%(u)d
v_and_b32 v19, s56, v18
v_lshlrev_b32 v18, 16, v18
v_mul_f32 v18, v18, v16
v_mul_f32 v19, v19, v17
v_cvt_pk_bf16_f32 v%(g)d, v18, v19
""" % dict(g=g, u=u))
        for i in range(3):
            e("ds_write2_b64 v%d, v[%d:%d], v[%d:%d] offset0:0 offset1:2" % (27 + i, 48 + 4 * i, 49 + 4 * i, 50 + 4 * i, 51 + 4 * i))
        e("s_waitcnt lgkmcnt(0)")
        self.set_flag(FLAG_H, 21, 22)
        self.label("L_cm_noh")
        e("v_mov_b32 v16, %d" % CNT_STAT)
        self.wait_lds("v16", "s46", "4", "v17", cached=False, sleep=2)
        self.stamp(2)
        e("""
v_and_b32 v16, 7, v0
v_lshlrev_b32 v16, 3, v16
v_add_u32 v17, %d, v16
ds_read_b64 v[18:19], v17
s_mov_b32 s56, %s
v_and_b32 v27, 1, v0
v_lshlrev_b32 v27, 4, v27
v_bfe_u32 v28, v0, 1, 2
v_lshl_add_u32 v27, v28, 2, v27
v_add_u32 v27, %d, v27
s_waitcnt lgkmcnt(0)
v_max_f32_dpp v20, v18, v18 row_ror:2 row_mask:0xf bank_mask:0xf
s_nop 1
v_max_f32_dpp v20, v20, v20 row_ror:4 row_mask:0xf bank_mask:0xf
v_sub_f32 v22, v18, v20
v_mul_f32 v22, s56, v22
v_exp_f32 v22, v22
s_nop 0
v_mul_f32 v21, v22, v19
ds_write_b32 v27, v22
s_nop 0
v_add_f32_dpp v21, v21, v21 row_ror:2 row_mask:0xf bank_mask:0xf
s_nop 1
v_add_f32_dpp v21, v21, v21 row_ror:4 row_mask:0xf bank_mask:0xf
s_lshl_b32 s47, s45, 6
s_add_u32 s47, s47, %d
s_mov_b64 exec, 0xff
buffer_store_dwordx2 v[20:21], v16, s[40:43], s47 offen sc1
s_mov_b64 exec, -1
s_waitcnt lgkmcnt(0)
""" % (STW, f32(LOG2E), SC, WS_ST))
        self.set_flag(FLAG_SC, 23, 24)
        self.stamp(3)
        self.flush_stamps([(0, 4), (1, 5), (2, 6), (3, 7), (7, 16), (8, 17), (9, 18), (10, 19)])
        e("s_endpgm")

    def tlb_warm(self):
        e = self.e
        e("""
s_lshl_b32 s52, s33, 21
s_add_u32 s52, s52, 0x180000
s_lshl_b32 s53, s35, 17
s_add_u32 s52, s52, s53
s_load_dword s78, s[6:7], s52
s_load_dword s78, s[8:9], s52
s_cmp_ge_u32 s31, 26
s_cbranch_scc1 L_tw_dn
s_cmp_lt_u32 s31, 17
s_cselect_b32 s60, s16, s18
s_cselect_b32 s61, s17, s19
s_cmp_lt_u32 s31, 8
s_cselect_b32 s60, s10, s60
s_cselect_b32 s61, s11, s61
s_mov_b32 s53, 0x180000
s_load_dword s78, s[60:61], s53
s_mov_b32 s53, 0x300000
s_load_dword s78, s[60:61], s53
s_mov_b32 s53, 0x47ff00
s_load_dword s78, s[60:61], s53
s_cbranch_scc1 L_tw_end
s_mul_i32 s53, s37, 294912
s_load_dword s78, s[12:13], s53
s_add_u32 s53, s53, 294000
s_load_dword s78, s[12:13], s53
s_branch L_tw_end
L_tw_dn:
s_sub_u32 s53, s37, 16
s_mul_i32 s53, s53, 331776
s_load_dword s78, s[20:21], s53
s_add_u32 s53, s53, 331000
s_load_dword s78, s[20:21], s53
L_tw_end:
""")

    def ct_id(self):
        self.e("""
s_lshl_b32 s44, s30, 3
s_add_u32 s44, s44, s31
s_mul_i32 s46, s30, 9
s_add_u32 s46, s46, s31
s_add_u32 s47, s46, 56
s_add_u32 s46, s46, 119
s_cmp_lt_u32 s31, 17
s_cselect_b32 s46, s47, s46
s_cmp_lt_u32 s31, 8
s_cselect_b32 s44, s44, s46
""")

    def free_write(self, sval):
        self.e("s_mov_b64 exec, 1\nv_mov_b32 v4, %s\nds_write_b32 v3, v4\ns_mov_b64 exec, -1" % sval)

    def cons(self):
        e = self.e
        self.label("L_cons")
        if self.stamps:
            for k in range(15):
                e("s_mov_b64 s[%d:%d], 0" % (self.sreg(k), self.sreg(k) + 1))
        if "perm" in self.abl:
            e("s_min_u32 s36, s36, 4\ns_add_u32 s36, s36, 1")
        e("""
s_sub_u32 s36, s36, 2
v_mov_b32 v2, %d
s_lshl_b32 s44, s36, 2
s_add_u32 s44, s44, %d
v_mov_b32 v3, s44
s_mov_b32 s50, 0
v_and_b32 v8, 15, v0
v_lshrrev_b32 v9, 4, v0
v_lshrrev_b32 v10, 2, v0
v_and_b32 v11, 3, v0
s_mov_b32 s56, 0xffff0000
v_mul_u32_u24 v12, 1152, v9
v_lshl_add_u32 v12, v8, 4, v12
v_mov_b32 v13, 0x40000000
v_cmp_gt_u32 vcc, 8, v8
v_bfe_u32 v7, v0, 3, 2
v_lshlrev_b32 v7, 5, v7
v_cndmask_b32 v13, v13, v12, vcc
v_lshl_add_u32 v7, v10, 7, v7
v_lshl_add_u32 v7, v11, 3, v7
s_waitcnt lgkmcnt(0)
s_mov_b32 s60, s4
s_mov_b32 s61, s5
s_mov_b32 s62, 4608
s_mov_b32 s63, 0x00020000
""" % (FULL, FREE))
        self.ws_srd()
        if "nocons" in self.abl:
            e("s_barrier")
            self.free_write("0x10000")
            e("s_endpgm")
        if "conssleep" in self.abl or "consspin" in self.abl:
            e("s_barrier")
            self.free_write("0x10000")
            self.wait_lds("v2", "s50", "328", "v4", sleep=(32 if "conssleep" in self.abl else 0))
            e("s_endpgm")
        if "nocolc" in self.abl:
            e("s_branch L_cs_nocol")
        e("""
s_cmp_ge_u32 s31, 26
s_cbranch_scc1 L_cs_nocol
""")
        if "nox" not in self.abl:
            e("""
buffer_load_dwordx4 v[32:35], v12, s[60:63], 0 offen
buffer_load_dwordx4 v[36:39], v12, s[60:63], 0 offen offset:256
buffer_load_dwordx4 v[40:43], v12, s[60:63], 0 offen offset:512
buffer_load_dwordx4 v[44:47], v12, s[60:63], 0 offen offset:768
buffer_load_dwordx4 v[48:51], v13, s[60:63], 0 offen offset:1024
""")
        e("s_barrier")
        e("""
v_mul_u32_u24 v14, %d, v9
v_lshrrev_b32 v15, 2, v8
v_lshl_add_u32 v14, v15, 6, v14
v_and_b32 v15, 1, v8
v_lshl_add_u32 v14, v15, 5, v14
v_bfe_u32 v15, v8, 1, 1
v_lshl_add_u32 v14, v15, 3, v14
v_add_u32 v14, %d, v14
s_lshl_b32 s44, s36, 5
v_xor_b32 v15, s44, v7
v_mul_u32_u24 v16, %d, v11
v_lshl_add_u32 v16, v9, 4, v16
v_add_u32 v16, %d, v16
s_waitcnt vmcnt(0)
""" % (XN_STRIDE, XN, XN_STRIDE, XN))
        for k in range(20):
            e("v_lshlrev_b32 v%d, 16, v%d\nv_and_b32 v%d, s56, v%d" % (64 + 2 * k, 32 + k, 65 + 2 * k, 32 + k))
        e("v_add_f32 v52, v64, v65\nv_add_f32 v53, v66, v67")
        for k in range(2, 20):
            e("v_add_f32 v52, v52, v%d\nv_add_f32 v53, v53, v%d" % (64 + 2 * k, 65 + 2 * k))
        e("v_add_f32 v52, v52, v53")
        for ror in (8, 4, 2, 1):
            e("s_nop 1\nv_add_f32_dpp v52, v52, v52 row_ror:%d row_mask:0xf bank_mask:0xf" % ror)
        e("v_mul_f32 v52, %s, v52" % f32(1.0 / 576))
        e("v_cndmask_b32 v55, 0, v52, vcc")
        e("v_mov_b32 v53, 0\nv_mov_b32 v54, 0")
        for k in range(20):
            m = 55 if k >= 16 else 52
            e("v_sub_f32 v56, v%d, v%d\nv_sub_f32 v57, v%d, v%d\nv_fmac_f32 v53, v56, v56\nv_fmac_f32 v54, v57, v57" % (64 + 2 * k, m, 65 + 2 * k, m))
        e("v_add_f32 v53, v53, v54")
        for ror in (8, 4, 2, 1):
            e("s_nop 1\nv_add_f32_dpp v53, v53, v53 row_ror:%d row_mask:0xf bank_mask:0xf" % ror)
        e("""
v_mul_f32 v53, %s, v53
v_cvt_pk_bf16_f32 v52, v52, v53
v_and_b32 v53, s56, v52
v_lshlrev_b32 v52, 16, v52
v_add_f32 v53, %s, v53
v_cvt_pk_bf16_f32 v53, v53, v53
v_and_b32 v53, s56, v53
v_sqrt_f32 v53, v53
s_nop 0
v_cvt_pk_bf16_f32 v53, v53, v53
v_and_b32 v53, s56, v53
v_rcp_f32 v54, v53
""" % (f32(1.0 / 576), f32(1e-5)))
        for k in range(20):
            a, b = 64 + 2 * k, 65 + 2 * k
            e("""
v_sub_f32 v%(a)d, v%(a)d, v52
v_sub_f32 v%(b)d, v%(b)d, v52
v_cvt_pk_bf16_f32 v56, v%(a)d, v%(b)d
v_lshlrev_b32 v%(a)d, 16, v56
v_and_b32 v%(b)d, s56, v56
v_mul_f32 v57, v%(a)d, v54
v_mul_f32 v58, v%(b)d, v54
v_fma_f32 v%(a)d, -v57, v53, v%(a)d
v_fma_f32 v%(b)d, -v58, v53, v%(b)d
v_fmac_f32 v57, v%(a)d, v54
v_fmac_f32 v58, v%(b)d, v54
v_cvt_pk_bf16_f32 v%(d)d, v57, v58
""" % dict(a=a, b=b, d=32 + k))
        for t in range(4):
            e("ds_write2_b64 v14, v[%d:%d], v[%d:%d] offset0:%d offset1:%d" % (32 + 4 * t, 33 + 4 * t, 34 + 4 * t, 35 + 4 * t, 32 * t, 32 * t + 2))
        e("s_mov_b64 exec, vcc\nds_write2_b64 v14, v[48:49], v[50:51] offset0:128 offset1:130\ns_mov_b64 exec, -1")
        e("v_mov_b32 v20, 0\nv_mov_b32 v21, 0\nv_mov_b32 v22, 0\nv_mov_b32 v23, 0\ns_mov_b32 s51, 4")
        self.stamp(0)
        L = self.lab("Lcol")
        self.label(L)
        self.wait_lds("v2", "s50", "s51", "v4")
        e("""
ds_read_b64_tr_b16 v[24:25], v15
ds_read_b64_tr_b16 v[26:27], v15 offset:2048
ds_read_b128 v[28:31], v16
v_add_u32 v15, 4096, v15
v_add_u32 v16, 64, v16
s_add_u32 s51, s51, 4
s_cmp_le_u32 s51, %d
s_waitcnt lgkmcnt(0)
v_mfma_f32_16x16x32_bf16 v[20:23], v[24:27], v[28:31], v[20:23]
s_cbranch_scc1 %s
""" % (P_K, L))
        e("""
s_lshl_b32 s45, s36, 5
s_add_u32 s45, s45, %d
v_lshlrev_b32 v17, 7, v11
v_lshl_add_u32 v17, v9, 3, v17
v_add_u32 v17, s45, v17
v_mov_b32 v18, %d
v_mov_b32 v19, 1
s_nop 2
v_cvt_pk_bf16_f32 v24, v20, v21
v_cvt_pk_bf16_f32 v25, v22, v23
s_mov_b32 exec_lo, 0x000f000f
s_mov_b32 exec_hi, 0x000f000f
ds_write_b64 v17, v[24:25]
s_mov_b64 exec, 1
ds_add_u32 v18, v19
s_mov_b64 exec, -1
s_branch L_cs_k
L_cs_nocol:
s_barrier
L_cs_k:
""" % (OB, CNT_C))
        self.stamp(1)
        if "colonly" in self.abl:
            self.free_write("0x10000")
            e("s_endpgm")
        e("""
v_and_b32 v5, 7, v0
v_lshlrev_b32 v5, 1, v5
v_xor_b32 v5, v5, v9
v_lshlrev_b32 v5, 4, v5
v_lshl_add_u32 v5, v8, 8, v5
v_and_b32 v6, 7, v10
v_lshlrev_b32 v6, 5, v6
v_lshl_add_u32 v6, v10, 8, v6
v_lshl_add_u32 v6, v11, 3, v6
s_lshl_b32 s52, s36, 2
s_add_u32 s51, s52, %d
s_lshl_b32 s53, s51, 10
""" % P_K)
        self.free_write("s51")

        def advance():
            e("s_add_u32 s51, s51, 16\ns_add_u32 s53, s53, 16384\ns_sub_u32 s54, s53, %d\ns_cmp_ge_u32 s53, %d\ns_cselect_b32 s53, s54, s53" % (RING_BYTES, RING_BYTES))

        for i in range(8):
            e("s_add_u32 s55, s51, 4")
            self.wait_lds("v2", "s50", "s55", "v4")
            r = 128 + 16 * i
            e("""
v_add_u32 v12, s53, v5
v_xor_b32 v13, 64, v12
v_xor_b32 v14, 0x80, v12
v_xor_b32 v15, 0xc0, v12
ds_read_b128 v[%d:%d], v12
ds_read_b128 v[%d:%d], v13
ds_read_b128 v[%d:%d], v14
ds_read_b128 v[%d:%d], v15
""" % (r, r + 3, r + 4, r + 7, r + 8, r + 11, r + 12, r + 15))
            advance()
            if i & 1:
                e("s_waitcnt lgkmcnt(0)")
                self.free_write("s51")
        self.stamp(2)
        e("v_mov_b32 v12, %d" % FLAG_Q)
        self.wait_lds("v12", "s54", "1", "v4", cached=False)
        e("""
v_and_b32 v12, 1, v0
v_lshlrev_b32 v12, 8, v12
v_lshl_add_u32 v12, v9, 4, v12
v_add_u32 v12, %d, v12
ds_read_b128 v[32:35], v12
ds_read_b128 v[36:39], v12 offset:64
ds_read_b128 v[40:43], v12 offset:128
ds_read_b128 v[44:47], v12 offset:192
s_mov_b32 s57, %s
s_mov_b32 s58, %s
s_waitcnt lgkmcnt(0)
""" % (QL, f32(128 ** -0.5), f32(LOG2E)))
        for s in range(4):
            for i in range(8):
                c = "0" if s == 0 else "v[%d:%d]" % (48 + 4 * i, 51 + 4 * i)
                e("v_mfma_f32_16x16x32_bf16 v[%d:%d], v[%d:%d], v[%d:%d], %s" % (48 + 4 * i, 51 + 4 * i, 128 + 16 * i + 4 * s, 131 + 16 * i + 4 * s, 32 + 4 * s, 35 + 4 * s, c))
        e("s_nop 1")
        for k in range(16):
            a, b = 48 + 2 * k, 49 + 2 * k
            e("""
v_cvt_pk_bf16_f32 v12, v%(a)d, v%(b)d
v_lshlrev_b32 v%(a)d, 16, v12
v_and_b32 v%(b)d, s56, v12
v_mul_f32 v%(a)d, s57, v%(a)d
v_mul_f32 v%(b)d, s57, v%(b)d
v_cvt_pk_bf16_f32 v12, v%(a)d, v%(b)d
v_lshlrev_b32 v%(a)d, 16, v12
v_and_b32 v%(b)d, s56, v12
""" % dict(a=a, b=b))
        e("v_max3_f32 v12, v48, v49, v50")
        for k in range(51, 79, 2):
            e("v_max3_f32 v12, v12, v%d, v%d" % (k, k + 1))
        e("""
v_max_f32 v12, v12, v79
v_mov_b32 v13, v12
s_nop 1
v_permlane16_swap_b32 v12, v13
s_nop 0
v_max_f32 v12, v12, v13
v_mov_b32 v13, v12
s_nop 1
v_permlane32_swap_b32 v12, v13
s_nop 0
v_max_f32 v12, v12, v13
""")
        for k in range(32):
            e("v_sub_f32 v%d, v%d, v12" % (48 + k, 48 + k))
        for k in range(32):
            e("v_mul_f32 v%d, s58, v%d" % (48 + k, 48 + k))
        for k in range(32):
            e("v_exp_f32 v%d, v%d" % (48 + k, 48 + k))
        e("v_add_f32 v13, v48, v49\nv_add_f32 v14, v50, v51")
        for k in range(52, 80, 2):
            e("v_add_f32 v13, v13, v%d\nv_add_f32 v14, v14, v%d" % (k, k + 1))
        for k in range(16):
            e("v_cvt_pk_bf16_f32 v%d, v%d, v%d" % (80 + k, 48 + 2 * k, 49 + 2 * k))
        e("""
v_add_f32 v13, v13, v14
v_mov_b32 v14, v13
s_nop 1
v_permlane16_swap_b32 v13, v14
s_nop 0
v_add_f32 v13, v13, v14
v_mov_b32 v14, v13
s_nop 1
v_permlane32_swap_b32 v13, v14
s_nop 0
v_add_f32 v13, v13, v14
s_lshl_b32 s54, s36, 4
s_add_u32 s54, s54, %d
v_lshlrev_b32 v14, 3, v0
v_add_u32 v14, s54, v14
s_mov_b64 exec, 3
ds_write_b64 v14, v[12:13]
s_mov_b64 exec, 1
v_mov_b32 v14, %d
v_mov_b32 v15, 1
s_waitcnt lgkmcnt(0)
ds_add_u32 v14, v15
s_mov_b64 exec, -1
""" % (STW, CNT_STAT))
        self.stamp(3)
        self.tile_ids()
        e("""
v_and_b32 v24, 1, v0
v_lshlrev_b32 v24, 9, v24
v_lshl_add_u32 v24, v9, 4, v24
s_lshl_b32 s54, s36, 10
s_add_u32 s54, s54, %d
v_add_u32 v24, s54, v24
v_mov_b32 v25, %d
v_mov_b32 v26, 1
v_lshlrev_b32 v27, 4, v0
v_add_u32 v28, %d, v27
v_lshrrev_b32 v29, 5, v0
v_lshlrev_b32 v29, 4, v29
v_add_u32 v29, %d, v29
s_lshl_b32 s49, s33, 2
s_add_u32 s49, s49, s35
s_lshl_b32 s49, s49, 10
s_add_u32 s49, s49, %d
v_mov_b32 v30, %d
""" % (OW, CNT_O, OW, SC, WS_OP, FLAG_SC))
        for i in range(4):
            fr = 128 + 32 * (i & 1)
            for h in range(2):
                e("s_add_u32 s55, s51, 4")
                if i == 3 and h == 1:
                    self.wait_lds("v30", "s54", "1", "v4", cached=False)
                    e("ds_read_b128 v[32:35], v29")
                self.wait_lds("v2", "s50", "s55", "v4")
                e("v_add_u32 v12, s53, v6")
                for t in range(8):
                    if t:
                        e("v_xor_b32 v%d, %d, v12" % (16 + t, 32 * t))
                for t in range(8):
                    e("ds_read_b64_tr_b16 v[%d:%d], v%d" % (fr + 4 * t + 2 * h, fr + 4 * t + 2 * h + 1, 16 + t if t else 12))
                advance()
            for t in range(8):
                e("s_waitcnt lgkmcnt(%d)" % (7 - t))
                c = "0" if i == 0 else "v[%d:%d]" % (96 + 4 * t, 99 + 4 * t)
                e("v_mfma_f32_16x16x32_bf16 v[%d:%d], v[%d:%d], v[%d:%d], %s" % (96 + 4 * t, 99 + 4 * t, fr + 4 * t, fr + 4 * t + 3, 80 + 4 * i, 83 + 4 * i, c))
            if i < 3:
                self.free_write("s51")
        if "nopost" in self.abl:
            self.free_write("0x10000")
            e("s_branch L_cs_end")
        e("""
s_mov_b32 exec_lo, 0x00030003
s_mov_b32 exec_hi, 0x00030003
v_mov_b32 v4, %d
""" % P_W)
        for t in range(8):
            if t == 6:
                e("s_nop 1")
            e("ds_write_b128 v24, v[%d:%d] offset:%d" % (96 + 4 * t, 99 + 4 * t, 64 * t))
        e("""
s_mov_b64 exec, 1
ds_add_rtn_u32 v16, v25, v26
ds_write_b32 v3, v4
s_mov_b64 exec, -1
s_waitcnt lgkmcnt(1)
v_readfirstlane_b32 s54, v16
s_cmp_lg_u32 s54, 3
s_cbranch_scc1 L_cs_nolast
ds_read_b128 v[96:99], v28
ds_read_b128 v[100:103], v28 offset:1024
ds_read_b128 v[104:107], v28 offset:2048
ds_read_b128 v[108:111], v28 offset:3072
s_waitcnt lgkmcnt(3)
""")
        for k in range(4):
            e("v_mul_f32 v%d, v%d, v32" % (96 + k, 96 + k))
        for w in range(1, 4):
            e("s_waitcnt lgkmcnt(%d)" % (3 - w))
            for k in range(4):
                e("v_fmac_f32 v%d, v%d, v%d" % (96 + k, 96 + 4 * w + k, 32 + w))
        e("buffer_store_dwordx4 v[96:99], v27, s[40:43], s49 offen sc1")
        self.stamp(10)
        self.label("L_cs_nolast")
        self.stamp(4)
        e("""
s_cmp_lt_u32 s31, 8
s_cbranch_scc1 L_cs_red
s_cmp_ge_u32 s31, 26
s_cbranch_scc1 L_cs_down
""")
        if "notile" in self.abl:
            e("s_branch L_cs_end")
        ringw = (P_W % RING_KB) * 1024
        e("""
v_lshlrev_b32 v20, 16, v9
v_lshl_add_u32 v20, v8, 4, v20
v_lshlrev_b32 v22, 12, v9
v_lshl_add_u32 v22, v11, 6, v22
s_lshl_b32 s46, s37, 12
s_lshl_b32 s47, s36, 8
s_add_u32 s46, s46, s47
s_add_u32 s46, s46, %d
s_lshl_b32 s47, s37, 8
s_lshr_b32 s48, s36, 1
s_lshl_b32 s48, s48, 3
s_add_u32 s47, s47, s48
s_add_u32 s47, s47, %d
s_lshl_b32 s54, s36, 13
s_add_u32 s54, s54, %d
v_add_u32 v12, s54, v7
v_xor_b32 v13, 32, v12
v_xor_b32 v14, 64, v12
v_xor_b32 v15, 0x60, v12
s_lshl_b32 s55, s36, 3
s_add_u32 s55, s55, %d
v_lshlrev_b32 v24, 8, v11
v_lshl_add_u32 v24, v9, 4, v24
s_lshl_b32 s54, s36, 10
s_add_u32 s54, s54, %d
v_add_u32 v24, s54, v24
v_mov_b32 v25, %d
v_add_u32 v28, %d, v27
v_mul_u32_u24 v29, 2304, v9
v_lshl_add_u32 v29, v8, 4, v29
s_mul_i32 s44, s37, %d
s_lshl_b32 s45, s38, 8
s_add_u32 s44, s44, s45
s_add_u32 s44, s44, %d
s_lshl_b32 s54, s36, 9
s_add_u32 s54, s54, %d
v_lshlrev_b32 v21, 7, v9
v_bfe_u32 v16, v0, 3, 1
v_lshl_add_u32 v21, v16, 6, v21
v_lshl_add_u32 v21, v11, 4, v21
v_bfe_u32 v16, v0, 2, 1
v_lshl_add_u32 v21, v16, 3, v21
v_add_u32 v21, s54, v21
v_lshlrev_b32 v23, 7, v11
v_lshl_add_u32 v23, v9, 4, v23
v_add_u32 v23, s54, v23
""" % (WS_OP, WS_ST, ringw, P_W + 8, RW, CNT_P, RW, PART_ROW, WS_PART, OB))
        sloads = ["buffer_load_dwordx2 v[232:233], v22, s[40:43], s47 offen sc1"]
        loads = ["buffer_load_dwordx4 v[%d:%d], v20, s[40:43], s46 offen offset:%d sc1" % (216 + 4 * k, 219 + 4 * k, 1024 * k) for k in range(4)]
        self.gather(sloads, [232, 233], 16, sleep=2)
        e("""
v_max_f32_dpp v16, v232, v232 quad_perm:[1,0,3,2] row_mask:0xf bank_mask:0xf
s_nop 1
v_max_f32_dpp v16, v16, v16 quad_perm:[2,3,0,1] row_mask:0xf bank_mask:0xf
v_sub_f32 v232, v232, v16
v_mul_f32 v232, s58, v232
v_exp_f32 v232, v232
s_nop 0
v_mul_f32 v16, v232, v233
s_nop 1
v_add_f32_dpp v16, v16, v16 quad_perm:[1,0,3,2] row_mask:0xf bank_mask:0xf
s_nop 1
v_add_f32_dpp v16, v16, v16 quad_perm:[2,3,0,1] row_mask:0xf bank_mask:0xf
v_rcp_f32 v16, v16
s_nop 0
v_mul_f32 v232, v232, v16
""")
        for g in self.gpos:
            self.wait_lds("v2", "s50", str(P_W + g), "v4")
            for l in loads:
                e(l)
        self.stamp(8)
        self.wait_lds("v2", "s50", "s55", "v4")
        for s in range(2):
            for q in range(4):
                r = 128 + 16 * s + 4 * q
                e("ds_read_b64_tr_b16 v[%d:%d], v%d offset:%d" % (r, r + 1, 12 + q, 4096 * s))
                e("ds_read_b64_tr_b16 v[%d:%d], v%d offset:%d" % (r + 2, r + 3, 12 + q, 4096 * s + 2048))
        Lo = self.lab("Lgo")
        Dn = self.lab("Lgod")
        e("s_mov_b32 s59, %d" % self.spin)
        self.label(Lo)
        e("s_waitcnt vmcnt(%d)" % (4 * (len(self.gpos) - 1)))
        e("v_max3_u32 v36, v216, v217, v218\nv_max3_u32 v37, v219, v220, v221")
        for i, r in enumerate(range(222, 232, 2)):
            e("v_max3_u32 v%d, v%d, v%d, v%d" % (36 + (i & 1), 36 + (i & 1), r, r + 1))
        e("v_max_u32 v36, v36, v37\nv_cmp_eq_u32 vcc, -1, v36\ns_cbranch_vccz %s" % Dn)
        e("s_mov_b64 exec, vcc")
        for l in loads:
            e(l)
        e("s_mov_b64 exec, -1\ns_sub_u32 s59, s59, 1\ns_cmp_lg_u32 s59, 0\ns_cbranch_scc1 %s" % Lo)
        self.label(Dn)
        self.stamp(5)
        self.rawstamp(7, "s59")
        for k in range(4):
            e("v_mul_f32_dpp v%d, v232, v%d quad_perm:[0,0,0,0] row_mask:0xf bank_mask:0xf" % (240 + k, 216 + k))
        for j in range(1, 4):
            for k in range(4):
                e("v_fmac_f32_dpp v%d, v232, v%d quad_perm:[%d,%d,%d,%d] row_mask:0xf bank_mask:0xf" % (240 + k, 216 + 4 * j + k, j, j, j, j))
        e("""
v_cvt_pk_bf16_f32 v244, v240, v241
v_cvt_pk_bf16_f32 v245, v242, v243
ds_write_b64 v21, v[244:245]
ds_read_b128 v[232:235], v23
ds_read_b128 v[236:239], v23 offset:64
""")
        e("s_waitcnt lgkmcnt(0)\ns_nop 0")
        for s in range(2):
            for q in range(4):
                r = 128 + 16 * s + 4 * q
                c = "0" if s == 0 else "v[%d:%d]" % (240 + 4 * q, 243 + 4 * q)
                e("v_mfma_f32_16x16x32_bf16 v[%d:%d], v[%d:%d], v[%d:%d], %s" % (240 + 4 * q, 243 + 4 * q, r, r + 3, 232 + 4 * s, 235 + 4 * s, c))
        e("""
s_mov_b32 exec_lo, 0x000f000f
s_mov_b32 exec_hi, 0x000f000f
s_nop 2
ds_write_b128 v24, v[240:243]
s_nop 0
ds_write_b128 v24, v[244:247] offset:64
s_nop 0
ds_write_b128 v24, v[248:251] offset:128
s_nop 0
ds_write_b128 v24, v[252:255] offset:192
s_mov_b64 exec, 1
ds_add_rtn_u32 v16, v25, v26
s_mov_b64 exec, -1
s_waitcnt lgkmcnt(0)
v_readfirstlane_b32 s54, v16
s_cmp_lg_u32 s54, 3
s_cbranch_scc1 L_cs_end
ds_read_b128 v[96:99], v28
ds_read_b128 v[100:103], v28 offset:1024
ds_read_b128 v[104:107], v28 offset:2048
ds_read_b128 v[108:111], v28 offset:3072
s_waitcnt lgkmcnt(2)
v_add_f32 v96, v96, v100
v_add_f32 v97, v97, v101
v_add_f32 v98, v98, v102
v_add_f32 v99, v99, v103
s_waitcnt lgkmcnt(0)
v_add_f32 v104, v104, v108
v_add_f32 v105, v105, v109
v_add_f32 v106, v106, v110
v_add_f32 v107, v107, v111
v_add_f32 v96, v96, v104
v_add_f32 v97, v97, v105
v_add_f32 v98, v98, v106
v_add_f32 v99, v99, v107
buffer_store_dwordx4 v[96:99], v29, s[40:43], s44 offen sc1
""")
        self.stamp(6)
        e("s_branch L_cs_end")
        self.label("L_cs_down")
        e("""
v_bfe_u32 v13, v0, 3, 2
v_mul_u32_u24 v14, 384, v10
v_lshl_add_u32 v14, v11, 3, v14
v_add_u32 v14, %d, v14
s_mul_i32 s54, s36, 3
v_xor_b32 v16, s54, v13
v_lshl_add_u32 v16, v16, 5, v14
s_add_u32 s54, s54, 1
v_xor_b32 v17, s54, v13
v_lshl_add_u32 v17, v17, 5, v14
s_add_u32 s54, s54, 1
v_xor_b32 v18, s54, v13
v_lshl_add_u32 v18, v18, 5, v14
v_mul_u32_u24 v12, 5462, v0
v_lshrrev_b32 v12, 16, v12
v_mul_u32_u24 v19, 12, v12
v_sub_u32 v19, v0, v19
v_mul_u32_u24 v12, 2304, v12
v_lshl_add_u32 v19, v19, 4, v12
s_mov_b32 s46, %d
s_cmp_lt_u32 s36, 2
s_cselect_b32 s46, %d, s46
s_mul_i32 s45, s36, 768
s_add_u32 s45, s45, s46
v_mul_u32_u24 v21, 192, v11
v_lshl_add_u32 v21, v9, 4, v21
v_add_u32 v21, s45, v21
v_add_u32 v22, s45, v27
s_mul_i32 s44, s37, %d
s_mul_i32 s45, s38, 768
s_add_u32 s44, s44, s45
s_mul_i32 s45, s36, 192
s_add_u32 s44, s44, s45
s_add_u32 s44, s44, %d
v_mov_b32 v12, %d
""" % (ringw, XN + 2304 - 1536, OB, PART_ROW, WS_PART, FLAG_H))
        self.wait_lds("v12", "s54", "1", "v4", cached=False)
        e("""
v_mul_u32_u24 v20, %d, v11
v_lshl_add_u32 v20, v9, 4, v20
v_add_u32 v20, %d, v20
s_mov_b32 s51, %d
""" % (H_STRIDE, XN, P_W + 12))
        for k in range(12):
            e("v_mov_b32 v%d, 0" % (240 + k))
        L = self.lab("Ldn")
        self.label(L)
        self.wait_lds("v2", "s50", "s51", "v4")
        e("ds_read_b128 v[232:235], v20")
        for q in range(3):
            r = 192 + 4 * q
            e("ds_read_b64_tr_b16 v[%d:%d], v%d" % (r, r + 1, 16 + q))
            e("ds_read_b64_tr_b16 v[%d:%d], v%d offset:6144" % (r + 2, r + 3, 16 + q))
        e("v_add_u32 v20, 64, v20")
        for q in range(3):
            e("v_add_u32 v%d, 12288, v%d" % (16 + q, 16 + q))
        e("s_add_u32 s51, s51, 12\ns_cmp_le_u32 s51, %d" % (P_W + 108))
        for q in range(3):
            r = 192 + 4 * q
            e("s_waitcnt lgkmcnt(%d)" % (4 - 2 * q))
            e("v_mfma_f32_16x16x32_bf16 v[%d:%d], v[%d:%d], v[232:235], v[%d:%d]" % (240 + 4 * q, 243 + 4 * q, r, r + 3, 240 + 4 * q, 243 + 4 * q))
        e("s_cbranch_scc1 %s" % L)
        e("""
s_mov_b32 exec_lo, 0x000f000f
s_mov_b32 exec_hi, 0x000f000f
s_nop 4
ds_write_b128 v21, v[240:243]
s_nop 0
ds_write_b128 v21, v[244:247] offset:64
s_nop 0
ds_write_b128 v21, v[248:251] offset:128
s_mov_b32 exec_lo, -1
s_mov_b32 exec_hi, 0xffff
ds_read_b128 v[240:243], v22
s_waitcnt lgkmcnt(0)
buffer_store_dwordx4 v[240:243], v19, s[40:43], s44 offen sc1
""")
        self.stamp(6)
        e("s_branch L_cs_end")
        self.label("L_cs_red")
        if "nored" in self.abl:
            e("s_branch L_cs_end")
        e("""
s_lshl_b32 s44, s30, 3
s_add_u32 s44, s44, s31
s_lshl_b32 s45, s36, 6
s_add_u32 s44, s44, s45
s_cmp_ge_u32 s44, 72
s_cbranch_scc1 L_cs_end
s_lshl_b32 s54, s44, 6
v_and_b32 v17, 7, v0
v_lshlrev_b32 v42, 3, v17
buffer_load_dwordx2 v[40:41], v42, s[60:63], s54 offen
v_bfe_u32 v16, v0, 3, 2
v_lshrrev_b32 v18, 5, v0
v_lshl_add_u32 v16, v18, 4, v16
v_mul_u32_u24 v16, %d, v16
v_lshl_add_u32 v16, v17, 4, v16
s_lshl_b32 s44, s44, 7
s_add_u32 s44, s44, %d
s_add_u32 s45, s44, %d
s_add_u32 s46, s45, %d
s_add_u32 s47, s46, %d
s_mov_b32 s57, %s
s_mov_b32 s60, s22
s_mov_b32 s61, s23
""" % (PART_ROW, WS_PART, 4 * PART_ROW, 4 * PART_ROW, 4 * PART_ROW, f32(-LOG2E)))
        self.stamp(8)
        loads = ["buffer_load_dwordx4 v[%d:%d], v16, s[40:43], s%d offen sc1" % (48 + 4 * k, 51 + 4 * k, 44 + k) for k in range(4)]
        Lp = self.lab("Lpr")
        Lq = self.lab("Lprd")
        e("s_mov_b32 s59, %d\ns_mov_b32 exec_lo, 1\ns_mov_b32 exec_hi, 1" % self.spin)
        self.label(Lp)
        e("""
buffer_load_dword v48, v16, s[40:43], s44 offen sc1
buffer_load_dword v56, v16, s[40:43], s46 offen sc1
s_waitcnt vmcnt(0)
v_min_u32 v64, v48, v56
v_cmp_ne_u32 vcc, -1, v64
s_cbranch_vccnz %s
s_sleep %d
s_sub_u32 s59, s59, 1
s_cmp_lg_u32 s59, 0
s_cbranch_scc1 %s
""" % (Lq, self.isleep, Lp))
        self.label(Lq)
        e("""
s_mov_b64 exec, -1
v_lshlrev_b32 v76, 16, v40
v_and_b32 v77, s56, v40
v_lshlrev_b32 v78, 16, v41
v_and_b32 v79, s56, v41
""")
        if self.pipe:
            self.gather_pipe(loads, list(range(48, 64)), 64, depth=self.pipe)
        else:
            self.gather(loads, list(range(48, 64)), 64, sleep=self.tsleep)
        self.stamp(5)
        self.rawstamp(7, "s59")
        for k in range(4):
            e("v_add_f32 v%d, v%d, v%d" % (64 + k, 48 + k, 52 + k))
        for k in range(4):
            e("v_add_f32 v%d, v%d, v%d" % (68 + k, 56 + k, 60 + k))
        for k in range(4):
            e("v_add_f32 v%d, v%d, v%d" % (64 + k, 64 + k, 68 + k))
        for k in range(4):
            e("v_add_f32_dpp v%d, v%d, v%d row_ror:8 row_mask:0xf bank_mask:0xf" % (64 + k, 64 + k, 64 + k))
        for k in range(4):
            e("v_mov_b32 v%d, v%d" % (68 + k, 64 + k))
        e("s_nop 0")
        for k in range(4):
            e("v_permlane16_swap_b32 v%d, v%d" % (64 + k, 68 + k))
        for k in range(4):
            e("v_add_f32 v%d, v%d, v%d" % (64 + k, 64 + k, 68 + k))
        e("""
v_cvt_pk_bf16_f32 v68, v64, v65
v_cvt_pk_bf16_f32 v69, v66, v67
v_lshlrev_b32 v64, 16, v68
v_and_b32 v65, s56, v68
v_lshlrev_b32 v66, 16, v69
v_and_b32 v67, s56, v69
""")
        for k in range(4):
            e("v_mul_f32 v%d, s57, v%d" % (72 + k, 64 + k))
        for k in range(4):
            e("v_exp_f32 v%d, v%d" % (72 + k, 72 + k))
        for k in range(4):
            e("v_add_f32 v%d, 1.0, v%d" % (72 + k, 72 + k))
        for k in range(4):
            e("v_rcp_f32 v%d, v%d" % (72 + k, 72 + k))
        for k in range(4):
            e("v_mul_f32 v%d, v%d, v%d" % (72 + k, 72 + k, 64 + k))
        e("""
v_cvt_pk_bf16_f32 v68, v72, v73
v_cvt_pk_bf16_f32 v69, v74, v75
s_nop 1
v_permlane32_swap_b32 v70, v68
v_permlane32_swap_b32 v71, v69
s_nop 0
""")
        self.o[-3] = "    v_permlane32_swap_b32 v68, v70"
        self.o[-2] = "    v_permlane32_swap_b32 v69, v71"
        e("""
v_lshlrev_b32 v72, 16, v70
v_and_b32 v73, s56, v70
v_lshlrev_b32 v74, 16, v71
v_and_b32 v75, s56, v71
""")
        for k in range(4):
            e("v_mul_f32 v%d, v%d, v%d" % (64 + k, 64 + k, 72 + k))
        e("""
v_cvt_pk_bf16_f32 v68, v64, v65
v_cvt_pk_bf16_f32 v69, v66, v67
v_lshlrev_b32 v64, 16, v68
v_and_b32 v65, s56, v68
v_lshlrev_b32 v66, 16, v69
v_and_b32 v67, s56, v69
v_add_f32 v64, v64, v76
v_add_f32 v65, v65, v77
v_add_f32 v66, v66, v78
v_add_f32 v67, v67, v79
v_cvt_pk_bf16_f32 v68, v64, v65
v_cvt_pk_bf16_f32 v69, v66, v67
s_mov_b64 exec, 0xff
buffer_store_dwordx2 v[68:69], v42, s[60:63], s54 offen%s
""" % self.outflag)
        self.stamp(6)
        self.label("L_cs_end")
        if self.stamps:
            e("s_waitcnt vmcnt(0)")
            self.stamp(9)
            self.flush_stamps([(4, 32), (10, 33), (8, 34), (5, 35), (6, 36), (9, 37), (7, 38)], wave_off=True)
            e("s_cmp_lg_u32 s36, 0\ns_cbranch_scc1 L_end")
            self.flush_stamps([(0, 11), (1, 12), (2, 13), (3, 14), (4, 8), (5, 15), (7, 22), (8, 23), (6, 24), (9, 10)])
        self.label("L_end")
        e("s_endpgm")
        self.label("L_code_end")

    def build(self):
        hdr = open("cdna_kernels/%s.s.ref" % KN).read().split("\n")
        head = []
        for l in hdr:
            if l.startswith("; @launch"):
                break
            head.append(l)
        head.append("; @launch grid=(256,1,1) block=(384,1,1) lds=%d" % LDS_TOTAL)
        head += ['.amdgcn_target "amdgcn-amd-amdhsa--gfx950"', ".text", ".globl %s_kernel" % KN, ".p2align 8",
                 ".type %s_kernel,@function" % KN, "%s_kernel:" % KN]
        self.prologue()
        self.loader()
        self.comm()
        self.cons()
        tail = """.section .rodata,"a"
.p2align 6
.amdhsa_kernel %s_kernel
  .amdhsa_next_free_vgpr 256
  .amdhsa_next_free_sgpr 102
  .amdhsa_accum_offset 256
  .amdhsa_group_segment_fixed_size 0
  .amdhsa_kernarg_size 96
  .amdhsa_user_sgpr_count 2
  .amdhsa_user_sgpr_kernarg_segment_ptr 1
  .amdhsa_system_sgpr_workgroup_id_x 1
  .amdhsa_float_denorm_mode_32 3
.end_amdhsa_kernel
""" % KN
        return "\n".join(head + self.o) + "\n" + tail


if __name__ == "__main__":
    import argparse
    ap = argparse.ArgumentParser()
    ap.add_argument("out")
    ap.add_argument("--stamps", action="store_true")
    ap.add_argument("--W", type=int, default=20)
    ap.add_argument("--nont", action="store_true")
    ap.add_argument("--tsleep", type=int, default=1)
    ap.add_argument("--csleep", type=int, default=0)
    ap.add_argument("--abl", type=str, default="")
    ap.add_argument("--gearly", type=int, default=-16)
    ap.add_argument("--isleep", type=int, default=4)
    ap.add_argument("--Wlate", type=int, default=0)
    ap.add_argument("--pipe", type=int, default=3)
    ap.add_argument("--adapt", action="store_true")
    ap.add_argument("--wlevels", type=str, default="16,20,24,28")
    ap.add_argument("--wthr", type=str, default="-20,20,55")
    ap.add_argument("--outflag", type=str, default="")
    ap.add_argument("--gpos", type=str, default="28")
    ap.add_argument("--Wc3", type=int, default=0)
    ap.add_argument("--Wcol", type=int, default=0)
    ap.add_argument("--ilv", type=int, default=0)
    ap.add_argument("--cpf", type=int, default=0)
    ap.add_argument("--wrole", type=str, default="20,22,22,24")
    ap.add_argument("--npre", type=int, default=6)
    ap.add_argument("--qpos", type=int, default=120)
    ap.add_argument("--qposd", type=int, default=130)
    ap.add_argument("--noprobe", action="store_true")
    ap.add_argument("--wsoff", type=lambda x: int(x, 0), default=0)
    a = ap.parse_args()
    open(a.out, "w").write(Gen(W=a.W, stamps=a.stamps, nt=not a.nont, tsleep=a.tsleep, csleep=a.csleep, abl=a.abl.split(","), gearly=a.gearly, isleep=a.isleep, wsoff=a.wsoff, qpos=a.qpos, qposd=a.qposd, probe=not a.noprobe, Wlate=a.Wlate, pipe=a.pipe, npre=a.npre, wrole=tuple(int(x) for x in a.wrole.split(",")), cpf=a.cpf, ilv=a.ilv, Wc3=a.Wc3, Wcol=a.Wcol, gpos=tuple(int(x) for x in a.gpos.split(",")), outflag=(" " + a.outflag.replace("_", " ") if a.outflag else ""), adapt=a.adapt, wlevels=tuple(int(x) for x in a.wlevels.split(",")), wthr=tuple(int(x) for x in a.wthr.split(","))).build())
```

```python
import sys, struct

KN = "recurrent_scan__sliding_block_cached__geglu_ffn__decode"

RING_KB = 148
RING_BYTES = RING_KB * 1024
AUX = RING_BYTES
XN = AUX
XN_STRIDE = 1216
H_STRIDE = 576
QL = AUX + 4864
OW = AUX + 5376
FULL = AUX + 9472
FREE = AUX + 9728
STW = AUX + 9744
SC = AUX + 9808
CNT_STAT = AUX + 9840
CNT_O = AUX + 9844
FLAG_Q = AUX + 9848
FLAG_H = AUX + 9852
FLAG_SC = AUX + 9856
CNT_P = AUX + 9860
CNT_C = AUX + 9864
FLAG_CLR = AUX + 9868
WCLS = AUX + 9872
OB = AUX + 9984
LDS_TOTAL = AUX + 9984 + 2048

WS_CQ = 0
CQ_STRIDE = 8192
WS_CGU = 0x8000
CGU_STRIDE = 18432
SH_BASE = 0x8000
WS_ST = 0x1A000
WS_OP = 0x1E000
WS_PART = 0x5E000
PART_ROW = 9216
WS_SIZE = 0x5E000 + 32 * 9216
RW = XN

P_K, P_V, P_W = 72, 200, 328

def f32(x):
    return "0x%08x" % struct.unpack("<I", struct.pack("<f", x))[0]

LOG2E = 1.4426950408889634


class Gen:
    def __init__(self, W=20, stamps=False, nt=True, spin=1 << 16, sleep=True, tsleep=1, csleep=0, abl=(), gearly=-16, isleep=12, wsoff=0, qpos=120, qposd=130, probe=True, Wlate=None, gpos=(28,), npre=6, wrole=(20, 22, 22, 24), cpf=0, ilv=0, Wc3=0, Wcol=0, pipe=3, outflag="", adapt=False, wlevels=(16, 20, 24, 28), wthr=(-20, 20, 55)):
        self.o = []
        self.n = 0
        self.W = W
        self.npre = npre
        self.wrole = wrole
        self.cpf = cpf
        self.ilv = ilv
        self.Wc3 = Wc3
        self.Wcol = Wcol
        self.gpos = gpos
        self.outflag = outflag
        self.adapt = adapt
        self.wlevels = wlevels
        self.wthr = wthr
        self.pipe = pipe
        self.Wlate = Wlate or W
        self.stamps = stamps
        self.nt = " nt" if nt else ""
        self.spin = spin
        self.sleep = sleep
        self.qpos = qpos
        self.qposd = qposd
        self.fgap = 32
        self.mbase = 4
        self.hpos = 190
        self.probe = probe
        self.gearly = gearly
        self.wsoff = wsoff
        self.isleep = isleep
        self.tsleep = tsleep
        self.abl = set(abl)
        self.csleep = csleep

    def e(self, s):
        for line in s.strip("\n").split("\n"):
            self.o.append(line if line.rstrip().endswith(":") and not line.startswith(" ") else "    " + line.strip())

    def lab(self, p="L"):
        self.n += 1
        return "%s_%d" % (p, self.n)

    def label(self, l):
        self.o.append(l + ":")

    def sreg(self, k):
        return 70 + 2 * k if k < 10 else 92 + 2 * (k - 10)

    def stamp(self, k):
        if self.stamps:
            self.e("s_memrealtime s[%d:%d]" % (self.sreg(k), self.sreg(k) + 1))

    def rawstamp(self, k, expr_reg):
        if self.stamps:
            self.e("s_sub_u32 s%d, %d, %s\ns_mov_b32 s%d, 0" % (self.sreg(k), self.spin, expr_reg, self.sreg(k) + 1))

    def flush_stamps(self, items, wave_off=False):
        if not self.stamps:
            return
        self.e("""
s_waitcnt lgkmcnt(0)
s_add_u32 s64, s26, 0x10000000
s_addc_u32 s65, s27, 0
s_mov_b32 s66, 0x100000
s_mov_b32 s67, 0x00020000
s_mul_i32 s68, s2, 512
s_mov_b64 exec, 1
""")
        if wave_off:
            self.e("s_lshl_b32 s64, s36, 6\ns_add_u32 s68, s68, s64\ns_add_u32 s64, s26, 0x10000000")
        for k, slot in items:
            self.e("""
v_mov_b32 v250, s%d
v_mov_b32 v251, s%d
v_mov_b32 v252, %d
buffer_store_dwordx2 v[250:251], v252, s[64:67], s68 offen
s_nop 1
""" % (self.sreg(k), self.sreg(k) + 1, slot * 8))

    def wait_lds(self, vaddr, sreg, thr, vtmp, cached=True, sleep=0):
        l = self.lab("Lw")
        d = self.lab("Ld")
        if cached:
            self.e("s_cmp_ge_i32 %s, %s\ns_cbranch_scc1 %s" % (sreg, thr, d))
        self.label(l)
        self.e("ds_read_b32 %s, %s\ns_waitcnt lgkmcnt(0)\nv_readfirstlane_b32 %s, %s" % (vtmp, vaddr, sreg, vtmp))
        self.e("s_cmp_ge_i32 %s, %s\ns_cbranch_scc1 %s" % (sreg, thr, d))
        sleep = sleep or self.csleep
        if sleep:
            self.e("s_sleep %d" % sleep)
        self.e("s_sub_i32 s69, s69, 1\ns_cmp_gt_i32 s69, 0\ns_cbranch_scc1 %s" % l)
        self.label(d)

    def prologue(self):
        self.e("""
s_cmp_ge_u32 s2, 256
s_cbranch_scc1 L_end
s_load_dwordx16 s[4:19], s[0:1], 0
s_load_dwordx8 s[20:27], s[0:1], 64
v_lshrrev_b32 v1, 6, v0
v_and_b32 v0, 63, v0
s_and_b32 s30, s2, 7
s_mov_b32 s69, 0x400000
v_readfirstlane_b32 s36, v1
s_lshr_b32 s31, s2, 3
s_lshr_b32 s32, s31, 4
s_lshl_b32 s33, s30, 1
s_add_u32 s32, s32, s33
s_lshr_b32 s34, s31, 2
s_and_b32 s34, s34, 3
s_and_b32 s35, s31, 3
s_lshl_b32 s33, s34, 4
s_add_u32 s33, s33, s32
s_cmp_eq_u32 s36, %d
s_cbranch_scc1 L_comm
s_cmp_lg_u32 s36, 0
s_cbranch_scc1 L_cons
""" % (4 if "perm" in self.abl else 1))

    def tile_ids(self):
        self.e("""
s_sub_u32 s38, s31, 8
s_cmp_ge_u32 s38, 9
s_cselect_b32 s37, 1, 0
s_cselect_b32 s39, 9, 0
s_sub_u32 s38, s38, s39
s_cmp_ge_u32 s31, 26
s_cbranch_scc0 %(l)s
s_sub_u32 s38, s31, 26
s_cmp_ge_u32 s38, 3
s_cselect_b32 s37, 17, 16
s_cselect_b32 s39, 3, 0
s_sub_u32 s38, s38, s39
%(l)s:
s_lshl_b32 s39, s30, 1
s_add_u32 s37, s37, s39
""" % dict(l=self.lab("Lt")))

    def loader(self):
        W = self.W
        nt = self.nt
        e = self.e
        self.stamp(0)
        e("""
s_setprio 3
v_lshrrev_b32 v12, 3, v0
v_and_b32 v13, 7, v0
v_and_b32 v14, 6, v12
v_xor_b32 v13, v13, v14
v_lshlrev_b32 v13, 4, v13
s_lshl_b32 s46, s33, 21
s_lshl_b32 s47, s35, 17
s_add_u32 s46, s46, s47
s_add_u32 s46, s46, 0x180000
s_mov_b32 s63, 0x00020000
s_cmp_lt_u32 s31, 26
s_cbranch_scc1 L_ld_cfirst
v_lshrrev_b32 v8, 4, v0
v_and_b32 v9, 15, v0
v_lshlrev_b32 v10, 1, v8
v_xor_b32 v11, v9, v10
v_lshlrev_b32 v11, 4, v11
v_lshl_add_u32 v3, v8, 8, v11
v_xor_b32 v4, 0x80, v3
v_mov_b32 v5, v3
v_mov_b32 v6, v4
s_movk_i32 s41, 4096
s_mov_b32 s51, s46
s_mov_b32 s43, 0
s_mov_b32 s62, 0x8000000
s_mov_b32 m0, 0x12000
s_waitcnt lgkmcnt(0)
s_mov_b32 s60, s6
s_mov_b32 s61, s7
s_branch L_ld_pre
L_ld_cfirst:
s_mul_i32 s43, s30, 9
s_add_u32 s43, s43, s31
s_cmp_lt_u32 s31, 17
s_cselect_b32 s44, 8, 17
s_movk_i32 s40, 0x2400
s_cmp_lt_u32 s31, 8
s_cselect_b32 s44, s30, s44
s_cselect_b32 s40, 0x2000, s40
s_sub_u32 s43, s43, s44
s_lshl_b32 s51, s43, 7
v_mad_u32_u24 v3, v12, s40, v13
s_lshl_b32 s41, s40, 5
s_lshl_b32 s42, s40, 3
s_sub_u32 s42, s42, 1024
v_add_u32 v4, s42, v3
v_add_u32 v5, s42, v4
v_add_u32 v6, s42, v5
s_mul_i32 s62, s40, 576
s_mov_b32 m0, 0
s_cmp_lt_u32 s31, 17
s_waitcnt lgkmcnt(0)
s_cselect_b32 s60, s16, s18
s_cselect_b32 s61, s17, s19
s_cmp_lt_u32 s31, 8
s_cselect_b32 s60, s10, s60
s_cselect_b32 s61, s11, s61
L_ld_pre:
""")
        self.stamp(4)
        for k in range(self.npre):
            if k:
                e("s_add_u32 m0, m0, 4096\ns_add_u32 s51, s51, s41")
            for i, p in enumerate([3, 4, 5, 6]):
                off = " offset:%d" % (i * 1024) if i else ""
                e("buffer_load_dwordx4 v%d, s[60:63], s51 offen%s%s lds" % (p, off, nt))
        e("s_add_u32 s51, s51, s41")
        self.stamp(5)
        kvpat = """
v_lshrrev_b32 v8, 4, v0
v_and_b32 v9, 15, v0
v_lshlrev_b32 v10, 1, v8
v_xor_b32 v11, v9, v10
v_lshlrev_b32 v11, 4, v11
v_lshl_add_u32 v1, v8, 8, v11
v_xor_b32 v2, 0x80, v1
"""
        e(kvpat)
        e("""
v_mul_u32_u24 v20, 1152, v12
v_add_u32 v20, v20, v13
v_add_u32 v21, 8192, v20
v_add_u32 v22, 8192, v21
v_add_u32 v23, 8192, v22
""")
        for i in range(3):
            e("""
v_add_u32 v12, %d, v0
v_mul_u32_u24 v13, 2731, v12
v_lshrrev_b32 v13, 16, v13
v_mul_u32_u24 v14, 24, v13
v_sub_u32 v14, v12, v14
v_and_b32 v15, 6, v13
v_xor_b32 v14, v14, v15
v_mul_u32_u24 v13, 1152, v13
v_lshl_add_u32 v%d, v14, 4, v13
""" % (64 * i, 17 + i))
        e("""
v_mov_b32 v7, v17
v_add_u32 v8, 0xfffffc00, v18
v_add_u32 v9, 0xfffff800, v19
v_lshlrev_b32 v10, 2, v0
v_add_u32 v10, %d, v10
v_mov_b32 v11, %d
s_mov_b32 s55, 0
""" % (FULL, FREE))
        self.tile_ids()
        cur = [W]

        def run(pats, step_reg_or_imm, n_iter, check_free, label=None):
            n = len(pats)
            L = self.lab("Lrun")
            e("s_mov_b32 s52, %d" % n_iter)
            self.label(L)
            if check_free:
                ok = self.lab("Lok")
                sl = self.lab("Lsl")
                e("s_add_i32 s54, s53, %d\ns_cmp_le_i32 s54, s55\ns_cbranch_scc1 %s" % (n - RING_KB, ok))
                self.label(sl)
                e("""
ds_read_b128 v[12:15], v11
s_waitcnt lgkmcnt(0)
v_min_u32 v12, v12, v13
v_min3_u32 v12, v12, v14, v15
s_nop 0
v_readfirstlane_b32 s55, v12
s_cmp_le_i32 s54, s55
s_cbranch_scc1 %s
s_sub_i32 s69, s69, 1
s_cmp_gt_i32 s69, 0
s_cbranch_scc1 %s
""" % (ok, sl))
                self.label(ok)
            e("s_mov_b32 m0, s50")
            e("s_add_u32 s50, s50, %d" % (n * 1024))
            for i, p in enumerate(pats):
                off = " offset:%d" % (i * 1024) if i else ""
                e("buffer_load_dwordx4 v%d, s[60:63], s51 offen%s%s lds" % (p, off, nt))
            e("s_add_u32 s51, s51, %s" % step_reg_or_imm)
            e("s_cmp_eq_u32 s50, %d\ns_cselect_b32 s50, 0, s50" % RING_BYTES)
            e("s_add_u32 s53, s53, %d" % n)
            lv = sorted(set(self.wrole), reverse=True)
            if len(lv) > 1:
                dn = self.lab("Lwd")
                for i, w in enumerate(lv):
                    e("s_waitcnt vmcnt(%d)" % w)
                    if i < len(lv) - 1:
                        e("s_cmp_ge_u32 s57, %d\ns_cbranch_scc1 %s" % (w, dn))
                self.label(dn)
                e("s_sub_u32 s54, s53, s57\nv_mov_b32 v16, s54\nds_write_b32 v10, v16")
            else:
                e("s_waitcnt vmcnt(%d)" % cur[0])
                e("s_sub_u32 s54, s53, %d\nv_mov_b32 v16, s54\nds_write_b32 v10, v16" % cur[0])
            e("s_sub_u32 s52, s52, 1\ns_cmp_lg_u32 s52, 0\ns_cbranch_scc1 %s" % L)

        def batch(pats, srd, soff, step):
            n = len(pats)
            e("s_mov_b32 m0, s50")
            e("s_add_u32 s50, s50, %d" % (n * 1024))
            for i, p in enumerate(pats):
                off = " offset:%d" % (i * 1024) if i else ""
                e("buffer_load_dwordx4 v%d, s[%d:%d], %s offen%s%s lds" % (p, srd, srd + 3, soff, off, nt))
            e("s_add_u32 %s, %s, %s" % (soff, soff, step))
            e("s_add_u32 s53, s53, %d" % n)
            e("s_waitcnt vmcnt(%d)" % cur[0])
            e("s_sub_u32 s54, s53, %d\nv_mov_b32 v16, s54\nds_write_b32 v10, v16" % cur[0])

        def ilv_run():
            L = self.lab("Lilv")
            M = self.lab("Lilm")
            e("s_mov_b32 s64, s6\ns_mov_b32 s65, s7\ns_mov_b32 s66, 0x8000000\ns_mov_b32 s67, 0x00020000\ns_mov_b32 s52, 9\ns_branch %s" % M)
            self.label(L)
            batch([3, 4, 5, 6], 60, "s51", "s41")
            self.label(M)
            batch([3, 4, 5, 6], 60, "s51", "s41")
            batch([1, 2, 1, 2], 64, "s46", "4096")
            e("s_sub_u32 s52, s52, 1\ns_cmp_lg_u32 s52, 0\ns_cbranch_scc1 %s" % L)
            e("s_mov_b32 s56, 23\ns_branch L_ld_k")

        def stream(W, sfx):
            cur[0] = W
            o0 = len(self.o)
            e("s_barrier\ns_cmp_ge_u32 s31, 26\ns_cbranch_scc1 L_ld_nocol")
            e("s_mov_b32 s50, %d\ns_mov_b32 s53, %d\ns_mov_b32 s56, 32" % (4096 * self.npre, 4 * self.npre))
            run([3, 4, 5, 6], "s41", 18 - self.npre, False)
            e("s_branch L_ld_k")
            self.label("L_ld_nocol")
            e("s_mov_b32 s46, s51\ns_mov_b32 s50, %d\ns_mov_b32 s53, %d\ns_mov_b32 s56, %d" % ((P_K + 4 * self.npre) * 1024, P_K + 4 * self.npre, 32 - self.npre))
            self.label("L_ld_k")
            self.stamp(1)
            e("s_mov_b32 s60, s6\ns_mov_b32 s61, s7\ns_mov_b32 s62, 0x8000000\ns_mov_b32 s51, s46")
            if "fine" in self.abl:
                for q in range(4):
                    run([1, 2, 1, 2], "4096", 8, True)
                    self.stamp(4 + q)
                e("s_mov_b32 s60, s8\ns_mov_b32 s61, s9\ns_mov_b32 s51, s46")
                for q in range(4):
                    run([1, 2, 1, 2], "4096", 8, True)
                    if q < 3:
                        self.stamp(8 + q)
            else:
                o1 = len(self.o)
                run([1, 2, 1, 2], "4096", 32, True)
                self.o[o1] = "    s_mov_b32 s52, s56"
                e("s_mov_b32 s60, s8\ns_mov_b32 s61, s9\ns_sub_u32 s51, s51, 0x20000")
                run([1, 2, 1, 2], "4096", 32, True)
            self.stamp(2)
            e("""
s_cmp_ge_u32 s31, 26
s_cbranch_scc1 L_ld_down
s_cmp_lt_u32 s31, 8
s_cbranch_scc1 L_ld_drain
s_mov_b32 s60, s12
s_mov_b32 s61, s13
s_mov_b32 s62, %d
s_mul_i32 s51, s37, 294912
s_lshl_b32 s54, s38, 7
s_add_u32 s51, s51, s54
""" % (4096 * 1152))
            run([20, 21, 22, 23], "36864", 8, True)
            e("s_branch L_ld_drain")
            self.label("L_ld_down")
            e("""
s_mov_b32 s60, s20
s_mov_b32 s61, s21
s_mov_b32 s62, %d
s_sub_u32 s51, s37, 16
s_mul_i32 s51, s51, 331776
s_mul_i32 s54, s38, 384
s_add_u32 s51, s51, s54
""" % (4608 * 1152))
            run([7, 8, 9], "9216", 36, True)
            self.label("L_ld_drain")
            for w in (28, 24, 20, 16, 12, 8, 4, 0):
                if w < max(self.wrole):
                    e("s_waitcnt vmcnt(%d)\ns_sub_u32 s54, s53, %d\nv_mov_b32 v16, s54\nds_write_b32 v10, v16" % (w, w))
            self.stamp(3)
            if self.stamps:
                e("s_getreg_b32 s%d, hwreg(HW_REG_HW_ID)\ns_mov_b32 s%d, 0" % (self.sreg(12), self.sreg(12) + 1))
            self.flush_stamps([(0, 0), (1, 1), (2, 2), (3, 3), (12, 21)] + ([(4 + q, 25 + q) for q in range(7)] if ("fine" in self.abl or "first" in self.abl) else []))
            e("s_endpgm")
            for i in range(o0, len(self.o)):
                self.o[i] = self.o[i].replace("L_ld_", "L_ld%s_" % sfx)

        wg_, wq_, wd_, w3_ = self.wrole
        e("""
s_mov_b32 s57, %d
s_cmp_lt_u32 s31, 8
s_cselect_b32 s57, %d, s57
s_and_b32 s54, s43, 7
s_cmp_eq_u32 s54, 3
s_cselect_b32 s57, %d, s57
s_cmp_ge_u32 s31, 26
s_cselect_b32 s57, %d, s57
""" % (wg_, wq_, w3_, wd_))
        stream(self.W, "")

    def gather(self, loads, regs, vt, strycnt="s59", sleep=8, preissued=False, idle_sleep=0):
        e = self.e
        L = self.lab("Lg")
        D = self.lab("Lgd")
        P = self.lab("Lgp")
        n = len(loads)
        per = len(regs) // n
        assert n <= 6
        masks = [(self.mbase + 2 * k) for k in range(n)]
        e("s_mov_b32 %s, %d\ns_mov_b64 s[90:91], exec" % (strycnt, self.spin))
        if not preissued:
            for l in loads:
                e(l)
        e("s_branch %s" % P)
        self.label(L)
        for k, l in enumerate(loads):
            if n > 1:
                S = self.lab("Lgs")
                e("s_mov_b64 exec, s[%d:%d]\ns_cbranch_execz %s" % (masks[k], masks[k] + 1, S))
                e(l)
                self.label(S)
            else:
                e("s_mov_b64 exec, vcc")
                e(l)
        e("s_mov_b64 exec, s[90:91]")
        self.label(P)
        e("s_waitcnt vmcnt(0)")
        for k in range(n):
            rs = list(regs[k * per:(k + 1) * per])
            if len(rs) == 2:
                e("v_max_u32 v%d, v%d, v%d" % (vt + k, rs[0], rs[1]))
            else:
                e("v_max3_u32 v%d, v%d, v%d, v%d\nv_max_u32 v%d, v%d, v%d" % (vt + k, rs[0], rs[1], rs[2], vt + k, vt + k, rs[3]))
        if n == 1:
            e("v_cmp_eq_u32 vcc, -1, v%d" % vt)
        else:
            rs = [vt + k for k in range(n)]
            t = vt + n
            e("v_max_u32 v%d, v%d, v%d" % (t, rs[0], rs[1]))
            rs = rs[2:]
            while rs:
                if len(rs) >= 2:
                    e("v_max3_u32 v%d, v%d, v%d, v%d" % (t, t, rs[0], rs[1]))
                    rs = rs[2:]
                else:
                    e("v_max_u32 v%d, v%d, v%d" % (t, t, rs[0]))
                    rs = []
            e("v_cmp_eq_u32 vcc, -1, v%d" % t)
        e("s_cbranch_vccz %s" % D)
        if n > 1:
            for k in range(n):
                e("v_cmp_eq_u32 s[%d:%d], -1, v%d" % (masks[k], masks[k] + 1, vt + k))
        if idle_sleep:
            Z = self.lab("Lgz")
            e("s_and_b64 s[%d:%d], s[%d:%d], s[%d:%d]" % (self.mbase + 12, self.mbase + 13, masks[0], masks[0] + 1, masks[1], masks[1] + 1))
            e("s_cmp_lg_u64 s[%d:%d], s[90:91]\ns_cbranch_scc1 %s\ns_sleep %d" % (self.mbase + 12, self.mbase + 13, Z, idle_sleep))
            self.label(Z)
        if sleep:
            e("s_sleep %d" % sleep)
        e("s_sub_u32 %s, %s, 1\ns_cmp_lg_u32 %s, 0\ns_cbranch_scc1 %s" % (strycnt, strycnt, strycnt, L))
        self.label(D)

    def gather_pipe(self, loads, regs, vt, depth=3, gap=2, preissued=0):
        e = self.e
        L = self.lab("Lgq")
        D = self.lab("Lgqd")
        n = len(loads)
        e("s_mov_b32 s59, %d\ns_mov_b64 s[90:91], exec" % self.spin)
        for r in range(depth - 1 - preissued):
            for l in loads:
                e(l)
            e("s_sleep %d" % gap)
        self.label(L)
        for l in loads:
            e(l)
        e("s_mov_b64 exec, s[90:91]")
        e("s_waitcnt vmcnt(%d)" % (n * (depth - 1)))
        rs = list(regs)
        e("v_max3_u32 v%d, v%d, v%d, v%d" % (vt, rs[0], rs[1], rs[2]))
        e("v_max3_u32 v%d, v%d, v%d, v%d" % (vt + 1, rs[3], rs[4], rs[5]))
        rs = rs[6:]
        i = 0
        while rs:
            e("v_max3_u32 v%d, v%d, v%d, v%d" % (vt + i, vt + i, rs[0], rs[1]))
            rs = rs[2:]
            i ^= 1
        e("v_max_u32 v%d, v%d, v%d" % (vt, vt, vt + 1))
        e("v_cmp_eq_u32 vcc, -1, v%d" % vt)
        e("s_cbranch_vccz %s" % D)
        e("s_mov_b64 exec, vcc")
        e("s_sub_u32 s59, s59, 1\ns_cmp_lg_u32 s59, 0\ns_cbranch_scc1 %s" % L)
        e("s_mov_b64 exec, s[90:91]")
        self.label(D)

    def ws_srd(self):
        if self.wsoff:
            self.e("s_add_u32 s40, s26, %d\ns_addc_u32 s41, s27, 0" % self.wsoff)
        else:
            self.e("s_mov_b32 s40, s26\ns_mov_b32 s41, s27")
        self.e("s_mov_b32 s42, %d\ns_mov_b32 s43, 0x00020000" % WS_SIZE)

    def set_flag(self, addr, vt0, vt1):
        self.e("s_mov_b64 exec, 1\nv_mov_b32 v%d, %d\nv_mov_b32 v%d, 1\nds_write_b32 v%d, v%d\ns_mov_b64 exec, -1" % (vt0, addr, vt1, vt0, vt1))

    def comm(self):
        e = self.e
        self.label("L_comm")
        e("""
v_lshlrev_b32 v1, 3, v0
v_add_u32 v1, %d, v1
v_mov_b32 v2, 0
v_mov_b32 v3, 0
ds_write_b64 v1, v[2:3]
v_mov_b32 v4, -1
v_mov_b32 v5, -1
v_mov_b32 v6, -1
v_mov_b32 v7, -1
v_lshlrev_b32 v8, 4, v0
v_mov_b32 v10, %d
v_mov_b32 v11, %d
ds_write_b32 v10, v11
s_memrealtime s[28:29]
""" % (FULL, WCLS, self.W))
        self.tile_ids()
        self.ct_id()
        share = (WS_SIZE - SH_BASE) // 64
        assert share * 64 == WS_SIZE - SH_BASE and share % 128 == 0
        e("""
s_lshl_b32 s45, s33, 2
s_add_u32 s45, s45, s35
s_movk_i32 s46, %d
s_cmp_lt_u32 s31, 8
s_cselect_b32 s46, %d, s46
s_cselect_b32 s47, 0, %d
s_mul_i32 s52, s44, %d
s_lshl_b32 s44, s44, 7
s_add_u32 s44, s44, s47
v_lshrrev_b32 v9, 3, v0
v_mul_lo_u32 v9, v9, s46
v_and_b32 v10, 7, v0
v_lshl_add_u32 v9, v10, 4, v9
v_lshlrev_b32 v12, 2, v0
v_add_u32 v13, %d, v8
v_mov_b32 v23, %d
s_waitcnt lgkmcnt(0)
s_barrier
""" % (CGU_STRIDE, CQ_STRIDE, WS_CGU - 64 * 128, share, OB, CNT_C))
        if self.cpf:
            e("s_getpc_b64 s[54:55]")
            self.label("L_pc")
            e("s_sub_u32 s54, s54, L_pc-%s_kernel\ns_subb_u32 s55, s55, 0\ns_mul_i32 s56, s31, %d" % (KN, self.cpf * 128))
            for k in range(self.cpf):
                e("s_min_u32 s57, s56, L_code_end-%s_kernel-4\ns_load_dword s78, s[54:55], s57\ns_add_u32 s56, s56, 128" % KN)
        if "nocomm" in self.abl:
            e("s_waitcnt lgkmcnt(0)")
            self.set_flag(FLAG_Q, 21, 22)
            self.set_flag(FLAG_H, 21, 22)
            self.set_flag(FLAG_SC, 21, 22)
            e("s_endpgm")
        self.ws_srd()

        def c_store():
            self.wait_lds("v23", "s46", "4", "v14", cached=False, sleep=2)
            e("""
s_mov_b32 exec_hi, 0
ds_read_b128 v[16:19], v13
s_waitcnt lgkmcnt(0)
buffer_store_dwordx4 v[16:19], v9, s[40:43], s44 offen sc1
s_mov_b32 exec_hi, -1
""")
        e("""
s_mov_b32 s48, s24
s_mov_b32 s49, s25
s_mov_b32 s50, 256
s_mov_b32 s51, 0x00020000
s_cmp_ge_u32 s31, 8
s_cbranch_scc1 L_cm_noclr
s_mov_b32 exec_hi, 0
buffer_store_dwordx4 v[4:7], v9, s[40:43], s44 offen sc1
s_mov_b32 exec_hi, -1
s_add_u32 s52, s52, %d
""" % SH_BASE)
        for i in range(share // 1024):
            e("buffer_store_dwordx4 v[4:7], v8, s[40:43], s52 offen offset:%d sc1" % ((i % 4) * 1024))
            if i % 4 == 3:
                e("s_add_u32 s52, s52, 4096")
        rem = (share % 1024) // 16
        e("s_mov_b32 exec_hi, 0x%x" % ((1 << (rem - 32)) - 1))
        e("buffer_store_dwordx4 v[4:7], v8, s[40:43], s52 offen offset:%d sc1" % (((share // 1024) % 4) * 1024))
        e("""
s_lshr_b32 s46, s44, 5
v_mov_b32 v10, 1
v_mov_b32 v11, 0
s_mov_b64 exec, 1
s_waitcnt vmcnt(0)
buffer_store_dword v10, v11, s[48:51], s46 offen sc1
s_mov_b64 exec, -1
""")
        self.stamp(7)
        c_store()
        self.label("L_cm_noclr")
        e("s_mov_b32 s47, %d\ns_cmp_ge_u32 s31, 26\ns_cselect_b32 s47, %d, s47\nv_mov_b32 v15, %d" % (self.qpos - self.fgap, P_K + self.qposd - self.fgap, FULL))
        self.wait_lds("v15", "s46", "s47", "v14", cached=False, sleep=4)
        self.stamp(8)
        L = self.lab("Lfl")
        D = self.lab("Lfld")
        e("s_mov_b32 s59, %d\ns_mov_b32 s46, 1" % self.spin)
        self.label(L)
        e("""
buffer_load_dword v14, v12, s[48:51], 0 offen sc1
s_waitcnt vmcnt(0)
v_cmp_ne_u32 vcc, s46, v14
s_cbranch_vccz %s
s_sleep 16
s_sub_u32 s59, s59, 1
s_cmp_lg_u32 s59, 0
s_cbranch_scc1 %s
""" % (D, L))
        if "nofl" in self.abl:
            del self.o[-8:]
        self.label(D)
        self.stamp(0)
        self.rawstamp(9, "s59")
        e("s_cmp_lt_u32 s31, 8\ns_cbranch_scc1 L_cm_nocs\ns_cmp_ge_u32 s31, 26\ns_cbranch_scc1 L_cm_nocs")
        c_store()
        self.label("L_cm_nocs")
        if "comm_fl" in self.abl:
            self.set_flag(FLAG_Q, 21, 22)
            self.set_flag(FLAG_H, 21, 22)
            self.set_flag(FLAG_SC, 21, 22)
            e("s_endpgm")
        e("s_add_u32 s47, s47, %d" % self.fgap)
        self.wait_lds("v15", "s46", "s47", "v14", cached=False, sleep=4)
        e("""
s_mul_i32 s46, s34, %d
s_lshl_b32 s47, s32, 9
s_add_u32 s46, s46, s47
s_mov_b32 exec_hi, 0
""" % CQ_STRIDE)
        if "noq" not in self.abl:
            self.gather(["buffer_load_dwordx4 v[16:19], v8, s[40:43], s46 offen sc1"], [16, 17, 18, 19], 20)
        e("v_add_u32 v21, %d, v8\nds_write_b128 v21, v[16:19]\ns_waitcnt lgkmcnt(0)" % QL)
        self.set_flag(FLAG_Q, 21, 22)
        self.stamp(1)
        self.rawstamp(10, "s59")
        if "comm_q" in self.abl:
            self.set_flag(FLAG_H, 21, 22)
            self.set_flag(FLAG_SC, 21, 22)
            e("s_endpgm")
        e("s_cmp_lt_u32 s31, 26\ns_cbranch_scc1 L_cm_noh")
        for i in range(3):
            e("""
v_add_u32 v16, %d, v0
v_mul_u32_u24 v17, 1821, v16
v_lshrrev_b32 v17, 16, v17
v_mul_u32_u24 v18, 36, v17
v_sub_u32 v18, v16, v18
v_mul_u32_u24 v19, %d, v17
v_lshl_add_u32 v%d, v18, 4, v19
v_mul_u32_u24 v19, %d, v17
v_lshrrev_b32 v20, 2, v18
v_lshl_add_u32 v19, v20, 6, v19
v_and_b32 v20, 1, v18
v_lshl_add_u32 v19, v20, 5, v19
v_bfe_u32 v20, v18, 1, 1
v_lshl_add_u32 v19, v20, 3, v19
v_add_u32 v%d, %d, v19
""" % (64 * i, CGU_STRIDE, 24 + i, H_STRIDE, 27 + i, XN))
        e("""
v_cmp_gt_u32 vcc, 16, v0
s_nop 1
v_cndmask_b32 v26, v24, v26, vcc
v_cndmask_b32 v29, v27, v29, vcc
s_sub_u32 s46, s37, 16
s_mul_i32 s46, s46, 576
s_add_u32 s47, s46, %d
s_add_u32 s46, s46, %d
""" % (WS_CGU + 9216, WS_CGU))
        self.wait_lds("v15", "s48", str(P_K + self.hpos), "v14", cached=False, sleep=4)
        loads = []
        for i in range(3):
            loads.append("buffer_load_dwordx4 v[%d:%d], v%d, s[40:43], s46 offen sc1" % (48 + 4 * i, 51 + 4 * i, 24 + i))
            loads.append("buffer_load_dwordx4 v[%d:%d], v%d, s[40:43], s47 offen sc1" % (60 + 4 * i, 63 + 4 * i, 24 + i))
        self.gather(loads, [r for i in range(3) for r in list(range(48 + 4 * i, 52 + 4 * i)) + list(range(60 + 4 * i, 64 + 4 * i))], 72)
        c0 = -2.0 * LOG2E * 0.7978845608028654
        e("s_mov_b32 s46, %s\ns_mov_b32 s47, %s\ns_mov_b32 s56, 0xffff0000" % (f32(c0), f32(c0 * 0.044715)))
        e("v_mov_b32 v20, s46")
        for r in range(12):
            g = 48 + r
            u = 60 + r
            e("""
v_lshlrev_b32 v16, 16, v%(g)d
v_and_b32 v17, s56, v%(g)d
v_mul_f32 v18, v16, v16
v_mul_f32 v19, v17, v17
v_fma_f32 v18, v18, s47, v20
v_fma_f32 v19, v19, s47, v20
v_mul_f32 v18, v18, v16
v_mul_f32 v19, v19, v17
v_exp_f32 v18, v18
v_exp_f32 v19, v19
s_nop 0
v_add_f32 v18, 1.0, v18
v_add_f32 v19, 1.0, v19
v_rcp_f32 v18, v18
v_rcp_f32 v19, v19
s_nop 0
v_mul_f32 v18, v18, v16
v_mul_f32 v19, v19, v17
v_cvt_pk_bf16_f32 v18, v18, v19
v_lshlrev_b32 v16, 16, v%(u)d
v_and_b32 v17, s56, v%(u)d
v_and_b32 v19, s56, v18
v_lshlrev_b32 v18, 16, v18
v_mul_f32 v18, v18, v16
v_mul_f32 v19, v19, v17
v_cvt_pk_bf16_f32 v%(g)d, v18, v19
""" % dict(g=g, u=u))
        for i in range(3):
            e("ds_write2_b64 v%d, v[%d:%d], v[%d:%d] offset0:0 offset1:2" % (27 + i, 48 + 4 * i, 49 + 4 * i, 50 + 4 * i, 51 + 4 * i))
        e("s_waitcnt lgkmcnt(0)")
        self.set_flag(FLAG_H, 21, 22)
        self.label("L_cm_noh")
        e("v_mov_b32 v16, %d" % CNT_STAT)
        self.wait_lds("v16", "s46", "4", "v17", cached=False, sleep=2)
        self.stamp(2)
        e("""
v_and_b32 v16, 7, v0
v_lshlrev_b32 v16, 3, v16
v_add_u32 v17, %d, v16
ds_read_b64 v[18:19], v17
s_mov_b32 s56, %s
v_and_b32 v27, 1, v0
v_lshlrev_b32 v27, 4, v27
v_bfe_u32 v28, v0, 1, 2
v_lshl_add_u32 v27, v28, 2, v27
v_add_u32 v27, %d, v27
s_waitcnt lgkmcnt(0)
v_max_f32_dpp v20, v18, v18 row_ror:2 row_mask:0xf bank_mask:0xf
s_nop 1
v_max_f32_dpp v20, v20, v20 row_ror:4 row_mask:0xf bank_mask:0xf
v_sub_f32 v22, v18, v20
v_mul_f32 v22, s56, v22
v_exp_f32 v22, v22
s_nop 0
v_mul_f32 v21, v22, v19
ds_write_b32 v27, v22
s_nop 0
v_add_f32_dpp v21, v21, v21 row_ror:2 row_mask:0xf bank_mask:0xf
s_nop 1
v_add_f32_dpp v21, v21, v21 row_ror:4 row_mask:0xf bank_mask:0xf
s_lshl_b32 s47, s45, 6
s_add_u32 s47, s47, %d
s_mov_b64 exec, 0xff
buffer_store_dwordx2 v[20:21], v16, s[40:43], s47 offen sc1
s_mov_b64 exec, -1
s_waitcnt lgkmcnt(0)
""" % (STW, f32(LOG2E), SC, WS_ST))
        self.set_flag(FLAG_SC, 23, 24)
        self.stamp(3)
        self.flush_stamps([(0, 4), (1, 5), (2, 6), (3, 7), (7, 16), (8, 17), (9, 18), (10, 19)])
        e("s_endpgm")

    def tlb_warm(self):
        e = self.e
        e("""
s_lshl_b32 s52, s33, 21
s_add_u32 s52, s52, 0x180000
s_lshl_b32 s53, s35, 17
s_add_u32 s52, s52, s53
s_load_dword s78, s[6:7], s52
s_load_dword s78, s[8:9], s52
s_cmp_ge_u32 s31, 26
s_cbranch_scc1 L_tw_dn
s_cmp_lt_u32 s31, 17
s_cselect_b32 s60, s16, s18
s_cselect_b32 s61, s17, s19
s_cmp_lt_u32 s31, 8
s_cselect_b32 s60, s10, s60
s_cselect_b32 s61, s11, s61
s_mov_b32 s53, 0x180000
s_load_dword s78, s[60:61], s53
s_mov_b32 s53, 0x300000
s_load_dword s78, s[60:61], s53
s_mov_b32 s53, 0x47ff00
s_load_dword s78, s[60:61], s53
s_cbranch_scc1 L_tw_end
s_mul_i32 s53, s37, 294912
s_load_dword s78, s[12:13], s53
s_add_u32 s53, s53, 294000
s_load_dword s78, s[12:13], s53
s_branch L_tw_end
L_tw_dn:
s_sub_u32 s53, s37, 16
s_mul_i32 s53, s53, 331776
s_load_dword s78, s[20:21], s53
s_add_u32 s53, s53, 331000
s_load_dword s78, s[20:21], s53
L_tw_end:
""")

    def ct_id(self):
        self.e("""
s_lshl_b32 s44, s30, 3
s_add_u32 s44, s44, s31
s_mul_i32 s46, s30, 9
s_add_u32 s46, s46, s31
s_add_u32 s47, s46, 56
s_add_u32 s46, s46, 119
s_cmp_lt_u32 s31, 17
s_cselect_b32 s46, s47, s46
s_cmp_lt_u32 s31, 8
s_cselect_b32 s44, s44, s46
""")

    def free_write(self, sval):
        self.e("s_mov_b64 exec, 1\nv_mov_b32 v4, %s\nds_write_b32 v3, v4\ns_mov_b64 exec, -1" % sval)

    def cons(self):
        e = self.e
        self.label("L_cons")
        if self.stamps:
            for k in range(15):
                e("s_mov_b64 s[%d:%d], 0" % (self.sreg(k), self.sreg(k) + 1))
        if "perm" in self.abl:
            e("s_min_u32 s36, s36, 4\ns_add_u32 s36, s36, 1")
        e("""
s_sub_u32 s36, s36, 2
v_mov_b32 v2, %d
s_lshl_b32 s44, s36, 2
s_add_u32 s44, s44, %d
v_mov_b32 v3, s44
s_mov_b32 s50, 0
v_and_b32 v8, 15, v0
v_lshrrev_b32 v9, 4, v0
v_lshrrev_b32 v10, 2, v0
v_and_b32 v11, 3, v0
s_mov_b32 s56, 0xffff0000
v_mul_u32_u24 v12, 1152, v9
v_lshl_add_u32 v12, v8, 4, v12
v_mov_b32 v13, 0x40000000
v_cmp_gt_u32 vcc, 8, v8
v_bfe_u32 v7, v0, 3, 2
v_lshlrev_b32 v7, 5, v7
v_cndmask_b32 v13, v13, v12, vcc
v_lshl_add_u32 v7, v10, 7, v7
v_lshl_add_u32 v7, v11, 3, v7
s_waitcnt lgkmcnt(0)
s_mov_b32 s60, s4
s_mov_b32 s61, s5
s_mov_b32 s62, 4608
s_mov_b32 s63, 0x00020000
""" % (FULL, FREE))
        self.ws_srd()
        if "nocons" in self.abl:
            e("s_barrier")
            self.free_write("0x10000")
            e("s_endpgm")
        if "conssleep" in self.abl or "consspin" in self.abl:
            e("s_barrier")
            self.free_write("0x10000")
            self.wait_lds("v2", "s50", "328", "v4", sleep=(32 if "conssleep" in self.abl else 0))
            e("s_endpgm")
        if "nocolc" in self.abl:
            e("s_branch L_cs_nocol")
        e("""
s_cmp_ge_u32 s31, 26
s_cbranch_scc1 L_cs_nocol
""")
        if "nox" not in self.abl:
            e("""
buffer_load_dwordx4 v[32:35], v12, s[60:63], 0 offen
buffer_load_dwordx4 v[36:39], v12, s[60:63], 0 offen offset:256
buffer_load_dwordx4 v[40:43], v12, s[60:63], 0 offen offset:512
buffer_load_dwordx4 v[44:47], v12, s[60:63], 0 offen offset:768
buffer_load_dwordx4 v[48:51], v13, s[60:63], 0 offen offset:1024
""")
        e("s_barrier")
        e("""
v_mul_u32_u24 v14, %d, v9
v_lshrrev_b32 v15, 2, v8
v_lshl_add_u32 v14, v15, 6, v14
v_and_b32 v15, 1, v8
v_lshl_add_u32 v14, v15, 5, v14
v_bfe_u32 v15, v8, 1, 1
v_lshl_add_u32 v14, v15, 3, v14
v_add_u32 v14, %d, v14
s_lshl_b32 s44, s36, 5
v_xor_b32 v15, s44, v7
v_mul_u32_u24 v16, %d, v11
v_lshl_add_u32 v16, v9, 4, v16
v_add_u32 v16, %d, v16
s_waitcnt vmcnt(0)
""" % (XN_STRIDE, XN, XN_STRIDE, XN))
        for k in range(20):
            e("v_lshlrev_b32 v%d, 16, v%d\nv_and_b32 v%d, s56, v%d" % (64 + 2 * k, 32 + k, 65 + 2 * k, 32 + k))
        e("v_add_f32 v52, v64, v65\nv_add_f32 v53, v66, v67")
        for k in range(2, 20):
            e("v_add_f32 v52, v52, v%d\nv_add_f32 v53, v53, v%d" % (64 + 2 * k, 65 + 2 * k))
        e("v_add_f32 v52, v52, v53")
        for ror in (8, 4, 2, 1):
            e("s_nop 1\nv_add_f32_dpp v52, v52, v52 row_ror:%d row_mask:0xf bank_mask:0xf" % ror)
        e("v_mul_f32 v52, %s, v52" % f32(1.0 / 576))
        e("v_cndmask_b32 v55, 0, v52, vcc")
        e("v_mov_b32 v53, 0\nv_mov_b32 v54, 0")
        for k in range(20):
            m = 55 if k >= 16 else 52
            e("v_sub_f32 v56, v%d, v%d\nv_sub_f32 v57, v%d, v%d\nv_fmac_f32 v53, v56, v56\nv_fmac_f32 v54, v57, v57" % (64 + 2 * k, m, 65 + 2 * k, m))
        e("v_add_f32 v53, v53, v54")
        for ror in (8, 4, 2, 1):
            e("s_nop 1\nv_add_f32_dpp v53, v53, v53 row_ror:%d row_mask:0xf bank_mask:0xf" % ror)
        e("""
v_mul_f32 v53, %s, v53
v_cvt_pk_bf16_f32 v52, v52, v53
v_and_b32 v53, s56, v52
v_lshlrev_b32 v52, 16, v52
v_add_f32 v53, %s, v53
v_cvt_pk_bf16_f32 v53, v53, v53
v_and_b32 v53, s56, v53
v_sqrt_f32 v53, v53
s_nop 0
v_cvt_pk_bf16_f32 v53, v53, v53
v_and_b32 v53, s56, v53
v_rcp_f32 v54, v53
""" % (f32(1.0 / 576), f32(1e-5)))
        for k in range(20):
            a, b = 64 + 2 * k, 65 + 2 * k
            e("""
v_sub_f32 v%(a)d, v%(a)d, v52
v_sub_f32 v%(b)d, v%(b)d, v52
v_cvt_pk_bf16_f32 v56, v%(a)d, v%(b)d
v_lshlrev_b32 v%(a)d, 16, v56
v_and_b32 v%(b)d, s56, v56
v_mul_f32 v57, v%(a)d, v54
v_mul_f32 v58, v%(b)d, v54
v_fma_f32 v%(a)d, -v57, v53, v%(a)d
v_fma_f32 v%(b)d, -v58, v53, v%(b)d
v_fmac_f32 v57, v%(a)d, v54
v_fmac_f32 v58, v%(b)d, v54
v_cvt_pk_bf16_f32 v%(d)d, v57, v58
""" % dict(a=a, b=b, d=32 + k))
        for t in range(4):
            e("ds_write2_b64 v14, v[%d:%d], v[%d:%d] offset0:%d offset1:%d" % (32 + 4 * t, 33 + 4 * t, 34 + 4 * t, 35 + 4 * t, 32 * t, 32 * t + 2))
        e("s_mov_b64 exec, vcc\nds_write2_b64 v14, v[48:49], v[50:51] offset0:128 offset1:130\ns_mov_b64 exec, -1")
        e("v_mov_b32 v20, 0\nv_mov_b32 v21, 0\nv_mov_b32 v22, 0\nv_mov_b32 v23, 0\ns_mov_b32 s51, 4")
        self.stamp(0)
        L = self.lab("Lcol")
        self.label(L)
        self.wait_lds("v2", "s50", "s51", "v4")
        e("""
ds_read_b64_tr_b16 v[24:25], v15
ds_read_b64_tr_b16 v[26:27], v15 offset:2048
ds_read_b128 v[28:31], v16
v_add_u32 v15, 4096, v15
v_add_u32 v16, 64, v16
s_add_u32 s51, s51, 4
s_cmp_le_u32 s51, %d
s_waitcnt lgkmcnt(0)
v_mfma_f32_16x16x32_bf16 v[20:23], v[24:27], v[28:31], v[20:23]
s_cbranch_scc1 %s
""" % (P_K, L))
        e("""
s_lshl_b32 s45, s36, 5
s_add_u32 s45, s45, %d
v_lshlrev_b32 v17, 7, v11
v_lshl_add_u32 v17, v9, 3, v17
v_add_u32 v17, s45, v17
v_mov_b32 v18, %d
v_mov_b32 v19, 1
s_nop 2
v_cvt_pk_bf16_f32 v24, v20, v21
v_cvt_pk_bf16_f32 v25, v22, v23
s_mov_b32 exec_lo, 0x000f000f
s_mov_b32 exec_hi, 0x000f000f
ds_write_b64 v17, v[24:25]
s_mov_b64 exec, 1
ds_add_u32 v18, v19
s_mov_b64 exec, -1
s_branch L_cs_k
L_cs_nocol:
s_barrier
L_cs_k:
""" % (OB, CNT_C))
        self.stamp(1)
        if "colonly" in self.abl:
            self.free_write("0x10000")
            e("s_endpgm")
        e("""
v_and_b32 v5, 7, v0
v_lshlrev_b32 v5, 1, v5
v_xor_b32 v5, v5, v9
v_lshlrev_b32 v5, 4, v5
v_lshl_add_u32 v5, v8, 8, v5
v_and_b32 v6, 7, v10
v_lshlrev_b32 v6, 5, v6
v_lshl_add_u32 v6, v10, 8, v6
v_lshl_add_u32 v6, v11, 3, v6
s_lshl_b32 s52, s36, 2
s_add_u32 s51, s52, %d
s_lshl_b32 s53, s51, 10
""" % P_K)
        self.free_write("s51")

        def advance():
            e("s_add_u32 s51, s51, 16\ns_add_u32 s53, s53, 16384\ns_sub_u32 s54, s53, %d\ns_cmp_ge_u32 s53, %d\ns_cselect_b32 s53, s54, s53" % (RING_BYTES, RING_BYTES))

        for i in range(8):
            e("s_add_u32 s55, s51, 4")
            self.wait_lds("v2", "s50", "s55", "v4")
            r = 128 + 16 * i
            e("""
v_add_u32 v12, s53, v5
v_xor_b32 v13, 64, v12
v_xor_b32 v14, 0x80, v12
v_xor_b32 v15, 0xc0, v12
ds_read_b128 v[%d:%d], v12
ds_read_b128 v[%d:%d], v13
ds_read_b128 v[%d:%d], v14
ds_read_b128 v[%d:%d], v15
""" % (r, r + 3, r + 4, r + 7, r + 8, r + 11, r + 12, r + 15))
            advance()
            if i & 1:
                e("s_waitcnt lgkmcnt(0)")
                self.free_write("s51")
        self.stamp(2)
        e("v_mov_b32 v12, %d" % FLAG_Q)
        self.wait_lds("v12", "s54", "1", "v4", cached=False)
        e("""
v_and_b32 v12, 1, v0
v_lshlrev_b32 v12, 8, v12
v_lshl_add_u32 v12, v9, 4, v12
v_add_u32 v12, %d, v12
ds_read_b128 v[32:35], v12
ds_read_b128 v[36:39], v12 offset:64
ds_read_b128 v[40:43], v12 offset:128
ds_read_b128 v[44:47], v12 offset:192
s_mov_b32 s57, %s
s_mov_b32 s58, %s
s_waitcnt lgkmcnt(0)
""" % (QL, f32(128 ** -0.5), f32(LOG2E)))
        for s in range(4):
            for i in range(8):
                c = "0" if s == 0 else "v[%d:%d]" % (48 + 4 * i, 51 + 4 * i)
                e("v_mfma_f32_16x16x32_bf16 v[%d:%d], v[%d:%d], v[%d:%d], %s" % (48 + 4 * i, 51 + 4 * i, 128 + 16 * i + 4 * s, 131 + 16 * i + 4 * s, 32 + 4 * s, 35 + 4 * s, c))
        e("s_nop 1")
        for k in range(16):
            a, b = 48 + 2 * k, 49 + 2 * k
            e("""
v_cvt_pk_bf16_f32 v12, v%(a)d, v%(b)d
v_lshlrev_b32 v%(a)d, 16, v12
v_and_b32 v%(b)d, s56, v12
v_mul_f32 v%(a)d, s57, v%(a)d
v_mul_f32 v%(b)d, s57, v%(b)d
v_cvt_pk_bf16_f32 v12, v%(a)d, v%(b)d
v_lshlrev_b32 v%(a)d, 16, v12
v_and_b32 v%(b)d, s56, v12
""" % dict(a=a, b=b))
        e("v_max3_f32 v12, v48, v49, v50")
        for k in range(51, 79, 2):
            e("v_max3_f32 v12, v12, v%d, v%d" % (k, k + 1))
        e("""
v_max_f32 v12, v12, v79
v_mov_b32 v13, v12
s_nop 1
v_permlane16_swap_b32 v12, v13
s_nop 0
v_max_f32 v12, v12, v13
v_mov_b32 v13, v12
s_nop 1
v_permlane32_swap_b32 v12, v13
s_nop 0
v_max_f32 v12, v12, v13
""")
        for k in range(32):
            e("v_sub_f32 v%d, v%d, v12" % (48 + k, 48 + k))
        for k in range(32):
            e("v_mul_f32 v%d, s58, v%d" % (48 + k, 48 + k))
        for k in range(32):
            e("v_exp_f32 v%d, v%d" % (48 + k, 48 + k))
        e("v_add_f32 v13, v48, v49\nv_add_f32 v14, v50, v51")
        for k in range(52, 80, 2):
            e("v_add_f32 v13, v13, v%d\nv_add_f32 v14, v14, v%d" % (k, k + 1))
        for k in range(16):
            e("v_cvt_pk_bf16_f32 v%d, v%d, v%d" % (80 + k, 48 + 2 * k, 49 + 2 * k))
        e("""
v_add_f32 v13, v13, v14
v_mov_b32 v14, v13
s_nop 1
v_permlane16_swap_b32 v13, v14
s_nop 0
v_add_f32 v13, v13, v14
v_mov_b32 v14, v13
s_nop 1
v_permlane32_swap_b32 v13, v14
s_nop 0
v_add_f32 v13, v13, v14
s_lshl_b32 s54, s36, 4
s_add_u32 s54, s54, %d
v_lshlrev_b32 v14, 3, v0
v_add_u32 v14, s54, v14
s_mov_b64 exec, 3
ds_write_b64 v14, v[12:13]
s_mov_b64 exec, 1
v_mov_b32 v14, %d
v_mov_b32 v15, 1
s_waitcnt lgkmcnt(0)
ds_add_u32 v14, v15
s_mov_b64 exec, -1
""" % (STW, CNT_STAT))
        self.stamp(3)
        self.tile_ids()
        e("""
v_and_b32 v24, 1, v0
v_lshlrev_b32 v24, 9, v24
v_lshl_add_u32 v24, v9, 4, v24
s_lshl_b32 s54, s36, 10
s_add_u32 s54, s54, %d
v_add_u32 v24, s54, v24
v_mov_b32 v25, %d
v_mov_b32 v26, 1
v_lshlrev_b32 v27, 4, v0
v_add_u32 v28, %d, v27
v_lshrrev_b32 v29, 5, v0
v_lshlrev_b32 v29, 4, v29
v_add_u32 v29, %d, v29
s_lshl_b32 s49, s33, 2
s_add_u32 s49, s49, s35
s_lshl_b32 s49, s49, 10
s_add_u32 s49, s49, %d
v_mov_b32 v30, %d
""" % (OW, CNT_O, OW, SC, WS_OP, FLAG_SC))
        for i in range(4):
            fr = 128 + 32 * (i & 1)
            for h in range(2):
                e("s_add_u32 s55, s51, 4")
                if i == 3 and h == 1:
                    self.wait_lds("v30", "s54", "1", "v4", cached=False)
                    e("ds_read_b128 v[32:35], v29")
                self.wait_lds("v2", "s50", "s55", "v4")
                e("v_add_u32 v12, s53, v6")
                for t in range(8):
                    if t:
                        e("v_xor_b32 v%d, %d, v12" % (16 + t, 32 * t))
                for t in range(8):
                    e("ds_read_b64_tr_b16 v[%d:%d], v%d" % (fr + 4 * t + 2 * h, fr + 4 * t + 2 * h + 1, 16 + t if t else 12))
                advance()
            for t in range(8):
                e("s_waitcnt lgkmcnt(%d)" % (7 - t))
                c = "0" if i == 0 else "v[%d:%d]" % (96 + 4 * t, 99 + 4 * t)
                e("v_mfma_f32_16x16x32_bf16 v[%d:%d], v[%d:%d], v[%d:%d], %s" % (96 + 4 * t, 99 + 4 * t, fr + 4 * t, fr + 4 * t + 3, 80 + 4 * i, 83 + 4 * i, c))
            if i < 3:
                self.free_write("s51")
        if "nopost" in self.abl:
            self.free_write("0x10000")
            e("s_branch L_cs_end")
        e("""
s_mov_b32 exec_lo, 0x00030003
s_mov_b32 exec_hi, 0x00030003
v_mov_b32 v4, %d
""" % P_W)
        for t in range(8):
            if t == 6:
                e("s_nop 1")
            e("ds_write_b128 v24, v[%d:%d] offset:%d" % (96 + 4 * t, 99 + 4 * t, 64 * t))
        e("""
s_mov_b64 exec, 1
ds_add_rtn_u32 v16, v25, v26
ds_write_b32 v3, v4
s_mov_b64 exec, -1
s_waitcnt lgkmcnt(1)
v_readfirstlane_b32 s54, v16
s_cmp_lg_u32 s54, 3
s_cbranch_scc1 L_cs_nolast
ds_read_b128 v[96:99], v28
ds_read_b128 v[100:103], v28 offset:1024
ds_read_b128 v[104:107], v28 offset:2048
ds_read_b128 v[108:111], v28 offset:3072
s_waitcnt lgkmcnt(3)
""")
        for k in range(4):
            e("v_mul_f32 v%d, v%d, v32" % (96 + k, 96 + k))
        for w in range(1, 4):
            e("s_waitcnt lgkmcnt(%d)" % (3 - w))
            for k in range(4):
                e("v_fmac_f32 v%d, v%d, v%d" % (96 + k, 96 + 4 * w + k, 32 + w))
        e("buffer_store_dwordx4 v[96:99], v27, s[40:43], s49 offen sc1")
        self.stamp(10)
        self.label("L_cs_nolast")
        self.stamp(4)
        e("""
s_cmp_lt_u32 s31, 8
s_cbranch_scc1 L_cs_red
s_cmp_ge_u32 s31, 26
s_cbranch_scc1 L_cs_down
""")
        if "notile" in self.abl:
            e("s_branch L_cs_end")
        ringw = (P_W % RING_KB) * 1024
        e("""
v_lshlrev_b32 v20, 16, v9
v_lshl_add_u32 v20, v8, 4, v20
v_lshlrev_b32 v22, 12, v9
v_lshl_add_u32 v22, v11, 6, v22
s_lshl_b32 s46, s37, 12
s_lshl_b32 s47, s36, 8
s_add_u32 s46, s46, s47
s_add_u32 s46, s46, %d
s_lshl_b32 s47, s37, 8
s_lshr_b32 s48, s36, 1
s_lshl_b32 s48, s48, 3
s_add_u32 s47, s47, s48
s_add_u32 s47, s47, %d
s_lshl_b32 s54, s36, 13
s_add_u32 s54, s54, %d
v_add_u32 v12, s54, v7
v_xor_b32 v13, 32, v12
v_xor_b32 v14, 64, v12
v_xor_b32 v15, 0x60, v12
s_lshl_b32 s55, s36, 3
s_add_u32 s55, s55, %d
v_lshlrev_b32 v24, 8, v11
v_lshl_add_u32 v24, v9, 4, v24
s_lshl_b32 s54, s36, 10
s_add_u32 s54, s54, %d
v_add_u32 v24, s54, v24
v_mov_b32 v25, %d
v_add_u32 v28, %d, v27
v_mul_u32_u24 v29, 2304, v9
v_lshl_add_u32 v29, v8, 4, v29
s_mul_i32 s44, s37, %d
s_lshl_b32 s45, s38, 8
s_add_u32 s44, s44, s45
s_add_u32 s44, s44, %d
s_lshl_b32 s54, s36, 9
s_add_u32 s54, s54, %d
v_lshlrev_b32 v21, 7, v9
v_bfe_u32 v16, v0, 3, 1
v_lshl_add_u32 v21, v16, 6, v21
v_lshl_add_u32 v21, v11, 4, v21
v_bfe_u32 v16, v0, 2, 1
v_lshl_add_u32 v21, v16, 3, v21
v_add_u32 v21, s54, v21
v_lshlrev_b32 v23, 7, v11
v_lshl_add_u32 v23, v9, 4, v23
v_add_u32 v23, s54, v23
""" % (WS_OP, WS_ST, ringw, P_W + 8, RW, CNT_P, RW, PART_ROW, WS_PART, OB))
        sloads = ["buffer_load_dwordx2 v[232:233], v22, s[40:43], s47 offen sc1"]
        loads = ["buffer_load_dwordx4 v[%d:%d], v20, s[40:43], s46 offen offset:%d sc1" % (216 + 4 * k, 219 + 4 * k, 1024 * k) for k in range(4)]
        self.gather(sloads, [232, 233], 16, sleep=2)
        e("""
v_max_f32_dpp v16, v232, v232 quad_perm:[1,0,3,2] row_mask:0xf bank_mask:0xf
s_nop 1
v_max_f32_dpp v16, v16, v16 quad_perm:[2,3,0,1] row_mask:0xf bank_mask:0xf
v_sub_f32 v232, v232, v16
v_mul_f32 v232, s58, v232
v_exp_f32 v232, v232
s_nop 0
v_mul_f32 v16, v232, v233
s_nop 1
v_add_f32_dpp v16, v16, v16 quad_perm:[1,0,3,2] row_mask:0xf bank_mask:0xf
s_nop 1
v_add_f32_dpp v16, v16, v16 quad_perm:[2,3,0,1] row_mask:0xf bank_mask:0xf
v_rcp_f32 v16, v16
s_nop 0
v_mul_f32 v232, v232, v16
""")
        for g in self.gpos:
            self.wait_lds("v2", "s50", str(P_W + g), "v4")
            for l in loads:
                e(l)
        self.stamp(8)
        self.wait_lds("v2", "s50", "s55", "v4")
        for s in range(2):
            for q in range(4):
                r = 128 + 16 * s + 4 * q
                e("ds_read_b64_tr_b16 v[%d:%d], v%d offset:%d" % (r, r + 1, 12 + q, 4096 * s))
                e("ds_read_b64_tr_b16 v[%d:%d], v%d offset:%d" % (r + 2, r + 3, 12 + q, 4096 * s + 2048))
        Lo = self.lab("Lgo")
        Dn = self.lab("Lgod")
        e("s_mov_b32 s59, %d" % self.spin)
        self.label(Lo)
        e("s_waitcnt vmcnt(%d)" % (4 * (len(self.gpos) - 1)))
        e("v_max3_u32 v36, v216, v217, v218\nv_max3_u32 v37, v219, v220, v221")
        for i, r in enumerate(range(222, 232, 2)):
            e("v_max3_u32 v%d, v%d, v%d, v%d" % (36 + (i & 1), 36 + (i & 1), r, r + 1))
        e("v_max_u32 v36, v36, v37\nv_cmp_eq_u32 vcc, -1, v36\ns_cbranch_vccz %s" % Dn)
        e("s_mov_b64 exec, vcc")
        for l in loads:
            e(l)
        e("s_mov_b64 exec, -1\ns_sub_u32 s59, s59, 1\ns_cmp_lg_u32 s59, 0\ns_cbranch_scc1 %s" % Lo)
        self.label(Dn)
        self.stamp(5)
        self.rawstamp(7, "s59")
        for k in range(4):
            e("v_mul_f32_dpp v%d, v232, v%d quad_perm:[0,0,0,0] row_mask:0xf bank_mask:0xf" % (240 + k, 216 + k))
        for j in range(1, 4):
            for k in range(4):
                e("v_fmac_f32_dpp v%d, v232, v%d quad_perm:[%d,%d,%d,%d] row_mask:0xf bank_mask:0xf" % (240 + k, 216 + 4 * j + k, j, j, j, j))
        e("""
v_cvt_pk_bf16_f32 v244, v240, v241
v_cvt_pk_bf16_f32 v245, v242, v243
ds_write_b64 v21, v[244:245]
ds_read_b128 v[232:235], v23
ds_read_b128 v[236:239], v23 offset:64
""")
        e("s_waitcnt lgkmcnt(0)\ns_nop 0")
        for s in range(2):
            for q in range(4):
                r = 128 + 16 * s + 4 * q
                c = "0" if s == 0 else "v[%d:%d]" % (240 + 4 * q, 243 + 4 * q)
                e("v_mfma_f32_16x16x32_bf16 v[%d:%d], v[%d:%d], v[%d:%d], %s" % (240 + 4 * q, 243 + 4 * q, r, r + 3, 232 + 4 * s, 235 + 4 * s, c))
        e("""
s_mov_b32 exec_lo, 0x000f000f
s_mov_b32 exec_hi, 0x000f000f
s_nop 2
ds_write_b128 v24, v[240:243]
s_nop 0
ds_write_b128 v24, v[244:247] offset:64
s_nop 0
ds_write_b128 v24, v[248:251] offset:128
s_nop 0
ds_write_b128 v24, v[252:255] offset:192
s_mov_b64 exec, 1
ds_add_rtn_u32 v16, v25, v26
s_mov_b64 exec, -1
s_waitcnt lgkmcnt(0)
v_readfirstlane_b32 s54, v16
s_cmp_lg_u32 s54, 3
s_cbranch_scc1 L_cs_end
ds_read_b128 v[96:99], v28
ds_read_b128 v[100:103], v28 offset:1024
ds_read_b128 v[104:107], v28 offset:2048
ds_read_b128 v[108:111], v28 offset:3072
s_waitcnt lgkmcnt(2)
v_add_f32 v96, v96, v100
v_add_f32 v97, v97, v101
v_add_f32 v98, v98, v102
v_add_f32 v99, v99, v103
s_waitcnt lgkmcnt(0)
v_add_f32 v104, v104, v108
v_add_f32 v105, v105, v109
v_add_f32 v106, v106, v110
v_add_f32 v107, v107, v111
v_add_f32 v96, v96, v104
v_add_f32 v97, v97, v105
v_add_f32 v98, v98, v106
v_add_f32 v99, v99, v107
buffer_store_dwordx4 v[96:99], v29, s[40:43], s44 offen sc1
""")
        self.stamp(6)
        e("s_branch L_cs_end")
        self.label("L_cs_down")
        e("""
v_bfe_u32 v13, v0, 3, 2
v_mul_u32_u24 v14, 384, v10
v_lshl_add_u32 v14, v11, 3, v14
v_add_u32 v14, %d, v14
s_mul_i32 s54, s36, 3
v_xor_b32 v16, s54, v13
v_lshl_add_u32 v16, v16, 5, v14
s_add_u32 s54, s54, 1
v_xor_b32 v17, s54, v13
v_lshl_add_u32 v17, v17, 5, v14
s_add_u32 s54, s54, 1
v_xor_b32 v18, s54, v13
v_lshl_add_u32 v18, v18, 5, v14
v_mul_u32_u24 v12, 5462, v0
v_lshrrev_b32 v12, 16, v12
v_mul_u32_u24 v19, 12, v12
v_sub_u32 v19, v0, v19
v_mul_u32_u24 v12, 2304, v12
v_lshl_add_u32 v19, v19, 4, v12
s_mov_b32 s46, %d
s_cmp_lt_u32 s36, 2
s_cselect_b32 s46, %d, s46
s_mul_i32 s45, s36, 768
s_add_u32 s45, s45, s46
v_mul_u32_u24 v21, 192, v11
v_lshl_add_u32 v21, v9, 4, v21
v_add_u32 v21, s45, v21
v_add_u32 v22, s45, v27
s_mul_i32 s44, s37, %d
s_mul_i32 s45, s38, 768
s_add_u32 s44, s44, s45
s_mul_i32 s45, s36, 192
s_add_u32 s44, s44, s45
s_add_u32 s44, s44, %d
v_mov_b32 v12, %d
""" % (ringw, XN + 2304 - 1536, OB, PART_ROW, WS_PART, FLAG_H))
        self.wait_lds("v12", "s54", "1", "v4", cached=False)
        e("""
v_mul_u32_u24 v20, %d, v11
v_lshl_add_u32 v20, v9, 4, v20
v_add_u32 v20, %d, v20
s_mov_b32 s51, %d
""" % (H_STRIDE, XN, P_W + 12))
        for k in range(12):
            e("v_mov_b32 v%d, 0" % (240 + k))
        L = self.lab("Ldn")
        self.label(L)
        self.wait_lds("v2", "s50", "s51", "v4")
        e("ds_read_b128 v[232:235], v20")
        for q in range(3):
            r = 192 + 4 * q
            e("ds_read_b64_tr_b16 v[%d:%d], v%d" % (r, r + 1, 16 + q))
            e("ds_read_b64_tr_b16 v[%d:%d], v%d offset:6144" % (r + 2, r + 3, 16 + q))
        e("v_add_u32 v20, 64, v20")
        for q in range(3):
            e("v_add_u32 v%d, 12288, v%d" % (16 + q, 16 + q))
        e("s_add_u32 s51, s51, 12\ns_cmp_le_u32 s51, %d" % (P_W + 108))
        for q in range(3):
            r = 192 + 4 * q
            e("s_waitcnt lgkmcnt(%d)" % (4 - 2 * q))
            e("v_mfma_f32_16x16x32_bf16 v[%d:%d], v[%d:%d], v[232:235], v[%d:%d]" % (240 + 4 * q, 243 + 4 * q, r, r + 3, 240 + 4 * q, 243 + 4 * q))
        e("s_cbranch_scc1 %s" % L)
        e("""
s_mov_b32 exec_lo, 0x000f000f
s_mov_b32 exec_hi, 0x000f000f
s_nop 4
ds_write_b128 v21, v[240:243]
s_nop 0
ds_write_b128 v21, v[244:247] offset:64
s_nop 0
ds_write_b128 v21, v[248:251] offset:128
s_mov_b32 exec_lo, -1
s_mov_b32 exec_hi, 0xffff
ds_read_b128 v[240:243], v22
s_waitcnt lgkmcnt(0)
buffer_store_dwordx4 v[240:243], v19, s[40:43], s44 offen sc1
""")
        self.stamp(6)
        e("s_branch L_cs_end")
        self.label("L_cs_red")
        if "nored" in self.abl:
            e("s_branch L_cs_end")
        e("""
s_lshl_b32 s44, s30, 3
s_add_u32 s44, s44, s31
s_lshl_b32 s45, s36, 6
s_add_u32 s44, s44, s45
s_cmp_ge_u32 s44, 72
s_cbranch_scc1 L_cs_end
s_lshl_b32 s54, s44, 6
v_and_b32 v17, 7, v0
v_lshlrev_b32 v42, 3, v17
buffer_load_dwordx2 v[40:41], v42, s[60:63], s54 offen
v_bfe_u32 v16, v0, 3, 2
v_lshrrev_b32 v18, 5, v0
v_lshl_add_u32 v16, v18, 4, v16
v_mul_u32_u24 v16, %d, v16
v_lshl_add_u32 v16, v17, 4, v16
s_lshl_b32 s44, s44, 7
s_add_u32 s44, s44, %d
s_add_u32 s45, s44, %d
s_add_u32 s46, s45, %d
s_add_u32 s47, s46, %d
s_mov_b32 s57, %s
s_mov_b32 s60, s22
s_mov_b32 s61, s23
""" % (PART_ROW, WS_PART, 4 * PART_ROW, 4 * PART_ROW, 4 * PART_ROW, f32(-LOG2E)))
        self.stamp(8)
        loads = ["buffer_load_dwordx4 v[%d:%d], v16, s[40:43], s%d offen sc1" % (48 + 4 * k, 51 + 4 * k, 44 + k) for k in range(4)]
        Lp = self.lab("Lpr")
        Lq = self.lab("Lprd")
        e("s_mov_b32 s59, %d\ns_mov_b32 exec_lo, 1\ns_mov_b32 exec_hi, 1" % self.spin)
        self.label(Lp)
        e("""
buffer_load_dword v48, v16, s[40:43], s44 offen sc1
buffer_load_dword v56, v16, s[40:43], s46 offen sc1
s_waitcnt vmcnt(0)
v_min_u32 v64, v48, v56
v_cmp_ne_u32 vcc, -1, v64
s_cbranch_vccnz %s
s_sleep %d
s_sub_u32 s59, s59, 1
s_cmp_lg_u32 s59, 0
s_cbranch_scc1 %s
""" % (Lq, self.isleep, Lp))
        self.label(Lq)
        e("""
s_mov_b64 exec, -1
v_lshlrev_b32 v76, 16, v40
v_and_b32 v77, s56, v40
v_lshlrev_b32 v78, 16, v41
v_and_b32 v79, s56, v41
""")
        if self.pipe:
            self.gather_pipe(loads, list(range(48, 64)), 64, depth=self.pipe)
        else:
            self.gather(loads, list(range(48, 64)), 64, sleep=self.tsleep)
        self.stamp(5)
        self.rawstamp(7, "s59")
        for k in range(4):
            e("v_add_f32 v%d, v%d, v%d" % (64 + k, 48 + k, 52 + k))
        for k in range(4):
            e("v_add_f32 v%d, v%d, v%d" % (68 + k, 56 + k, 60 + k))
        for k in range(4):
            e("v_add_f32 v%d, v%d, v%d" % (64 + k, 64 + k, 68 + k))
        for k in range(4):
            e("v_add_f32_dpp v%d, v%d, v%d row_ror:8 row_mask:0xf bank_mask:0xf" % (64 + k, 64 + k, 64 + k))
        for k in range(4):
            e("v_mov_b32 v%d, v%d" % (68 + k, 64 + k))
        e("s_nop 0")
        for k in range(4):
            e("v_permlane16_swap_b32 v%d, v%d" % (64 + k, 68 + k))
        for k in range(4):
            e("v_add_f32 v%d, v%d, v%d" % (64 + k, 64 + k, 68 + k))
        e("""
v_cvt_pk_bf16_f32 v68, v64, v65
v_cvt_pk_bf16_f32 v69, v66, v67
v_lshlrev_b32 v64, 16, v68
v_and_b32 v65, s56, v68
v_lshlrev_b32 v66, 16, v69
v_and_b32 v67, s56, v69
""")
        for k in range(4):
            e("v_mul_f32 v%d, s57, v%d" % (72 + k, 64 + k))
        for k in range(4):
            e("v_exp_f32 v%d, v%d" % (72 + k, 72 + k))
        for k in range(4):
            e("v_add_f32 v%d, 1.0, v%d" % (72 + k, 72 + k))
        for k in range(4):
            e("v_rcp_f32 v%d, v%d" % (72 + k, 72 + k))
        for k in range(4):
            e("v_mul_f32 v%d, v%d, v%d" % (72 + k, 72 + k, 64 + k))
        e("""
v_cvt_pk_bf16_f32 v68, v72, v73
v_cvt_pk_bf16_f32 v69, v74, v75
s_nop 1
v_permlane32_swap_b32 v70, v68
v_permlane32_swap_b32 v71, v69
s_nop 0
""")
        self.o[-3] = "    v_permlane32_swap_b32 v68, v70"
        self.o[-2] = "    v_permlane32_swap_b32 v69, v71"
        e("""
v_lshlrev_b32 v72, 16, v70
v_and_b32 v73, s56, v70
v_lshlrev_b32 v74, 16, v71
v_and_b32 v75, s56, v71
""")
        for k in range(4):
            e("v_mul_f32 v%d, v%d, v%d" % (64 + k, 64 + k, 72 + k))
        e("""
v_cvt_pk_bf16_f32 v68, v64, v65
v_cvt_pk_bf16_f32 v69, v66, v67
v_lshlrev_b32 v64, 16, v68
v_and_b32 v65, s56, v68
v_lshlrev_b32 v66, 16, v69
v_and_b32 v67, s56, v69
v_add_f32 v64, v64, v76
v_add_f32 v65, v65, v77
v_add_f32 v66, v66, v78
v_add_f32 v67, v67, v79
v_cvt_pk_bf16_f32 v68, v64, v65
v_cvt_pk_bf16_f32 v69, v66, v67
s_mov_b64 exec, 0xff
buffer_store_dwordx2 v[68:69], v42, s[60:63], s54 offen%s
""" % self.outflag)
        self.stamp(6)
        self.label("L_cs_end")
        if self.stamps:
            e("s_waitcnt vmcnt(0)")
            self.stamp(9)
            self.flush_stamps([(4, 32), (10, 33), (8, 34), (5, 35), (6, 36), (9, 37), (7, 38)], wave_off=True)
            e("s_cmp_lg_u32 s36, 0\ns_cbranch_scc1 L_end")
            self.flush_stamps([(0, 11), (1, 12), (2, 13), (3, 14), (4, 8), (5, 15), (7, 22), (8, 23), (6, 24), (9, 10)])
        self.label("L_end")
        e("s_endpgm")
        self.label("L_code_end")

    def build(self):
        hdr = open("cdna_kernels/%s.s.ref" % KN).read().split("\n")
        head = []
        for l in hdr:
            if l.startswith("; @launch"):
                break
            head.append(l)
        head.append("; @launch grid=(256,1,1) block=(384,1,1) lds=%d" % LDS_TOTAL)
        head += ['.amdgcn_target "amdgcn-amd-amdhsa--gfx950"', ".text", ".globl %s_kernel" % KN, ".p2align 8",
                 ".type %s_kernel,@function" % KN, "%s_kernel:" % KN]
        self.prologue()
        self.loader()
        self.comm()
        self.cons()
        tail = """.section .rodata,"a"
.p2align 6
.amdhsa_kernel %s_kernel
  .amdhsa_next_free_vgpr 256
  .amdhsa_next_free_sgpr 102
  .amdhsa_accum_offset 256
  .amdhsa_group_segment_fixed_size 0
  .amdhsa_kernarg_size 96
  .amdhsa_user_sgpr_count 2
  .amdhsa_user_sgpr_kernarg_segment_ptr 1
  .amdhsa_system_sgpr_workgroup_id_x 1
  .amdhsa_float_denorm_mode_32 3
.end_amdhsa_kernel
""" % KN
        return "\n".join(head + self.o) + "\n" + tail


if __name__ == "__main__":
    import argparse
    ap = argparse.ArgumentParser()
    ap.add_argument("out")
    ap.add_argument("--stamps", action="store_true")
    ap.add_argument("--W", type=int, default=20)
    ap.add_argument("--nont", action="store_true")
    ap.add_argument("--tsleep", type=int, default=1)
    ap.add_argument("--csleep", type=int, default=0)
    ap.add_argument("--abl", type=str, default="")
    ap.add_argument("--gearly", type=int, default=-16)
    ap.add_argument("--isleep", type=int, default=4)
    ap.add_argument("--Wlate", type=int, default=0)
    ap.add_argument("--pipe", type=int, default=3)
    ap.add_argument("--adapt", action="store_true")
    ap.add_argument("--wlevels", type=str, default="16,20,24,28")
    ap.add_argument("--wthr", type=str, default="-20,20,55")
    ap.add_argument("--outflag", type=str, default="")
    ap.add_argument("--gpos", type=str, default="28")
    ap.add_argument("--Wc3", type=int, default=0)
    ap.add_argument("--Wcol", type=int, default=0)
    ap.add_argument("--ilv", type=int, default=0)
    ap.add_argument("--cpf", type=int, default=0)
    ap.add_argument("--wrole", type=str, default="20,22,22,24")
    ap.add_argument("--npre", type=int, default=6)
    ap.add_argument("--qpos", type=int, default=120)
    ap.add_argument("--qposd", type=int, default=130)
    ap.add_argument("--noprobe", action="store_true")
    ap.add_argument("--wsoff", type=lambda x: int(x, 0), default=0)
    a = ap.parse_args()
    open(a.out, "w").write(Gen(W=a.W, stamps=a.stamps, nt=not a.nont, tsleep=a.tsleep, csleep=a.csleep, abl=a.abl.split(","), gearly=a.gearly, isleep=a.isleep, wsoff=a.wsoff, qpos=a.qpos, qposd=a.qposd, probe=not a.noprobe, Wlate=a.Wlate, pipe=a.pipe, npre=a.npre, wrole=tuple(int(x) for x in a.wrole.split(",")), cpf=a.cpf, ilv=a.ilv, Wc3=a.Wc3, Wcol=a.Wcol, gpos=tuple(int(x) for x in a.gpos.split(",")), outflag=(" " + a.outflag.replace("_", " ") if a.outflag else ""), adapt=a.adapt, wlevels=tuple(int(x) for x in a.wlevels.split(",")), wthr=tuple(int(x) for x in a.wthr.split(","))).build())
```

```python
import sys, struct

KN = "recurrent_scan__sliding_block_cached__geglu_ffn__decode"

RING_KB = 148
RING_BYTES = RING_KB * 1024
AUX = RING_BYTES
XN = AUX
XN_STRIDE = 1216
H_STRIDE = 576
QL = AUX + 4864
OW = AUX + 5376
FULL = AUX + 9472
FREE = AUX + 9728
STW = AUX + 9744
SC = AUX + 9808
CNT_STAT = AUX + 9840
CNT_O = AUX + 9844
FLAG_Q = AUX + 9848
FLAG_H = AUX + 9852
FLAG_SC = AUX + 9856
CNT_P = AUX + 9860
CNT_C = AUX + 9864
FLAG_CLR = AUX + 9868
WCLS = AUX + 9872
OB = AUX + 9984
LDS_TOTAL = AUX + 9984 + 2048

WS_CQ = 0
CQ_STRIDE = 8192
WS_CGU = 0x8000
CGU_STRIDE = 18432
SH_BASE = 0x8000
WS_ST = 0x1A000
WS_OP = 0x1E000
WS_PART = 0x5E000
PART_ROW = 9216
WS_SIZE = 0x5E000 + 32 * 9216
RW = XN

P_K, P_V, P_W = 72, 200, 328

def f32(x):
    return "0x%08x" % struct.unpack("<I", struct.pack("<f", x))[0]

LOG2E = 1.4426950408889634


class Gen:
    def __init__(self, W=20, stamps=False, nt=True, spin=1 << 16, sleep=True, tsleep=1, csleep=0, abl=(), gearly=-16, isleep=12, wsoff=0, qpos=120, qposd=130, probe=True, Wlate=None, gpos=(28,), npre=6, wrole=(20, 22, 22, 24), cpf=0, ilv=0, Wc3=0, Wcol=0, pipe=3, outflag="", adapt=False, wlevels=(16, 20, 24, 28), wthr=(-20, 20, 55)):
        self.o = []
        self.n = 0
        self.W = W
        self.npre = npre
        self.wrole = wrole
        self.cpf = cpf
        self.ilv = ilv
        self.Wc3 = Wc3
        self.Wcol = Wcol
        self.gpos = gpos
        self.outflag = outflag
        self.adapt = adapt
        self.wlevels = wlevels
        self.wthr = wthr
        self.pipe = pipe
        self.Wlate = Wlate or W
        self.stamps = stamps
        self.nt = " nt" if nt else ""
        self.spin = spin
        self.sleep = sleep
        self.qpos = qpos
        self.qposd = qposd
        self.fgap = 32
        self.mbase = 4
        self.hpos = 190
        self.probe = probe
        self.gearly = gearly
        self.wsoff = wsoff
        self.isleep = isleep
        self.tsleep = tsleep
        self.abl = set(abl)
        self.csleep = csleep

    def e(self, s):
        for line in s.strip("\n").split("\n"):
            self.o.append(line if line.rstrip().endswith(":") and not line.startswith(" ") else "    " + line.strip())

    def lab(self, p="L"):
        self.n += 1
        return "%s_%d" % (p, self.n)

    def label(self, l):
        self.o.append(l + ":")

    def sreg(self, k):
        return 70 + 2 * k if k < 10 else 92 + 2 * (k - 10)

    def stamp(self, k):
        if self.stamps:
            self.e("s_memrealtime s[%d:%d]" % (self.sreg(k), self.sreg(k) + 1))

    def rawstamp(self, k, expr_reg):
        if self.stamps:
            self.e("s_sub_u32 s%d, %d, %s\ns_mov_b32 s%d, 0" % (self.sreg(k), self.spin, expr_reg, self.sreg(k) + 1))

    def flush_stamps(self, items, wave_off=False):
        if not self.stamps:
            return
        self.e("""
s_waitcnt lgkmcnt(0)
s_add_u32 s64, s26, 0x10000000
s_addc_u32 s65, s27, 0
s_mov_b32 s66, 0x100000
s_mov_b32 s67, 0x00020000
s_mul_i32 s68, s2, 512
s_mov_b64 exec, 1
""")
        if wave_off:
            self.e("s_lshl_b32 s64, s36, 6\ns_add_u32 s68, s68, s64\ns_add_u32 s64, s26, 0x10000000")
        for k, slot in items:
            self.e("""
v_mov_b32 v250, s%d
v_mov_b32 v251, s%d
v_mov_b32 v252, %d
buffer_store_dwordx2 v[250:251], v252, s[64:67], s68 offen
s_nop 1
""" % (self.sreg(k), self.sreg(k) + 1, slot * 8))

    def wait_lds(self, vaddr, sreg, thr, vtmp, cached=True, sleep=0):
        l = self.lab("Lw")
        d = self.lab("Ld")
        if cached:
            self.e("s_cmp_ge_i32 %s, %s\ns_cbranch_scc1 %s" % (sreg, thr, d))
        self.label(l)
        self.e("ds_read_b32 %s, %s\ns_waitcnt lgkmcnt(0)\nv_readfirstlane_b32 %s, %s" % (vtmp, vaddr, sreg, vtmp))
        self.e("s_cmp_ge_i32 %s, %s\ns_cbranch_scc1 %s" % (sreg, thr, d))
        sleep = sleep or self.csleep
        if sleep:
            self.e("s_sleep %d" % sleep)
        self.e("s_sub_i32 s69, s69, 1\ns_cmp_gt_i32 s69, 0\ns_cbranch_scc1 %s" % l)
        self.label(d)

    def prologue(self):
        self.e("""
s_cmp_ge_u32 s2, 256
s_cbranch_scc1 L_end
s_load_dwordx16 s[4:19], s[0:1], 0
s_load_dwordx8 s[20:27], s[0:1], 64
v_lshrrev_b32 v1, 6, v0
v_and_b32 v0, 63, v0
s_and_b32 s30, s2, 7
s_mov_b32 s69, 0x400000
v_readfirstlane_b32 s36, v1
s_lshr_b32 s31, s2, 3
s_lshr_b32 s32, s31, 4
s_lshl_b32 s33, s30, 1
s_add_u32 s32, s32, s33
s_lshr_b32 s34, s31, 2
s_and_b32 s34, s34, 3
s_and_b32 s35, s31, 3
s_lshl_b32 s33, s34, 4
s_add_u32 s33, s33, s32
s_cmp_eq_u32 s36, %d
s_cbranch_scc1 L_comm
s_cmp_lg_u32 s36, 0
s_cbranch_scc1 L_cons
""" % (4 if "perm" in self.abl else 1))

    def tile_ids(self):
        self.e("""
s_sub_u32 s38, s31, 8
s_cmp_ge_u32 s38, 9
s_cselect_b32 s37, 1, 0
s_cselect_b32 s39, 9, 0
s_sub_u32 s38, s38, s39
s_cmp_ge_u32 s31, 26
s_cbranch_scc0 %(l)s
s_sub_u32 s38, s31, 26
s_cmp_ge_u32 s38, 3
s_cselect_b32 s37, 17, 16
s_cselect_b32 s39, 3, 0
s_sub_u32 s38, s38, s39
%(l)s:
s_lshl_b32 s39, s30, 1
s_add_u32 s37, s37, s39
""" % dict(l=self.lab("Lt")))

    def loader(self):
        W = self.W
        nt = self.nt
        e = self.e
        self.stamp(0)
        e("""
s_setprio 3
v_lshrrev_b32 v12, 3, v0
v_and_b32 v13, 7, v0
v_and_b32 v14, 6, v12
v_xor_b32 v13, v13, v14
v_lshlrev_b32 v13, 4, v13
s_lshl_b32 s46, s33, 21
s_lshl_b32 s47, s35, 17
s_add_u32 s46, s46, s47
s_add_u32 s46, s46, 0x180000
s_mov_b32 s63, 0x00020000
s_cmp_lt_u32 s31, 26
s_cbranch_scc1 L_ld_cfirst
v_lshrrev_b32 v8, 4, v0
v_and_b32 v9, 15, v0
v_lshlrev_b32 v10, 1, v8
v_xor_b32 v11, v9, v10
v_lshlrev_b32 v11, 4, v11
v_lshl_add_u32 v3, v8, 8, v11
v_xor_b32 v4, 0x80, v3
v_mov_b32 v5, v3
v_mov_b32 v6, v4
s_movk_i32 s41, 4096
s_mov_b32 s51, s46
s_mov_b32 s43, 0
s_mov_b32 s62, 0x8000000
s_mov_b32 m0, 0x12000
s_waitcnt lgkmcnt(0)
s_mov_b32 s60, s6
s_mov_b32 s61, s7
s_branch L_ld_pre
L_ld_cfirst:
s_mul_i32 s43, s30, 9
s_add_u32 s43, s43, s31
s_cmp_lt_u32 s31, 17
s_cselect_b32 s44, 8, 17
s_movk_i32 s40, 0x2400
s_cmp_lt_u32 s31, 8
s_cselect_b32 s44, s30, s44
s_cselect_b32 s40, 0x2000, s40
s_sub_u32 s43, s43, s44
s_lshl_b32 s51, s43, 7
v_mad_u32_u24 v3, v12, s40, v13
s_lshl_b32 s41, s40, 5
s_lshl_b32 s42, s40, 3
s_sub_u32 s42, s42, 1024
v_add_u32 v4, s42, v3
v_add_u32 v5, s42, v4
v_add_u32 v6, s42, v5
s_mul_i32 s62, s40, 576
s_mov_b32 m0, 0
s_cmp_lt_u32 s31, 17
s_waitcnt lgkmcnt(0)
s_cselect_b32 s60, s16, s18
s_cselect_b32 s61, s17, s19
s_cmp_lt_u32 s31, 8
s_cselect_b32 s60, s10, s60
s_cselect_b32 s61, s11, s61
L_ld_pre:
""")
        self.stamp(4)
        for k in range(self.npre):
            if k:
                e("s_add_u32 m0, m0, 4096\ns_add_u32 s51, s51, s41")
            for i, p in enumerate([3, 4, 5, 6]):
                off = " offset:%d" % (i * 1024) if i else ""
                e("buffer_load_dwordx4 v%d, s[60:63], s51 offen%s%s lds" % (p, off, nt))
        e("s_add_u32 s51, s51, s41")
        self.stamp(5)
        kvpat = """
v_lshrrev_b32 v8, 4, v0
v_and_b32 v9, 15, v0
v_lshlrev_b32 v10, 1, v8
v_xor_b32 v11, v9, v10
v_lshlrev_b32 v11, 4, v11
v_lshl_add_u32 v1, v8, 8, v11
v_xor_b32 v2, 0x80, v1
"""
        e(kvpat)
        e("""
v_mul_u32_u24 v20, 1152, v12
v_add_u32 v20, v20, v13
v_add_u32 v21, 8192, v20
v_add_u32 v22, 8192, v21
v_add_u32 v23, 8192, v22
""")
        for i in range(3):
            e("""
v_add_u32 v12, %d, v0
v_mul_u32_u24 v13, 2731, v12
v_lshrrev_b32 v13, 16, v13
v_mul_u32_u24 v14, 24, v13
v_sub_u32 v14, v12, v14
v_and_b32 v15, 6, v13
v_xor_b32 v14, v14, v15
v_mul_u32_u24 v13, 1152, v13
v_lshl_add_u32 v%d, v14, 4, v13
""" % (64 * i, 17 + i))
        e("""
v_mov_b32 v7, v17
v_add_u32 v8, 0xfffffc00, v18
v_add_u32 v9, 0xfffff800, v19
v_lshlrev_b32 v10, 2, v0
v_add_u32 v10, %d, v10
v_mov_b32 v11, %d
s_mov_b32 s55, 0
""" % (FULL, FREE))
        self.tile_ids()
        cur = [W]

        def run(pats, step_reg_or_imm, n_iter, check_free, label=None):
            n = len(pats)
            L = self.lab("Lrun")
            e("s_mov_b32 s52, %d" % n_iter)
            self.label(L)
            if check_free:
                ok = self.lab("Lok")
                sl = self.lab("Lsl")
                e("s_add_i32 s54, s53, %d\ns_cmp_le_i32 s54, s55\ns_cbranch_scc1 %s" % (n - RING_KB, ok))
                self.label(sl)
                e("""
ds_read_b128 v[12:15], v11
s_waitcnt lgkmcnt(0)
v_min_u32 v12, v12, v13
v_min3_u32 v12, v12, v14, v15
s_nop 0
v_readfirstlane_b32 s55, v12
s_cmp_le_i32 s54, s55
s_cbranch_scc1 %s
s_sub_i32 s69, s69, 1
s_cmp_gt_i32 s69, 0
s_cbranch_scc1 %s
""" % (ok, sl))
                self.label(ok)
            e("s_mov_b32 m0, s50")
            e("s_add_u32 s50, s50, %d" % (n * 1024))
            for i, p in enumerate(pats):
                off = " offset:%d" % (i * 1024) if i else ""
                e("buffer_load_dwordx4 v%d, s[60:63], s51 offen%s%s lds" % (p, off, nt))
            e("s_add_u32 s51, s51, %s" % step_reg_or_imm)
            e("s_cmp_eq_u32 s50, %d\ns_cselect_b32 s50, 0, s50" % RING_BYTES)
            e("s_add_u32 s53, s53, %d" % n)
            lv = sorted(set(self.wrole), reverse=True)
            if len(lv) > 1:
                dn = self.lab("Lwd")
                for i, w in enumerate(lv):
                    e("s_waitcnt vmcnt(%d)" % w)
                    if i < len(lv) - 1:
                        e("s_cmp_ge_u32 s57, %d\ns_cbranch_scc1 %s" % (w, dn))
                self.label(dn)
                e("s_sub_u32 s54, s53, s57\nv_mov_b32 v16, s54\nds_write_b32 v10, v16")
            else:
                e("s_waitcnt vmcnt(%d)" % cur[0])
                e("s_sub_u32 s54, s53, %d\nv_mov_b32 v16, s54\nds_write_b32 v10, v16" % cur[0])
            e("s_sub_u32 s52, s52, 1\ns_cmp_lg_u32 s52, 0\ns_cbranch_scc1 %s" % L)

        def batch(pats, srd, soff, step):
            n = len(pats)
            e("s_mov_b32 m0, s50")
            e("s_add_u32 s50, s50, %d" % (n * 1024))
            for i, p in enumerate(pats):
                off = " offset:%d" % (i * 1024) if i else ""
                e("buffer_load_dwordx4 v%d, s[%d:%d], %s offen%s%s lds" % (p, srd, srd + 3, soff, off, nt))
            e("s_add_u32 %s, %s, %s" % (soff, soff, step))
            e("s_add_u32 s53, s53, %d" % n)
            e("s_waitcnt vmcnt(%d)" % cur[0])
            e("s_sub_u32 s54, s53, %d\nv_mov_b32 v16, s54\nds_write_b32 v10, v16" % cur[0])

        def ilv_run():
            L = self.lab("Lilv")
            M = self.lab("Lilm")
            e("s_mov_b32 s64, s6\ns_mov_b32 s65, s7\ns_mov_b32 s66, 0x8000000\ns_mov_b32 s67, 0x00020000\ns_mov_b32 s52, 9\ns_branch %s" % M)
            self.label(L)
            batch([3, 4, 5, 6], 60, "s51", "s41")
            self.label(M)
            batch([3, 4, 5, 6], 60, "s51", "s41")
            batch([1, 2, 1, 2], 64, "s46", "4096")
            e("s_sub_u32 s52, s52, 1\ns_cmp_lg_u32 s52, 0\ns_cbranch_scc1 %s" % L)
            e("s_mov_b32 s56, 23\ns_branch L_ld_k")

        def stream(W, sfx):
            cur[0] = W
            o0 = len(self.o)
            e("s_barrier\ns_cmp_ge_u32 s31, 26\ns_cbranch_scc1 L_ld_nocol")
            e("s_mov_b32 s50, %d\ns_mov_b32 s53, %d\ns_mov_b32 s56, 32" % (4096 * self.npre, 4 * self.npre))
            run([3, 4, 5, 6], "s41", 18 - self.npre, False)
            e("s_branch L_ld_k")
            self.label("L_ld_nocol")
            e("s_mov_b32 s46, s51\ns_mov_b32 s50, %d\ns_mov_b32 s53, %d\ns_mov_b32 s56, %d" % ((P_K + 4 * self.npre) * 1024, P_K + 4 * self.npre, 32 - self.npre))
            self.label("L_ld_k")
            self.stamp(1)
            e("s_mov_b32 s60, s6\ns_mov_b32 s61, s7\ns_mov_b32 s62, 0x8000000\ns_mov_b32 s51, s46")
            if "fine" in self.abl:
                for q in range(4):
                    run([1, 2, 1, 2], "4096", 8, True)
                    self.stamp(4 + q)
                e("s_mov_b32 s60, s8\ns_mov_b32 s61, s9\ns_mov_b32 s51, s46")
                for q in range(4):
                    run([1, 2, 1, 2], "4096", 8, True)
                    if q < 3:
                        self.stamp(8 + q)
            else:
                o1 = len(self.o)
                run([1, 2, 1, 2], "4096", 32, True)
                self.o[o1] = "    s_mov_b32 s52, s56"
                e("s_mov_b32 s60, s8\ns_mov_b32 s61, s9\ns_sub_u32 s51, s51, 0x20000")
                run([1, 2, 1, 2], "4096", 32, True)
            self.stamp(2)
            e("""
s_cmp_ge_u32 s31, 26
s_cbranch_scc1 L_ld_down
s_cmp_lt_u32 s31, 8
s_cbranch_scc1 L_ld_drain
s_mov_b32 s60, s12
s_mov_b32 s61, s13
s_mov_b32 s62, %d
s_mul_i32 s51, s37, 294912
s_lshl_b32 s54, s38, 7
s_add_u32 s51, s51, s54
""" % (4096 * 1152))
            run([20, 21, 22, 23], "36864", 8, True)
            e("s_branch L_ld_drain")
            self.label("L_ld_down")
            e("""
s_mov_b32 s60, s20
s_mov_b32 s61, s21
s_mov_b32 s62, %d
s_sub_u32 s51, s37, 16
s_mul_i32 s51, s51, 331776
s_mul_i32 s54, s38, 384
s_add_u32 s51, s51, s54
""" % (4608 * 1152))
            run([7, 8, 9], "9216", 36, True)
            self.label("L_ld_drain")
            for w in (28, 24, 20, 16, 12, 8, 4, 0):
                if w < max(self.wrole):
                    e("s_waitcnt vmcnt(%d)\ns_sub_u32 s54, s53, %d\nv_mov_b32 v16, s54\nds_write_b32 v10, v16" % (w, w))
            self.stamp(3)
            if self.stamps:
                e("s_getreg_b32 s%d, hwreg(HW_REG_HW_ID)\ns_mov_b32 s%d, 0" % (self.sreg(12), self.sreg(12) + 1))
            self.flush_stamps([(0, 0), (1, 1), (2, 2), (3, 3), (12, 21)] + ([(4 + q, 25 + q) for q in range(7)] if ("fine" in self.abl or "first" in self.abl) else []))
            e("s_endpgm")
            for i in range(o0, len(self.o)):
                self.o[i] = self.o[i].replace("L_ld_", "L_ld%s_" % sfx)

        wg_, wq_, wd_, w3_ = self.wrole
        e("""
s_mov_b32 s57, %d
s_cmp_lt_u32 s31, 8
s_cselect_b32 s57, %d, s57
s_and_b32 s54, s43, 7
s_cmp_eq_u32 s54, 3
s_cselect_b32 s57, %d, s57
s_cmp_ge_u32 s31, 26
s_cselect_b32 s57, %d, s57
""" % (wg_, wq_, w3_, wd_))
        stream(self.W, "")

    def gather(self, loads, regs, vt, strycnt="s59", sleep=8, preissued=False, idle_sleep=0):
        e = self.e
        L = self.lab("Lg")
        D = self.lab("Lgd")
        P = self.lab("Lgp")
        n = len(loads)
        per = len(regs) // n
        assert n <= 6
        masks = [(self.mbase + 2 * k) for k in range(n)]
        e("s_mov_b32 %s, %d\ns_mov_b64 s[90:91], exec" % (strycnt, self.spin))
        if not preissued:
            for l in loads:
                e(l)
        e("s_branch %s" % P)
        self.label(L)
        for k, l in enumerate(loads):
            if n > 1:
                S = self.lab("Lgs")
                e("s_mov_b64 exec, s[%d:%d]\ns_cbranch_execz %s" % (masks[k], masks[k] + 1, S))
                e(l)
                self.label(S)
            else:
                e("s_mov_b64 exec, vcc")
                e(l)
        e("s_mov_b64 exec, s[90:91]")
        self.label(P)
        e("s_waitcnt vmcnt(0)")
        for k in range(n):
            rs = list(regs[k * per:(k + 1) * per])
            if len(rs) == 2:
                e("v_max_u32 v%d, v%d, v%d" % (vt + k, rs[0], rs[1]))
            else:
                e("v_max3_u32 v%d, v%d, v%d, v%d\nv_max_u32 v%d, v%d, v%d" % (vt + k, rs[0], rs[1], rs[2], vt + k, vt + k, rs[3]))
        if n == 1:
            e("v_cmp_eq_u32 vcc, -1, v%d" % vt)
        else:
            rs = [vt + k for k in range(n)]
            t = vt + n
            e("v_max_u32 v%d, v%d, v%d" % (t, rs[0], rs[1]))
            rs = rs[2:]
            while rs:
                if len(rs) >= 2:
                    e("v_max3_u32 v%d, v%d, v%d, v%d" % (t, t, rs[0], rs[1]))
                    rs = rs[2:]
                else:
                    e("v_max_u32 v%d, v%d, v%d" % (t, t, rs[0]))
                    rs = []
            e("v_cmp_eq_u32 vcc, -1, v%d" % t)
        e("s_cbranch_vccz %s" % D)
        if n > 1:
            for k in range(n):
                e("v_cmp_eq_u32 s[%d:%d], -1, v%d" % (masks[k], masks[k] + 1, vt + k))
        if idle_sleep:
            Z = self.lab("Lgz")
            e("s_and_b64 s[%d:%d], s[%d:%d], s[%d:%d]" % (self.mbase + 12, self.mbase + 13, masks[0], masks[0] + 1, masks[1], masks[1] + 1))
            e("s_cmp_lg_u64 s[%d:%d], s[90:91]\ns_cbranch_scc1 %s\ns_sleep %d" % (self.mbase + 12, self.mbase + 13, Z, idle_sleep))
            self.label(Z)
        if sleep:
            e("s_sleep %d" % sleep)
        e("s_sub_u32 %s, %s, 1\ns_cmp_lg_u32 %s, 0\ns_cbranch_scc1 %s" % (strycnt, strycnt, strycnt, L))
        self.label(D)

    def gather_pipe(self, loads, regs, vt, depth=3, gap=2, preissued=0):
        e = self.e
        L = self.lab("Lgq")
        D = self.lab("Lgqd")
        n = len(loads)
        e("s_mov_b32 s59, %d\ns_mov_b64 s[90:91], exec" % self.spin)
        for r in range(depth - 1 - preissued):
            for l in loads:
                e(l)
            e("s_sleep %d" % gap)
        self.label(L)
        for l in loads:
            e(l)
        e("s_mov_b64 exec, s[90:91]")
        e("s_waitcnt vmcnt(%d)" % (n * (depth - 1)))
        rs = list(regs)
        e("v_max3_u32 v%d, v%d, v%d, v%d" % (vt, rs[0], rs[1], rs[2]))
        e("v_max3_u32 v%d, v%d, v%d, v%d" % (vt + 1, rs[3], rs[4], rs[5]))
        rs = rs[6:]
        i = 0
        while rs:
            e("v_max3_u32 v%d, v%d, v%d, v%d" % (vt + i, vt + i, rs[0], rs[1]))
            rs = rs[2:]
            i ^= 1
        e("v_max_u32 v%d, v%d, v%d" % (vt, vt, vt + 1))
        e("v_cmp_eq_u32 vcc, -1, v%d" % vt)
        e("s_cbranch_vccz %s" % D)
        e("s_mov_b64 exec, vcc")
        e("s_sub_u32 s59, s59, 1\ns_cmp_lg_u32 s59, 0\ns_cbranch_scc1 %s" % L)
        e("s_mov_b64 exec, s[90:91]")
        self.label(D)

    def ws_srd(self):
        if self.wsoff:
            self.e("s_add_u32 s40, s26, %d\ns_addc_u32 s41, s27, 0" % self.wsoff)
        else:
            self.e("s_mov_b32 s40, s26\ns_mov_b32 s41, s27")
        self.e("s_mov_b32 s42, %d\ns_mov_b32 s43, 0x00020000" % WS_SIZE)

    def set_flag(self, addr, vt0, vt1):
        self.e("s_mov_b64 exec, 1\nv_mov_b32 v%d, %d\nv_mov_b32 v%d, 1\nds_write_b32 v%d, v%d\ns_mov_b64 exec, -1" % (vt0, addr, vt1, vt0, vt1))

    def comm(self):
        e = self.e
        self.label("L_comm")
        e("""
v_lshlrev_b32 v1, 3, v0
v_add_u32 v1, %d, v1
v_mov_b32 v2, 0
v_mov_b32 v3, 0
ds_write_b64 v1, v[2:3]
v_mov_b32 v4, -1
v_mov_b32 v5, -1
v_mov_b32 v6, -1
v_mov_b32 v7, -1
v_lshlrev_b32 v8, 4, v0
""" % FULL)
        self.tile_ids()
        self.ct_id()
        share = (WS_SIZE - SH_BASE) // 64
        assert share * 64 == WS_SIZE - SH_BASE and share % 128 == 0
        e("""
s_lshl_b32 s45, s33, 2
s_add_u32 s45, s45, s35
s_movk_i32 s46, %d
s_cmp_lt_u32 s31, 8
s_cselect_b32 s46, %d, s46
s_cselect_b32 s47, 0, %d
s_mul_i32 s52, s44, %d
s_lshl_b32 s44, s44, 7
s_add_u32 s44, s44, s47
v_lshrrev_b32 v9, 3, v0
v_mul_lo_u32 v9, v9, s46
v_and_b32 v10, 7, v0
v_lshl_add_u32 v9, v10, 4, v9
v_lshlrev_b32 v12, 2, v0
v_add_u32 v13, %d, v8
v_mov_b32 v23, %d
s_waitcnt lgkmcnt(0)
s_barrier
""" % (CGU_STRIDE, CQ_STRIDE, WS_CGU - 64 * 128, share, OB, CNT_C))
        if self.cpf:
            e("s_getpc_b64 s[54:55]")
            self.label("L_pc")
            e("s_sub_u32 s54, s54, L_pc-%s_kernel\ns_subb_u32 s55, s55, 0\ns_mul_i32 s56, s31, %d" % (KN, self.cpf * 128))
            for k in range(self.cpf):
                e("s_min_u32 s57, s56, L_code_end-%s_kernel-4\ns_load_dword s78, s[54:55], s57\ns_add_u32 s56, s56, 128" % KN)
        if "nocomm" in self.abl:
            e("s_waitcnt lgkmcnt(0)")
            self.set_flag(FLAG_Q, 21, 22)
            self.set_flag(FLAG_H, 21, 22)
            self.set_flag(FLAG_SC, 21, 22)
            e("s_endpgm")
        self.ws_srd()

        def c_store():
            self.wait_lds("v23", "s46", "4", "v14", cached=False, sleep=2)
            e("""
s_mov_b32 exec_hi, 0
ds_read_b128 v[16:19], v13
s_waitcnt lgkmcnt(0)
buffer_store_dwordx4 v[16:19], v9, s[40:43], s44 offen sc1
s_mov_b32 exec_hi, -1
""")
        e("""
s_mov_b32 s48, s24
s_mov_b32 s49, s25
s_mov_b32 s50, 256
s_mov_b32 s51, 0x00020000
s_cmp_ge_u32 s31, 8
s_cbranch_scc1 L_cm_noclr
s_mov_b32 exec_hi, 0
buffer_store_dwordx4 v[4:7], v9, s[40:43], s44 offen sc1
s_mov_b32 exec_hi, -1
s_add_u32 s52, s52, %d
""" % SH_BASE)
        for i in range(share // 1024):
            e("buffer_store_dwordx4 v[4:7], v8, s[40:43], s52 offen offset:%d sc1" % ((i % 4) * 1024))
            if i % 4 == 3:
                e("s_add_u32 s52, s52, 4096")
        rem = (share % 1024) // 16
        e("s_mov_b32 exec_hi, 0x%x" % ((1 << (rem - 32)) - 1))
        e("buffer_store_dwordx4 v[4:7], v8, s[40:43], s52 offen offset:%d sc1" % (((share // 1024) % 4) * 1024))
        e("""
s_lshr_b32 s46, s44, 5
v_mov_b32 v10, 1
v_mov_b32 v11, 0
s_mov_b64 exec, 1
s_waitcnt vmcnt(0)
buffer_store_dword v10, v11, s[48:51], s46 offen sc1
s_mov_b64 exec, -1
""")
        self.stamp(7)
        c_store()
        self.label("L_cm_noclr")
        e("s_mov_b32 s47, %d\ns_cmp_ge_u32 s31, 26\ns_cselect_b32 s47, %d, s47\nv_mov_b32 v15, %d" % (self.qpos - self.fgap, P_K + self.qposd - self.fgap, FULL))
        self.wait_lds("v15", "s46", "s47", "v14", cached=False, sleep=4)
        self.stamp(8)
        L = self.lab("Lfl")
        D = self.lab("Lfld")
        e("s_mov_b32 s59, %d\ns_mov_b32 s46, 1" % self.spin)
        self.label(L)
        e("""
buffer_load_dword v14, v12, s[48:51], 0 offen sc1
s_waitcnt vmcnt(0)
v_cmp_ne_u32 vcc, s46, v14
s_cbranch_vccz %s
s_sleep 16
s_sub_u32 s59, s59, 1
s_cmp_lg_u32 s59, 0
s_cbranch_scc1 %s
""" % (D, L))
        if "nofl" in self.abl:
            del self.o[-8:]
        self.label(D)
        self.stamp(0)
        self.rawstamp(9, "s59")
        e("s_cmp_lt_u32 s31, 8\ns_cbranch_scc1 L_cm_nocs\ns_cmp_ge_u32 s31, 26\ns_cbranch_scc1 L_cm_nocs")
        c_store()
        self.label("L_cm_nocs")
        if "comm_fl" in self.abl:
            self.set_flag(FLAG_Q, 21, 22)
            self.set_flag(FLAG_H, 21, 22)
            self.set_flag(FLAG_SC, 21, 22)
            e("s_endpgm")
        e("s_add_u32 s47, s47, %d" % self.fgap)
        self.wait_lds("v15", "s46", "s47", "v14", cached=False, sleep=4)
        e("""
s_mul_i32 s46, s34, %d
s_lshl_b32 s47, s32, 9
s_add_u32 s46, s46, s47
s_mov_b32 exec_hi, 0
""" % CQ_STRIDE)
        if "noq" not in self.abl:
            self.gather(["buffer_load_dwordx4 v[16:19], v8, s[40:43], s46 offen sc1"], [16, 17, 18, 19], 20)
        e("v_add_u32 v21, %d, v8\nds_write_b128 v21, v[16:19]\ns_waitcnt lgkmcnt(0)" % QL)
        self.set_flag(FLAG_Q, 21, 22)
        self.stamp(1)
        self.rawstamp(10, "s59")
        if "comm_q" in self.abl:
            self.set_flag(FLAG_H, 21, 22)
            self.set_flag(FLAG_SC, 21, 22)
            e("s_endpgm")
        e("s_cmp_lt_u32 s31, 26\ns_cbranch_scc1 L_cm_noh")
        for i in range(3):
            e("""
v_add_u32 v16, %d, v0
v_mul_u32_u24 v17, 1821, v16
v_lshrrev_b32 v17, 16, v17
v_mul_u32_u24 v18, 36, v17
v_sub_u32 v18, v16, v18
v_mul_u32_u24 v19, %d, v17
v_lshl_add_u32 v%d, v18, 4, v19
v_mul_u32_u24 v19, %d, v17
v_lshrrev_b32 v20, 2, v18
v_lshl_add_u32 v19, v20, 6, v19
v_and_b32 v20, 1, v18
v_lshl_add_u32 v19, v20, 5, v19
v_bfe_u32 v20, v18, 1, 1
v_lshl_add_u32 v19, v20, 3, v19
v_add_u32 v%d, %d, v19
""" % (64 * i, CGU_STRIDE, 24 + i, H_STRIDE, 27 + i, XN))
        e("""
v_cmp_gt_u32 vcc, 16, v0
s_nop 1
v_cndmask_b32 v26, v24, v26, vcc
v_cndmask_b32 v29, v27, v29, vcc
s_sub_u32 s46, s37, 16
s_mul_i32 s46, s46, 576
s_add_u32 s47, s46, %d
s_add_u32 s46, s46, %d
""" % (WS_CGU + 9216, WS_CGU))
        self.wait_lds("v15", "s48", str(P_K + self.hpos), "v14", cached=False, sleep=4)
        loads = []
        for i in range(3):
            loads.append("buffer_load_dwordx4 v[%d:%d], v%d, s[40:43], s46 offen sc1" % (48 + 4 * i, 51 + 4 * i, 24 + i))
            loads.append("buffer_load_dwordx4 v[%d:%d], v%d, s[40:43], s47 offen sc1" % (60 + 4 * i, 63 + 4 * i, 24 + i))
        self.gather(loads, [r for i in range(3) for r in list(range(48 + 4 * i, 52 + 4 * i)) + list(range(60 + 4 * i, 64 + 4 * i))], 72)
        c0 = -2.0 * LOG2E * 0.7978845608028654
        e("s_mov_b32 s46, %s\ns_mov_b32 s47, %s\ns_mov_b32 s56, 0xffff0000" % (f32(c0), f32(c0 * 0.044715)))
        e("v_mov_b32 v20, s46")
        for r in range(12):
            g = 48 + r
            u = 60 + r
            e("""
v_lshlrev_b32 v16, 16, v%(g)d
v_and_b32 v17, s56, v%(g)d
v_mul_f32 v18, v16, v16
v_mul_f32 v19, v17, v17
v_fma_f32 v18, v18, s47, v20
v_fma_f32 v19, v19, s47, v20
v_mul_f32 v18, v18, v16
v_mul_f32 v19, v19, v17
v_exp_f32 v18, v18
v_exp_f32 v19, v19
s_nop 0
v_add_f32 v18, 1.0, v18
v_add_f32 v19, 1.0, v19
v_rcp_f32 v18, v18
v_rcp_f32 v19, v19
s_nop 0
v_mul_f32 v18, v18, v16
v_mul_f32 v19, v19, v17
v_cvt_pk_bf16_f32 v18, v18, v19
v_lshlrev_b32 v16, 16, v%(u)d
v_and_b32 v17, s56, v%(u)d
v_and_b32 v19, s56, v18
v_lshlrev_b32 v18, 16, v18
v_mul_f32 v18, v18, v16
v_mul_f32 v19, v19, v17
v_cvt_pk_bf16_f32 v%(g)d, v18, v19
""" % dict(g=g, u=u))
        for i in range(3):
            e("ds_write2_b64 v%d, v[%d:%d], v[%d:%d] offset0:0 offset1:2" % (27 + i, 48 + 4 * i, 49 + 4 * i, 50 + 4 * i, 51 + 4 * i))
        e("s_waitcnt lgkmcnt(0)")
        self.set_flag(FLAG_H, 21, 22)
        self.label("L_cm_noh")
        e("v_mov_b32 v16, %d" % CNT_STAT)
        self.wait_lds("v16", "s46", "4", "v17", cached=False, sleep=2)
        self.stamp(2)
        e("""
v_and_b32 v16, 7, v0
v_lshlrev_b32 v16, 3, v16
v_add_u32 v17, %d, v16
ds_read_b64 v[18:19], v17
s_mov_b32 s56, %s
v_and_b32 v27, 1, v0
v_lshlrev_b32 v27, 4, v27
v_bfe_u32 v28, v0, 1, 2
v_lshl_add_u32 v27, v28, 2, v27
v_add_u32 v27, %d, v27
s_waitcnt lgkmcnt(0)
v_max_f32_dpp v20, v18, v18 row_ror:2 row_mask:0xf bank_mask:0xf
s_nop 1
v_max_f32_dpp v20, v20, v20 row_ror:4 row_mask:0xf bank_mask:0xf
v_sub_f32 v22, v18, v20
v_mul_f32 v22, s56, v22
v_exp_f32 v22, v22
s_nop 0
v_mul_f32 v21, v22, v19
ds_write_b32 v27, v22
s_nop 0
v_add_f32_dpp v21, v21, v21 row_ror:2 row_mask:0xf bank_mask:0xf
s_nop 1
v_add_f32_dpp v21, v21, v21 row_ror:4 row_mask:0xf bank_mask:0xf
s_lshl_b32 s47, s45, 6
s_add_u32 s47, s47, %d
s_mov_b64 exec, 0xff
buffer_store_dwordx2 v[20:21], v16, s[40:43], s47 offen sc1
s_mov_b64 exec, -1
s_waitcnt lgkmcnt(0)
""" % (STW, f32(LOG2E), SC, WS_ST))
        self.set_flag(FLAG_SC, 23, 24)
        self.stamp(3)
        self.flush_stamps([(0, 4), (1, 5), (2, 6), (3, 7), (7, 16), (8, 17), (9, 18), (10, 19)])
        e("s_endpgm")

    def tlb_warm(self):
        e = self.e
        e("""
s_lshl_b32 s52, s33, 21
s_add_u32 s52, s52, 0x180000
s_lshl_b32 s53, s35, 17
s_add_u32 s52, s52, s53
s_load_dword s78, s[6:7], s52
s_load_dword s78, s[8:9], s52
s_cmp_ge_u32 s31, 26
s_cbranch_scc1 L_tw_dn
s_cmp_lt_u32 s31, 17
s_cselect_b32 s60, s16, s18
s_cselect_b32 s61, s17, s19
s_cmp_lt_u32 s31, 8
s_cselect_b32 s60, s10, s60
s_cselect_b32 s61, s11, s61
s_mov_b32 s53, 0x180000
s_load_dword s78, s[60:61], s53
s_mov_b32 s53, 0x300000
s_load_dword s78, s[60:61], s53
s_mov_b32 s53, 0x47ff00
s_load_dword s78, s[60:61], s53
s_cbranch_scc1 L_tw_end
s_mul_i32 s53, s37, 294912
s_load_dword s78, s[12:13], s53
s_add_u32 s53, s53, 294000
s_load_dword s78, s[12:13], s53
s_branch L_tw_end
L_tw_dn:
s_sub_u32 s53, s37, 16
s_mul_i32 s53, s53, 331776
s_load_dword s78, s[20:21], s53
s_add_u32 s53, s53, 331000
s_load_dword s78, s[20:21], s53
L_tw_end:
""")

    def ct_id(self):
        self.e("""
s_lshl_b32 s44, s30, 3
s_add_u32 s44, s44, s31
s_mul_i32 s46, s30, 9
s_add_u32 s46, s46, s31
s_add_u32 s47, s46, 56
s_add_u32 s46, s46, 119
s_cmp_lt_u32 s31, 17
s_cselect_b32 s46, s47, s46
s_cmp_lt_u32 s31, 8
s_cselect_b32 s44, s44, s46
""")

    def free_write(self, sval):
        self.e("s_mov_b64 exec, 1\nv_mov_b32 v4, %s\nds_write_b32 v3, v4\ns_mov_b64 exec, -1" % sval)

    def cons(self):
        e = self.e
        self.label("L_cons")
        if self.stamps:
            for k in range(15):
                e("s_mov_b64 s[%d:%d], 0" % (self.sreg(k), self.sreg(k) + 1))
        if "perm" in self.abl:
            e("s_min_u32 s36, s36, 4\ns_add_u32 s36, s36, 1")
        e("""
s_sub_u32 s36, s36, 2
v_mov_b32 v2, %d
s_lshl_b32 s44, s36, 2
s_add_u32 s44, s44, %d
v_mov_b32 v3, s44
s_mov_b32 s50, 0
v_and_b32 v8, 15, v0
v_lshrrev_b32 v9, 4, v0
v_lshrrev_b32 v10, 2, v0
v_and_b32 v11, 3, v0
s_mov_b32 s56, 0xffff0000
v_mul_u32_u24 v12, 1152, v9
v_lshl_add_u32 v12, v8, 4, v12
v_mov_b32 v13, 0x40000000
v_cmp_gt_u32 vcc, 8, v8
v_bfe_u32 v7, v0, 3, 2
v_lshlrev_b32 v7, 5, v7
v_cndmask_b32 v13, v13, v12, vcc
v_lshl_add_u32 v7, v10, 7, v7
v_lshl_add_u32 v7, v11, 3, v7
s_waitcnt lgkmcnt(0)
s_mov_b32 s60, s4
s_mov_b32 s61, s5
s_mov_b32 s62, 4608
s_mov_b32 s63, 0x00020000
""" % (FULL, FREE))
        self.ws_srd()
        if "nocons" in self.abl:
            e("s_barrier")
            self.free_write("0x10000")
            e("s_endpgm")
        if "conssleep" in self.abl or "consspin" in self.abl:
            e("s_barrier")
            self.free_write("0x10000")
            self.wait_lds("v2", "s50", "328", "v4", sleep=(32 if "conssleep" in self.abl else 0))
            e("s_endpgm")
        if "nocolc" in self.abl:
            e("s_branch L_cs_nocol")
        e("""
s_cmp_ge_u32 s31, 26
s_cbranch_scc1 L_cs_nocol
""")
        if "nox" not in self.abl:
            e("""
buffer_load_dwordx4 v[32:35], v12, s[60:63], 0 offen
buffer_load_dwordx4 v[36:39], v12, s[60:63], 0 offen offset:256
buffer_load_dwordx4 v[40:43], v12, s[60:63], 0 offen offset:512
buffer_load_dwordx4 v[44:47], v12, s[60:63], 0 offen offset:768
buffer_load_dwordx4 v[48:51], v13, s[60:63], 0 offen offset:1024
""")
        e("s_barrier")
        e("""
v_mul_u32_u24 v14, %d, v9
v_lshrrev_b32 v15, 2, v8
v_lshl_add_u32 v14, v15, 6, v14
v_and_b32 v15, 1, v8
v_lshl_add_u32 v14, v15, 5, v14
v_bfe_u32 v15, v8, 1, 1
v_lshl_add_u32 v14, v15, 3, v14
v_add_u32 v14, %d, v14
s_lshl_b32 s44, s36, 5
v_xor_b32 v15, s44, v7
v_mul_u32_u24 v16, %d, v11
v_lshl_add_u32 v16, v9, 4, v16
v_add_u32 v16, %d, v16
s_waitcnt vmcnt(0)
""" % (XN_STRIDE, XN, XN_STRIDE, XN))
        for k in range(20):
            e("v_lshlrev_b32 v%d, 16, v%d\nv_and_b32 v%d, s56, v%d" % (64 + 2 * k, 32 + k, 65 + 2 * k, 32 + k))
        e("v_add_f32 v52, v64, v65\nv_add_f32 v53, v66, v67")
        for k in range(2, 20):
            e("v_add_f32 v52, v52, v%d\nv_add_f32 v53, v53, v%d" % (64 + 2 * k, 65 + 2 * k))
        e("v_add_f32 v52, v52, v53")
        for ror in (8, 4, 2, 1):
            e("s_nop 1\nv_add_f32_dpp v52, v52, v52 row_ror:%d row_mask:0xf bank_mask:0xf" % ror)
        e("v_mul_f32 v52, %s, v52" % f32(1.0 / 576))
        e("v_cndmask_b32 v55, 0, v52, vcc")
        e("v_mov_b32 v53, 0\nv_mov_b32 v54, 0")
        for k in range(20):
            m = 55 if k >= 16 else 52
            e("v_sub_f32 v56, v%d, v%d\nv_sub_f32 v57, v%d, v%d\nv_fmac_f32 v53, v56, v56\nv_fmac_f32 v54, v57, v57" % (64 + 2 * k, m, 65 + 2 * k, m))
        e("v_add_f32 v53, v53, v54")
        for ror in (8, 4, 2, 1):
            e("s_nop 1\nv_add_f32_dpp v53, v53, v53 row_ror:%d row_mask:0xf bank_mask:0xf" % ror)
        e("""
v_mul_f32 v53, %s, v53
v_cvt_pk_bf16_f32 v52, v52, v53
v_and_b32 v53, s56, v52
v_lshlrev_b32 v52, 16, v52
v_add_f32 v53, %s, v53
v_cvt_pk_bf16_f32 v53, v53, v53
v_and_b32 v53, s56, v53
v_sqrt_f32 v53, v53
s_nop 0
v_cvt_pk_bf16_f32 v53, v53, v53
v_and_b32 v53, s56, v53
v_rcp_f32 v54, v53
""" % (f32(1.0 / 576), f32(1e-5)))
        for k in range(20):
            a, b = 64 + 2 * k, 65 + 2 * k
            e("""
v_sub_f32 v%(a)d, v%(a)d, v52
v_sub_f32 v%(b)d, v%(b)d, v52
v_cvt_pk_bf16_f32 v56, v%(a)d, v%(b)d
v_lshlrev_b32 v%(a)d, 16, v56
v_and_b32 v%(b)d, s56, v56
v_mul_f32 v57, v%(a)d, v54
v_mul_f32 v58, v%(b)d, v54
v_fma_f32 v%(a)d, -v57, v53, v%(a)d
v_fma_f32 v%(b)d, -v58, v53, v%(b)d
v_fmac_f32 v57, v%(a)d, v54
v_fmac_f32 v58, v%(b)d, v54
v_cvt_pk_bf16_f32 v%(d)d, v57, v58
""" % dict(a=a, b=b, d=32 + k))
        for t in range(4):
            e("ds_write2_b64 v14, v[%d:%d], v[%d:%d] offset0:%d offset1:%d" % (32 + 4 * t, 33 + 4 * t, 34 + 4 * t, 35 + 4 * t, 32 * t, 32 * t + 2))
        e("s_mov_b64 exec, vcc\nds_write2_b64 v14, v[48:49], v[50:51] offset0:128 offset1:130\ns_mov_b64 exec, -1")
        e("v_mov_b32 v20, 0\nv_mov_b32 v21, 0\nv_mov_b32 v22, 0\nv_mov_b32 v23, 0\ns_mov_b32 s51, 4")
        self.stamp(0)
        L = self.lab("Lcol")
        self.label(L)
        self.wait_lds("v2", "s50", "s51", "v4")
        e("""
ds_read_b64_tr_b16 v[24:25], v15
ds_read_b64_tr_b16 v[26:27], v15 offset:2048
ds_read_b128 v[28:31], v16
v_add_u32 v15, 4096, v15
v_add_u32 v16, 64, v16
s_add_u32 s51, s51, 4
s_cmp_le_u32 s51, %d
s_waitcnt lgkmcnt(0)
v_mfma_f32_16x16x32_bf16 v[20:23], v[24:27], v[28:31], v[20:23]
s_cbranch_scc1 %s
""" % (P_K, L))
        e("""
s_lshl_b32 s45, s36, 5
s_add_u32 s45, s45, %d
v_lshlrev_b32 v17, 7, v11
v_lshl_add_u32 v17, v9, 3, v17
v_add_u32 v17, s45, v17
v_mov_b32 v18, %d
v_mov_b32 v19, 1
s_nop 2
v_cvt_pk_bf16_f32 v24, v20, v21
v_cvt_pk_bf16_f32 v25, v22, v23
s_mov_b32 exec_lo, 0x000f000f
s_mov_b32 exec_hi, 0x000f000f
ds_write_b64 v17, v[24:25]
s_mov_b64 exec, 1
ds_add_u32 v18, v19
s_mov_b64 exec, -1
s_branch L_cs_k
L_cs_nocol:
s_barrier
L_cs_k:
""" % (OB, CNT_C))
        self.stamp(1)
        if "colonly" in self.abl:
            self.free_write("0x10000")
            e("s_endpgm")
        e("""
v_and_b32 v5, 7, v0
v_lshlrev_b32 v5, 1, v5
v_xor_b32 v5, v5, v9
v_lshlrev_b32 v5, 4, v5
v_lshl_add_u32 v5, v8, 8, v5
v_and_b32 v6, 7, v10
v_lshlrev_b32 v6, 5, v6
v_lshl_add_u32 v6, v10, 8, v6
v_lshl_add_u32 v6, v11, 3, v6
s_lshl_b32 s52, s36, 2
s_add_u32 s51, s52, %d
s_lshl_b32 s53, s51, 10
""" % P_K)
        self.free_write("s51")

        def advance():
            e("s_add_u32 s51, s51, 16\ns_add_u32 s53, s53, 16384\ns_sub_u32 s54, s53, %d\ns_cmp_ge_u32 s53, %d\ns_cselect_b32 s53, s54, s53" % (RING_BYTES, RING_BYTES))

        for i in range(8):
            e("s_add_u32 s55, s51, 4")
            self.wait_lds("v2", "s50", "s55", "v4")
            r = 128 + 16 * i
            e("""
v_add_u32 v12, s53, v5
v_xor_b32 v13, 64, v12
v_xor_b32 v14, 0x80, v12
v_xor_b32 v15, 0xc0, v12
ds_read_b128 v[%d:%d], v12
ds_read_b128 v[%d:%d], v13
ds_read_b128 v[%d:%d], v14
ds_read_b128 v[%d:%d], v15
""" % (r, r + 3, r + 4, r + 7, r + 8, r + 11, r + 12, r + 15))
            advance()
            if i & 1:
                e("s_waitcnt lgkmcnt(0)")
                self.free_write("s51")
        self.stamp(2)
        e("v_mov_b32 v12, %d" % FLAG_Q)
        self.wait_lds("v12", "s54", "1", "v4", cached=False)
        e("""
v_and_b32 v12, 1, v0
v_lshlrev_b32 v12, 8, v12
v_lshl_add_u32 v12, v9, 4, v12
v_add_u32 v12, %d, v12
ds_read_b128 v[32:35], v12
ds_read_b128 v[36:39], v12 offset:64
ds_read_b128 v[40:43], v12 offset:128
ds_read_b128 v[44:47], v12 offset:192
s_mov_b32 s57, %s
s_mov_b32 s58, %s
s_waitcnt lgkmcnt(0)
""" % (QL, f32(128 ** -0.5), f32(LOG2E)))
        for s in range(4):
            for i in range(8):
                c = "0" if s == 0 else "v[%d:%d]" % (48 + 4 * i, 51 + 4 * i)
                e("v_mfma_f32_16x16x32_bf16 v[%d:%d], v[%d:%d], v[%d:%d], %s" % (48 + 4 * i, 51 + 4 * i, 128 + 16 * i + 4 * s, 131 + 16 * i + 4 * s, 32 + 4 * s, 35 + 4 * s, c))
        e("s_nop 1")
        for k in range(16):
            a, b = 48 + 2 * k, 49 + 2 * k
            e("""
v_cvt_pk_bf16_f32 v12, v%(a)d, v%(b)d
v_lshlrev_b32 v%(a)d, 16, v12
v_and_b32 v%(b)d, s56, v12
v_mul_f32 v%(a)d, s57, v%(a)d
v_mul_f32 v%(b)d, s57, v%(b)d
v_cvt_pk_bf16_f32 v12, v%(a)d, v%(b)d
v_lshlrev_b32 v%(a)d, 16, v12
v_and_b32 v%(b)d, s56, v12
""" % dict(a=a, b=b))
        e("v_max3_f32 v12, v48, v49, v50")
        for k in range(51, 79, 2):
            e("v_max3_f32 v12, v12, v%d, v%d" % (k, k + 1))
        e("""
v_max_f32 v12, v12, v79
v_mov_b32 v13, v12
s_nop 1
v_permlane16_swap_b32 v12, v13
s_nop 0
v_max_f32 v12, v12, v13
v_mov_b32 v13, v12
s_nop 1
v_permlane32_swap_b32 v12, v13
s_nop 0
v_max_f32 v12, v12, v13
""")
        for k in range(32):
            e("v_sub_f32 v%d, v%d, v12" % (48 + k, 48 + k))
        for k in range(32):
            e("v_mul_f32 v%d, s58, v%d" % (48 + k, 48 + k))
        for k in range(32):
            e("v_exp_f32 v%d, v%d" % (48 + k, 48 + k))
        e("v_add_f32 v13, v48, v49\nv_add_f32 v14, v50, v51")
        for k in range(52, 80, 2):
            e("v_add_f32 v13, v13, v%d\nv_add_f32 v14, v14, v%d" % (k, k + 1))
        for k in range(16):
            e("v_cvt_pk_bf16_f32 v%d, v%d, v%d" % (80 + k, 48 + 2 * k, 49 + 2 * k))
        e("""
v_add_f32 v13, v13, v14
v_mov_b32 v14, v13
s_nop 1
v_permlane16_swap_b32 v13, v14
s_nop 0
v_add_f32 v13, v13, v14
v_mov_b32 v14, v13
s_nop 1
v_permlane32_swap_b32 v13, v14
s_nop 0
v_add_f32 v13, v13, v14
s_lshl_b32 s54, s36, 4
s_add_u32 s54, s54, %d
v_lshlrev_b32 v14, 3, v0
v_add_u32 v14, s54, v14
s_mov_b64 exec, 3
ds_write_b64 v14, v[12:13]
s_mov_b64 exec, 1
v_mov_b32 v14, %d
v_mov_b32 v15, 1
s_waitcnt lgkmcnt(0)
ds_add_u32 v14, v15
s_mov_b64 exec, -1
""" % (STW, CNT_STAT))
        self.stamp(3)
        self.tile_ids()
        e("""
v_and_b32 v24, 1, v0
v_lshlrev_b32 v24, 9, v24
v_lshl_add_u32 v24, v9, 4, v24
s_lshl_b32 s54, s36, 10
s_add_u32 s54, s54, %d
v_add_u32 v24, s54, v24
v_mov_b32 v25, %d
v_mov_b32 v26, 1
v_lshlrev_b32 v27, 4, v0
v_add_u32 v28, %d, v27
v_lshrrev_b32 v29, 5, v0
v_lshlrev_b32 v29, 4, v29
v_add_u32 v29, %d, v29
s_lshl_b32 s49, s33, 2
s_add_u32 s49, s49, s35
s_lshl_b32 s49, s49, 10
s_add_u32 s49, s49, %d
v_mov_b32 v30, %d
""" % (OW, CNT_O, OW, SC, WS_OP, FLAG_SC))
        for i in range(4):
            fr = 128 + 32 * (i & 1)
            for h in range(2):
                e("s_add_u32 s55, s51, 4")
                if i == 3 and h == 1:
                    self.wait_lds("v30", "s54", "1", "v4", cached=False)
                    e("ds_read_b128 v[32:35], v29")
                self.wait_lds("v2", "s50", "s55", "v4")
                e("v_add_u32 v12, s53, v6")
                for t in range(8):
                    if t:
                        e("v_xor_b32 v%d, %d, v12" % (16 + t, 32 * t))
                for t in range(8):
                    e("ds_read_b64_tr_b16 v[%d:%d], v%d" % (fr + 4 * t + 2 * h, fr + 4 * t + 2 * h + 1, 16 + t if t else 12))
                advance()
            for t in range(8):
                e("s_waitcnt lgkmcnt(%d)" % (7 - t))
                c = "0" if i == 0 else "v[%d:%d]" % (96 + 4 * t, 99 + 4 * t)
                e("v_mfma_f32_16x16x32_bf16 v[%d:%d], v[%d:%d], v[%d:%d], %s" % (96 + 4 * t, 99 + 4 * t, fr + 4 * t, fr + 4 * t + 3, 80 + 4 * i, 83 + 4 * i, c))
            if i < 3:
                self.free_write("s51")
        if "nopost" in self.abl:
            self.free_write("0x10000")
            e("s_branch L_cs_end")
        e("""
s_mov_b32 exec_lo, 0x00030003
s_mov_b32 exec_hi, 0x00030003
v_mov_b32 v4, %d
""" % P_W)
        for t in range(8):
            if t == 6:
                e("s_nop 1")
            e("ds_write_b128 v24, v[%d:%d] offset:%d" % (96 + 4 * t, 99 + 4 * t, 64 * t))
        e("""
s_mov_b64 exec, 1
ds_add_rtn_u32 v16, v25, v26
ds_write_b32 v3, v4
s_mov_b64 exec, -1
s_waitcnt lgkmcnt(1)
v_readfirstlane_b32 s54, v16
s_cmp_lg_u32 s54, 3
s_cbranch_scc1 L_cs_nolast
ds_read_b128 v[96:99], v28
ds_read_b128 v[100:103], v28 offset:1024
ds_read_b128 v[104:107], v28 offset:2048
ds_read_b128 v[108:111], v28 offset:3072
s_waitcnt lgkmcnt(3)
""")
        for k in range(4):
            e("v_mul_f32 v%d, v%d, v32" % (96 + k, 96 + k))
        for w in range(1, 4):
            e("s_waitcnt lgkmcnt(%d)" % (3 - w))
            for k in range(4):
                e("v_fmac_f32 v%d, v%d, v%d" % (96 + k, 96 + 4 * w + k, 32 + w))
        e("buffer_store_dwordx4 v[96:99], v27, s[40:43], s49 offen sc1")
        self.stamp(10)
        self.label("L_cs_nolast")
        self.stamp(4)
        e("""
s_cmp_lt_u32 s31, 8
s_cbranch_scc1 L_cs_red
s_cmp_ge_u32 s31, 26
s_cbranch_scc1 L_cs_down
""")
        if "notile" in self.abl:
            e("s_branch L_cs_end")
        ringw = (P_W % RING_KB) * 1024
        e("""
v_lshlrev_b32 v20, 16, v9
v_lshl_add_u32 v20, v8, 4, v20
v_lshlrev_b32 v22, 12, v9
v_lshl_add_u32 v22, v11, 6, v22
s_lshl_b32 s46, s37, 12
s_lshl_b32 s47, s36, 8
s_add_u32 s46, s46, s47
s_add_u32 s46, s46, %d
s_lshl_b32 s47, s37, 8
s_lshr_b32 s48, s36, 1
s_lshl_b32 s48, s48, 3
s_add_u32 s47, s47, s48
s_add_u32 s47, s47, %d
s_lshl_b32 s54, s36, 13
s_add_u32 s54, s54, %d
v_add_u32 v12, s54, v7
v_xor_b32 v13, 32, v12
v_xor_b32 v14, 64, v12
v_xor_b32 v15, 0x60, v12
s_lshl_b32 s55, s36, 3
s_add_u32 s55, s55, %d
v_lshlrev_b32 v24, 8, v11
v_lshl_add_u32 v24, v9, 4, v24
s_lshl_b32 s54, s36, 10
s_add_u32 s54, s54, %d
v_add_u32 v24, s54, v24
v_mov_b32 v25, %d
v_add_u32 v28, %d, v27
v_mul_u32_u24 v29, 2304, v9
v_lshl_add_u32 v29, v8, 4, v29
s_mul_i32 s44, s37, %d
s_lshl_b32 s45, s38, 8
s_add_u32 s44, s44, s45
s_add_u32 s44, s44, %d
s_lshl_b32 s54, s36, 9
s_add_u32 s54, s54, %d
v_lshlrev_b32 v21, 7, v9
v_bfe_u32 v16, v0, 3, 1
v_lshl_add_u32 v21, v16, 6, v21
v_lshl_add_u32 v21, v11, 4, v21
v_bfe_u32 v16, v0, 2, 1
v_lshl_add_u32 v21, v16, 3, v21
v_add_u32 v21, s54, v21
v_lshlrev_b32 v23, 7, v11
v_lshl_add_u32 v23, v9, 4, v23
v_add_u32 v23, s54, v23
""" % (WS_OP, WS_ST, ringw, P_W + 8, RW, CNT_P, RW, PART_ROW, WS_PART, OB))
        sloads = ["buffer_load_dwordx2 v[232:233], v22, s[40:43], s47 offen sc1"]
        loads = ["buffer_load_dwordx4 v[%d:%d], v20, s[40:43], s46 offen offset:%d sc1" % (216 + 4 * k, 219 + 4 * k, 1024 * k) for k in range(4)]
        self.gather(sloads, [232, 233], 16, sleep=2)
        e("""
v_max_f32_dpp v16, v232, v232 quad_perm:[1,0,3,2] row_mask:0xf bank_mask:0xf
s_nop 1
v_max_f32_dpp v16, v16, v16 quad_perm:[2,3,0,1] row_mask:0xf bank_mask:0xf
v_sub_f32 v232, v232, v16
v_mul_f32 v232, s58, v232
v_exp_f32 v232, v232
s_nop 0
v_mul_f32 v16, v232, v233
s_nop 1
v_add_f32_dpp v16, v16, v16 quad_perm:[1,0,3,2] row_mask:0xf bank_mask:0xf
s_nop 1
v_add_f32_dpp v16, v16, v16 quad_perm:[2,3,0,1] row_mask:0xf bank_mask:0xf
v_rcp_f32 v16, v16
s_nop 0
v_mul_f32 v232, v232, v16
""")
        for g in self.gpos:
            self.wait_lds("v2", "s50", str(P_W + g), "v4")
            for l in loads:
                e(l)
        self.stamp(8)
        self.wait_lds("v2", "s50", "s55", "v4")
        for s in range(2):
            for q in range(4):
                r = 128 + 16 * s + 4 * q
                e("ds_read_b64_tr_b16 v[%d:%d], v%d offset:%d" % (r, r + 1, 12 + q, 4096 * s))
                e("ds_read_b64_tr_b16 v[%d:%d], v%d offset:%d" % (r + 2, r + 3, 12 + q, 4096 * s + 2048))
        Lo = self.lab("Lgo")
        Dn = self.lab("Lgod")
        e("s_mov_b32 s59, %d" % self.spin)
        self.label(Lo)
        e("s_waitcnt vmcnt(%d)" % (4 * (len(self.gpos) - 1)))
        e("v_max3_u32 v36, v216, v217, v218\nv_max3_u32 v37, v219, v220, v221")
        for i, r in enumerate(range(222, 232, 2)):
            e("v_max3_u32 v%d, v%d, v%d, v%d" % (36 + (i & 1), 36 + (i & 1), r, r + 1))
        e("v_max_u32 v36, v36, v37\nv_cmp_eq_u32 vcc, -1, v36\ns_cbranch_vccz %s" % Dn)
        e("s_mov_b64 exec, vcc")
        for l in loads:
            e(l)
        e("s_mov_b64 exec, -1\ns_sub_u32 s59, s59, 1\ns_cmp_lg_u32 s59, 0\ns_cbranch_scc1 %s" % Lo)
        self.label(Dn)
        self.stamp(5)
        self.rawstamp(7, "s59")
        for k in range(4):
            e("v_mul_f32_dpp v%d, v232, v%d quad_perm:[0,0,0,0] row_mask:0xf bank_mask:0xf" % (240 + k, 216 + k))
        for j in range(1, 4):
            for k in range(4):
                e("v_fmac_f32_dpp v%d, v232, v%d quad_perm:[%d,%d,%d,%d] row_mask:0xf bank_mask:0xf" % (240 + k, 216 + 4 * j + k, j, j, j, j))
        e("""
v_cvt_pk_bf16_f32 v244, v240, v241
v_cvt_pk_bf16_f32 v245, v242, v243
ds_write_b64 v21, v[244:245]
ds_read_b128 v[232:235], v23
ds_read_b128 v[236:239], v23 offset:64
""")
        e("s_waitcnt lgkmcnt(0)\ns_nop 0")
        for s in range(2):
            for q in range(4):
                r = 128 + 16 * s + 4 * q
                c = "0" if s == 0 else "v[%d:%d]" % (240 + 4 * q, 243 + 4 * q)
                e("v_mfma_f32_16x16x32_bf16 v[%d:%d], v[%d:%d], v[%d:%d], %s" % (240 + 4 * q, 243 + 4 * q, r, r + 3, 232 + 4 * s, 235 + 4 * s, c))
        e("""
s_mov_b32 exec_lo, 0x000f000f
s_mov_b32 exec_hi, 0x000f000f
s_nop 2
ds_write_b128 v24, v[240:243]
s_nop 0
ds_write_b128 v24, v[244:247] offset:64
s_nop 0
ds_write_b128 v24, v[248:251] offset:128
s_nop 0
ds_write_b128 v24, v[252:255] offset:192
s_mov_b64 exec, 1
ds_add_rtn_u32 v16, v25, v26
s_mov_b64 exec, -1
s_waitcnt lgkmcnt(0)
v_readfirstlane_b32 s54, v16
s_cmp_lg_u32 s54, 3
s_cbranch_scc1 L_cs_end
ds_read_b128 v[96:99], v28
ds_read_b128 v[100:103], v28 offset:1024
ds_read_b128 v[104:107], v28 offset:2048
ds_read_b128 v[108:111], v28 offset:3072
s_waitcnt lgkmcnt(2)
v_add_f32 v96, v96, v100
v_add_f32 v97, v97, v101
v_add_f32 v98, v98, v102
v_add_f32 v99, v99, v103
s_waitcnt lgkmcnt(0)
v_add_f32 v104, v104, v108
v_add_f32 v105, v105, v109
v_add_f32 v106, v106, v110
v_add_f32 v107, v107, v111
v_add_f32 v96, v96, v104
v_add_f32 v97, v97, v105
v_add_f32 v98, v98, v106
v_add_f32 v99, v99, v107
buffer_store_dwordx4 v[96:99], v29, s[40:43], s44 offen sc1
""")
        self.stamp(6)
        e("s_branch L_cs_end")
        self.label("L_cs_down")
        e("""
v_bfe_u32 v13, v0, 3, 2
v_mul_u32_u24 v14, 384, v10
v_lshl_add_u32 v14, v11, 3, v14
v_add_u32 v14, %d, v14
s_mul_i32 s54, s36, 3
v_xor_b32 v16, s54, v13
v_lshl_add_u32 v16, v16, 5, v14
s_add_u32 s54, s54, 1
v_xor_b32 v17, s54, v13
v_lshl_add_u32 v17, v17, 5, v14
s_add_u32 s54, s54, 1
v_xor_b32 v18, s54, v13
v_lshl_add_u32 v18, v18, 5, v14
v_mul_u32_u24 v12, 5462, v0
v_lshrrev_b32 v12, 16, v12
v_mul_u32_u24 v19, 12, v12
v_sub_u32 v19, v0, v19
v_mul_u32_u24 v12, 2304, v12
v_lshl_add_u32 v19, v19, 4, v12
s_mov_b32 s46, %d
s_cmp_lt_u32 s36, 2
s_cselect_b32 s46, %d, s46
s_mul_i32 s45, s36, 768
s_add_u32 s45, s45, s46
v_mul_u32_u24 v21, 192, v11
v_lshl_add_u32 v21, v9, 4, v21
v_add_u32 v21, s45, v21
v_add_u32 v22, s45, v27
s_mul_i32 s44, s37, %d
s_mul_i32 s45, s38, 768
s_add_u32 s44, s44, s45
s_mul_i32 s45, s36, 192
s_add_u32 s44, s44, s45
s_add_u32 s44, s44, %d
v_mov_b32 v12, %d
""" % (ringw, XN + 2304 - 1536, OB, PART_ROW, WS_PART, FLAG_H))
        self.wait_lds("v12", "s54", "1", "v4", cached=False)
        e("""
v_mul_u32_u24 v20, %d, v11
v_lshl_add_u32 v20, v9, 4, v20
v_add_u32 v20, %d, v20
s_mov_b32 s51, %d
""" % (H_STRIDE, XN, P_W + 12))
        for k in range(12):
            e("v_mov_b32 v%d, 0" % (240 + k))
        L = self.lab("Ldn")
        self.label(L)
        self.wait_lds("v2", "s50", "s51", "v4")
        e("ds_read_b128 v[232:235], v20")
        for q in range(3):
            r = 192 + 4 * q
            e("ds_read_b64_tr_b16 v[%d:%d], v%d" % (r, r + 1, 16 + q))
            e("ds_read_b64_tr_b16 v[%d:%d], v%d offset:6144" % (r + 2, r + 3, 16 + q))
        e("v_add_u32 v20, 64, v20")
        for q in range(3):
            e("v_add_u32 v%d, 12288, v%d" % (16 + q, 16 + q))
        e("s_add_u32 s51, s51, 12\ns_cmp_le_u32 s51, %d" % (P_W + 108))
        for q in range(3):
            r = 192 + 4 * q
            e("s_waitcnt lgkmcnt(%d)" % (4 - 2 * q))
            e("v_mfma_f32_16x16x32_bf16 v[%d:%d], v[%d:%d], v[232:235], v[%d:%d]" % (240 + 4 * q, 243 + 4 * q, r, r + 3, 240 + 4 * q, 243 + 4 * q))
        e("s_cbranch_scc1 %s" % L)
        e("""
s_mov_b32 exec_lo, 0x000f000f
s_mov_b32 exec_hi, 0x000f000f
s_nop 4
ds_write_b128 v21, v[240:243]
s_nop 0
ds_write_b128 v21, v[244:247] offset:64
s_nop 0
ds_write_b128 v21, v[248:251] offset:128
s_mov_b32 exec_lo, -1
s_mov_b32 exec_hi, 0xffff
ds_read_b128 v[240:243], v22
s_waitcnt lgkmcnt(0)
buffer_store_dwordx4 v[240:243], v19, s[40:43], s44 offen sc1
""")
        self.stamp(6)
        e("s_branch L_cs_end")
        self.label("L_cs_red")
        if "nored" in self.abl:
            e("s_branch L_cs_end")
        e("""
s_lshl_b32 s44, s30, 3
s_add_u32 s44, s44, s31
s_lshl_b32 s45, s36, 6
s_add_u32 s44, s44, s45
s_cmp_ge_u32 s44, 72
s_cbranch_scc1 L_cs_end
s_lshl_b32 s54, s44, 6
v_and_b32 v17, 7, v0
v_lshlrev_b32 v42, 3, v17
buffer_load_dwordx2 v[40:41], v42, s[60:63], s54 offen
v_bfe_u32 v16, v0, 3, 2
v_lshrrev_b32 v18, 5, v0
v_lshl_add_u32 v16, v18, 4, v16
v_mul_u32_u24 v16, %d, v16
v_lshl_add_u32 v16, v17, 4, v16
s_lshl_b32 s44, s44, 7
s_add_u32 s44, s44, %d
s_add_u32 s45, s44, %d
s_add_u32 s46, s45, %d
s_add_u32 s47, s46, %d
s_mov_b32 s57, %s
s_mov_b32 s60, s22
s_mov_b32 s61, s23
""" % (PART_ROW, WS_PART, 4 * PART_ROW, 4 * PART_ROW, 4 * PART_ROW, f32(-LOG2E)))
        self.stamp(8)
        loads = ["buffer_load_dwordx4 v[%d:%d], v16, s[40:43], s%d offen sc1" % (48 + 4 * k, 51 + 4 * k, 44 + k) for k in range(4)]
        Lp = self.lab("Lpr")
        Lq = self.lab("Lprd")
        e("s_mov_b32 s59, %d\ns_mov_b32 exec_lo, 1\ns_mov_b32 exec_hi, 1" % self.spin)
        self.label(Lp)
        e("""
buffer_load_dword v48, v16, s[40:43], s44 offen sc1
buffer_load_dword v56, v16, s[40:43], s46 offen sc1
s_waitcnt vmcnt(0)
v_min_u32 v64, v48, v56
v_cmp_ne_u32 vcc, -1, v64
s_cbranch_vccnz %s
s_sleep %d
s_sub_u32 s59, s59, 1
s_cmp_lg_u32 s59, 0
s_cbranch_scc1 %s
""" % (Lq, self.isleep, Lp))
        self.label(Lq)
        e("""
s_mov_b64 exec, -1
v_lshlrev_b32 v76, 16, v40
v_and_b32 v77, s56, v40
v_lshlrev_b32 v78, 16, v41
v_and_b32 v79, s56, v41
""")
        if self.pipe:
            self.gather_pipe(loads, list(range(48, 64)), 64, depth=self.pipe)
        else:
            self.gather(loads, list(range(48, 64)), 64, sleep=self.tsleep)
        self.stamp(5)
        self.rawstamp(7, "s59")
        for k in range(4):
            e("v_add_f32 v%d, v%d, v%d" % (64 + k, 48 + k, 52 + k))
        for k in range(4):
            e("v_add_f32 v%d, v%d, v%d" % (68 + k, 56 + k, 60 + k))
        for k in range(4):
            e("v_add_f32 v%d, v%d, v%d" % (64 + k, 64 + k, 68 + k))
        for k in range(4):
            e("v_add_f32_dpp v%d, v%d, v%d row_ror:8 row_mask:0xf bank_mask:0xf" % (64 + k, 64 + k, 64 + k))
        for k in range(4):
            e("v_mov_b32 v%d, v%d" % (68 + k, 64 + k))
        e("s_nop 0")
        for k in range(4):
            e("v_permlane16_swap_b32 v%d, v%d" % (64 + k, 68 + k))
        for k in range(4):
            e("v_add_f32 v%d, v%d, v%d" % (64 + k, 64 + k, 68 + k))
        e("""
v_cvt_pk_bf16_f32 v68, v64, v65
v_cvt_pk_bf16_f32 v69, v66, v67
v_lshlrev_b32 v64, 16, v68
v_and_b32 v65, s56, v68
v_lshlrev_b32 v66, 16, v69
v_and_b32 v67, s56, v69
""")
        for k in range(4):
            e("v_mul_f32 v%d, s57, v%d" % (72 + k, 64 + k))
        for k in range(4):
            e("v_exp_f32 v%d, v%d" % (72 + k, 72 + k))
        for k in range(4):
            e("v_add_f32 v%d, 1.0, v%d" % (72 + k, 72 + k))
        for k in range(4):
            e("v_rcp_f32 v%d, v%d" % (72 + k, 72 + k))
        for k in range(4):
            e("v_mul_f32 v%d, v%d, v%d" % (72 + k, 72 + k, 64 + k))
        e("""
v_cvt_pk_bf16_f32 v68, v72, v73
v_cvt_pk_bf16_f32 v69, v74, v75
s_nop 1
v_permlane32_swap_b32 v70, v68
v_permlane32_swap_b32 v71, v69
s_nop 0
""")
        self.o[-3] = "    v_permlane32_swap_b32 v68, v70"
        self.o[-2] = "    v_permlane32_swap_b32 v69, v71"
        e("""
v_lshlrev_b32 v72, 16, v70
v_and_b32 v73, s56, v70
v_lshlrev_b32 v74, 16, v71
v_and_b32 v75, s56, v71
""")
        for k in range(4):
            e("v_mul_f32 v%d, v%d, v%d" % (64 + k, 64 + k, 72 + k))
        e("""
v_cvt_pk_bf16_f32 v68, v64, v65
v_cvt_pk_bf16_f32 v69, v66, v67
v_lshlrev_b32 v64, 16, v68
v_and_b32 v65, s56, v68
v_lshlrev_b32 v66, 16, v69
v_and_b32 v67, s56, v69
v_add_f32 v64, v64, v76
v_add_f32 v65, v65, v77
v_add_f32 v66, v66, v78
v_add_f32 v67, v67, v79
v_cvt_pk_bf16_f32 v68, v64, v65
v_cvt_pk_bf16_f32 v69, v66, v67
s_mov_b64 exec, 0xff
buffer_store_dwordx2 v[68:69], v42, s[60:63], s54 offen%s
""" % self.outflag)
        self.stamp(6)
        self.label("L_cs_end")
        if self.stamps:
            e("s_waitcnt vmcnt(0)")
            self.stamp(9)
            self.flush_stamps([(4, 32), (10, 33), (8, 34), (5, 35), (6, 36), (9, 37), (7, 38)], wave_off=True)
            e("s_cmp_lg_u32 s36, 0\ns_cbranch_scc1 L_end")
            self.flush_stamps([(0, 11), (1, 12), (2, 13), (3, 14), (4, 8), (5, 15), (7, 22), (8, 23), (6, 24), (9, 10)])
        self.label("L_end")
        e("s_endpgm")
        self.label("L_code_end")

    def build(self):
        hdr = open("cdna_kernels/%s.s.ref" % KN).read().split("\n")
        head = []
        for l in hdr:
            if l.startswith("; @launch"):
                break
            head.append(l)
        head.append("; @launch grid=(256,1,1) block=(384,1,1) lds=%d" % LDS_TOTAL)
        head += """;
; One persistent launch, 256 workgroups (one per CU) x 6 waves.  Written with a generator script (dev/gen.py).
;   wg = 8*idx + x.  Attention: kv head 2x + (idx>>4), batch (idx>>2)&3, 512-key split idx&3 of the 2048-key window.
;   Weight role: idx<8 'Q' (64 wq columns), idx<17 gate / idx<26 up (64 columns, plus a 256x64 tile of wo),
;                idx>=26 a 288x192 tile of w_down.
;   wave 0  loader  : streams [column tile][K][V][wo / w_down tile] into a 148 KiB LDS ring with LDS-DMA, bounded window
;   wave 1  comm    : cross-workgroup hand-offs (q, gate/up -> h, softmax stats)
;   wave 2-5        : LayerNorm, MFMA GEMVs, QK^T, softmax (true max, combined over waves and splits), PV, output
; Hand-offs go through d_ws with sc1 (write-through) stores and sc1 loads.  Every hand-off word is first set to the
; sentinel 0xffffffff by a Q workgroup, which then raises its flag in d_debug.  A word is published only after its
; clear has completed and read only after all 64 flags are up; a reader retries while it still sees the sentinel.
; All spins are bounded.
""".split("\n")[:-1]
        head += ['.amdgcn_target "amdgcn-amd-amdhsa--gfx950"', ".text", ".globl %s_kernel" % KN, ".p2align 8",
                 ".type %s_kernel,@function" % KN, "%s_kernel:" % KN]
        self.prologue()
        self.loader()
        self.comm()
        self.cons()
        tail = """.section .rodata,"a"
.p2align 6
.amdhsa_kernel %s_kernel
  .amdhsa_next_free_vgpr 256
  .amdhsa_next_free_sgpr 102
  .amdhsa_accum_offset 256
  .amdhsa_group_segment_fixed_size 0
  .amdhsa_kernarg_size 96
  .amdhsa_user_sgpr_count 2
  .amdhsa_user_sgpr_kernarg_segment_ptr 1
  .amdhsa_system_sgpr_workgroup_id_x 1
  .amdhsa_float_denorm_mode_32 3
.end_amdhsa_kernel
""" % KN
        return "\n".join(head + self.o) + "\n" + tail


if __name__ == "__main__":
    import argparse
    ap = argparse.ArgumentParser()
    ap.add_argument("out")
    ap.add_argument("--stamps", action="store_true")
    ap.add_argument("--W", type=int, default=20)
    ap.add_argument("--nont", action="store_true")
    ap.add_argument("--tsleep", type=int, default=1)
    ap.add_argument("--csleep", type=int, default=0)
    ap.add_argument("--abl", type=str, default="")
    ap.add_argument("--gearly", type=int, default=-16)
    ap.add_argument("--isleep", type=int, default=4)
    ap.add_argument("--Wlate", type=int, default=0)
    ap.add_argument("--pipe", type=int, default=3)
    ap.add_argument("--adapt", action="store_true")
    ap.add_argument("--wlevels", type=str, default="16,20,24,28")
    ap.add_argument("--wthr", type=str, default="-20,20,55")
    ap.add_argument("--outflag", type=str, default="")
    ap.add_argument("--gpos", type=str, default="28")
    ap.add_argument("--Wc3", type=int, default=0)
    ap.add_argument("--Wcol", type=int, default=0)
    ap.add_argument("--ilv", type=int, default=0)
    ap.add_argument("--cpf", type=int, default=0)
    ap.add_argument("--wrole", type=str, default="20,22,22,24")
    ap.add_argument("--npre", type=int, default=6)
    ap.add_argument("--qpos", type=int, default=120)
    ap.add_argument("--qposd", type=int, default=130)
    ap.add_argument("--noprobe", action="store_true")
    ap.add_argument("--wsoff", type=lambda x: int(x, 0), default=0)
    a = ap.parse_args()
    open(a.out, "w").write(Gen(W=a.W, stamps=a.stamps, nt=not a.nont, tsleep=a.tsleep, csleep=a.csleep, abl=a.abl.split(","), gearly=a.gearly, isleep=a.isleep, wsoff=a.wsoff, qpos=a.qpos, qposd=a.qposd, probe=not a.noprobe, Wlate=a.Wlate, pipe=a.pipe, npre=a.npre, wrole=tuple(int(x) for x in a.wrole.split(",")), cpf=a.cpf, ilv=a.ilv, Wc3=a.Wc3, Wcol=a.Wcol, gpos=tuple(int(x) for x in a.gpos.split(",")), outflag=(" " + a.outflag.replace("_", " ") if a.outflag else ""), adapt=a.adapt, wlevels=tuple(int(x) for x in a.wlevels.split(",")), wthr=tuple(int(x) for x in a.wthr.split(","))).build())
```

```python
import sys, struct

KN = "recurrent_scan__sliding_block_cached__geglu_ffn__decode"

RING_KB = 148
RING_BYTES = RING_KB * 1024
AUX = RING_BYTES
XN = AUX
XN_STRIDE = 1216
H_STRIDE = 576
QL = AUX + 4864
OW = AUX + 5376
FULL = AUX + 9472
FREE = AUX + 9728
STW = AUX + 9744
SC = AUX + 9808
CNT_STAT = AUX + 9840
CNT_O = AUX + 9844
FLAG_Q = AUX + 9848
FLAG_H = AUX + 9852
FLAG_SC = AUX + 9856
CNT_P = AUX + 9860
CNT_C = AUX + 9864
FLAG_CLR = AUX + 9868
WCLS = AUX + 9872
FLAG_F = AUX + 9876
FAC = QL
OB = AUX + 9984
LDS_TOTAL = AUX + 9984 + 2048

WS_CQ = 0
CQ_STRIDE = 8192
WS_CGU = 0x8000
CGU_STRIDE = 18432
SH_BASE = 0x8000
WS_ST = 0x1A000
WS_OP = 0x1E000
WS_PART = 0x5E000
PART_ROW = 9216
WS_SIZE = 0x5E000 + 32 * 9216
RW = XN

P_K, P_V, P_W = 72, 200, 328

def f32(x):
    return "0x%08x" % struct.unpack("<I", struct.pack("<f", x))[0]

LOG2E = 1.4426950408889634


class Gen:
    def __init__(self, W=20, stamps=False, nt=True, spin=1 << 16, sleep=True, tsleep=1, csleep=0, abl=(), gearly=-16, isleep=12, wsoff=0, qpos=120, qposd=130, probe=True, Wlate=None, gpos=(28,), opipe=1, ogap=2, osleep=0, stat_i=2, fpos=312, pace=None, plevels=(20, 24, 28, 32), pslow=40, npre=6, wrole=(20, 22, 22, 24), cpf=0, ilv=0, Wc3=0, Wcol=0, pipe=3, outflag="", adapt=False, wlevels=(16, 20, 24, 28), wthr=(-20, 20, 55)):
        self.o = []
        self.n = 0
        self.W = W
        self.osleep = osleep
        self.opipe = opipe
        self.ogap = ogap
        self.fpos = fpos
        self.stat_i = stat_i
        self.pslow = pslow
        self.pace = pace
        self.plevels = plevels
        self.npre = npre
        self.wrole = wrole
        self.cpf = cpf
        self.ilv = ilv
        self.Wc3 = Wc3
        self.Wcol = Wcol
        self.gpos = gpos
        self.outflag = outflag
        self.adapt = adapt
        self.wlevels = wlevels
        self.wthr = wthr
        self.pipe = pipe
        self.Wlate = Wlate or W
        self.stamps = stamps
        self.nt = " nt" if nt else ""
        self.spin = spin
        self.sleep = sleep
        self.qpos = qpos
        self.qposd = qposd
        self.fgap = 32
        self.mbase = 4
        self.hpos = 190
        self.probe = probe
        self.gearly = gearly
        self.wsoff = wsoff
        self.isleep = isleep
        self.tsleep = tsleep
        self.abl = set(abl)
        self.csleep = csleep

    def e(self, s):
        for line in s.strip("\n").split("\n"):
            self.o.append(line if line.rstrip().endswith(":") and not line.startswith(" ") else "    " + line.strip())

    def lab(self, p="L"):
        self.n += 1
        return "%s_%d" % (p, self.n)

    def label(self, l):
        self.o.append(l + ":")

    def sreg(self, k):
        return 70 + 2 * k if k < 10 else 92 + 2 * (k - 10)

    def stamp(self, k):
        if self.stamps:
            self.e("s_memrealtime s[%d:%d]" % (self.sreg(k), self.sreg(k) + 1))

    def rawstamp(self, k, expr_reg):
        if self.stamps:
            self.e("s_sub_u32 s%d, %d, %s\ns_mov_b32 s%d, 0" % (self.sreg(k), self.spin, expr_reg, self.sreg(k) + 1))

    def flush_stamps(self, items, wave_off=False):
        if not self.stamps:
            return
        self.e("""
s_waitcnt lgkmcnt(0)
s_add_u32 s64, s26, 0x10000000
s_addc_u32 s65, s27, 0
s_mov_b32 s66, 0x100000
s_mov_b32 s67, 0x00020000
s_mul_i32 s68, s2, 512
s_mov_b64 exec, 1
""")
        if wave_off:
            self.e("s_lshl_b32 s64, s36, 6\ns_add_u32 s68, s68, s64\ns_add_u32 s64, s26, 0x10000000")
        for k, slot in items:
            self.e("""
v_mov_b32 v250, s%d
v_mov_b32 v251, s%d
v_mov_b32 v252, %d
buffer_store_dwordx2 v[250:251], v252, s[64:67], s68 offen
s_nop 1
""" % (self.sreg(k), self.sreg(k) + 1, slot * 8))

    def wait_lds(self, vaddr, sreg, thr, vtmp, cached=True, sleep=0):
        l = self.lab("Lw")
        d = self.lab("Ld")
        if cached:
            self.e("s_cmp_ge_i32 %s, %s\ns_cbranch_scc1 %s" % (sreg, thr, d))
        self.label(l)
        self.e("ds_read_b32 %s, %s\ns_waitcnt lgkmcnt(0)\nv_readfirstlane_b32 %s, %s" % (vtmp, vaddr, sreg, vtmp))
        self.e("s_cmp_ge_i32 %s, %s\ns_cbranch_scc1 %s" % (sreg, thr, d))
        sleep = sleep or self.csleep
        if sleep:
            self.e("s_sleep %d" % sleep)
        self.e("s_sub_i32 s69, s69, 1\ns_cmp_gt_i32 s69, 0\ns_cbranch_scc1 %s" % l)
        self.label(d)

    def prologue(self):
        self.e("""
s_cmp_ge_u32 s2, 256
s_cbranch_scc1 L_end
s_load_dwordx16 s[4:19], s[0:1], 0
s_load_dwordx8 s[20:27], s[0:1], 64
v_lshrrev_b32 v1, 6, v0
v_and_b32 v0, 63, v0
s_and_b32 s30, s2, 7
s_mov_b32 s69, 0x400000
v_readfirstlane_b32 s36, v1
s_lshr_b32 s31, s2, 3
s_lshr_b32 s32, s31, 4
s_lshl_b32 s33, s30, 1
s_add_u32 s32, s32, s33
s_lshr_b32 s34, s31, 2
s_and_b32 s34, s34, 3
s_and_b32 s35, s31, 3
s_lshl_b32 s33, s34, 4
s_add_u32 s33, s33, s32
s_cmp_eq_u32 s36, %d
s_cbranch_scc1 L_comm
s_cmp_lg_u32 s36, 0
s_cbranch_scc1 L_cons
""" % (4 if "perm" in self.abl else 1))

    def tile_ids(self):
        self.e("""
s_sub_u32 s38, s31, 8
s_cmp_ge_u32 s38, 9
s_cselect_b32 s37, 1, 0
s_cselect_b32 s39, 9, 0
s_sub_u32 s38, s38, s39
s_cmp_ge_u32 s31, 26
s_cbranch_scc0 %(l)s
s_sub_u32 s38, s31, 26
s_cmp_ge_u32 s38, 3
s_cselect_b32 s37, 17, 16
s_cselect_b32 s39, 3, 0
s_sub_u32 s38, s38, s39
%(l)s:
s_lshl_b32 s39, s30, 1
s_add_u32 s37, s37, s39
""" % dict(l=self.lab("Lt")))

    def loader(self):
        W = self.W
        nt = self.nt
        e = self.e
        self.stamp(0)
        e("""
s_setprio 3
PACE0
v_lshrrev_b32 v12, 3, v0
v_and_b32 v13, 7, v0
v_and_b32 v14, 6, v12
v_xor_b32 v13, v13, v14
v_lshlrev_b32 v13, 4, v13
s_lshl_b32 s46, s33, 21
s_lshl_b32 s47, s35, 17
s_add_u32 s46, s46, s47
s_add_u32 s46, s46, 0x180000
s_mov_b32 s63, 0x00020000
s_cmp_lt_u32 s31, 26
s_cbranch_scc1 L_ld_cfirst
v_lshrrev_b32 v8, 4, v0
v_and_b32 v9, 15, v0
v_lshlrev_b32 v10, 1, v8
v_xor_b32 v11, v9, v10
v_lshlrev_b32 v11, 4, v11
v_lshl_add_u32 v3, v8, 8, v11
v_xor_b32 v4, 0x80, v3
v_mov_b32 v5, v3
v_mov_b32 v6, v4
s_movk_i32 s41, 4096
s_mov_b32 s51, s46
s_mov_b32 s43, 0
s_mov_b32 s62, 0x8000000
s_mov_b32 m0, 0x12000
s_waitcnt lgkmcnt(0)
s_mov_b32 s60, s6
s_mov_b32 s61, s7
s_branch L_ld_pre
L_ld_cfirst:
s_mul_i32 s43, s30, 9
s_add_u32 s43, s43, s31
s_cmp_lt_u32 s31, 17
s_cselect_b32 s44, 8, 17
s_movk_i32 s40, 0x2400
s_cmp_lt_u32 s31, 8
s_cselect_b32 s44, s30, s44
s_cselect_b32 s40, 0x2000, s40
s_sub_u32 s43, s43, s44
s_lshl_b32 s51, s43, 7
v_mad_u32_u24 v3, v12, s40, v13
s_lshl_b32 s41, s40, 5
s_lshl_b32 s42, s40, 3
s_sub_u32 s42, s42, 1024
v_add_u32 v4, s42, v3
v_add_u32 v5, s42, v4
v_add_u32 v6, s42, v5
s_mul_i32 s62, s40, 576
s_mov_b32 m0, 0
s_cmp_lt_u32 s31, 17
s_waitcnt lgkmcnt(0)
s_cselect_b32 s60, s16, s18
s_cselect_b32 s61, s17, s19
s_cmp_lt_u32 s31, 8
s_cselect_b32 s60, s10, s60
s_cselect_b32 s61, s11, s61
L_ld_pre:
""".replace("PACE0\n", "s_memrealtime s[28:29]\n" if self.pace else ""))
        self.stamp(4)
        for k in range(self.npre):
            if k:
                e("s_add_u32 m0, m0, 4096\ns_add_u32 s51, s51, s41")
            for i, p in enumerate([3, 4, 5, 6]):
                off = " offset:%d" % (i * 1024) if i else ""
                e("buffer_load_dwordx4 v%d, s[60:63], s51 offen%s%s lds" % (p, off, nt))
        e("s_add_u32 s51, s51, s41")
        self.stamp(5)
        kvpat = """
v_lshrrev_b32 v8, 4, v0
v_and_b32 v9, 15, v0
v_lshlrev_b32 v10, 1, v8
v_xor_b32 v11, v9, v10
v_lshlrev_b32 v11, 4, v11
v_lshl_add_u32 v1, v8, 8, v11
v_xor_b32 v2, 0x80, v1
"""
        e(kvpat)
        e("""
v_mul_u32_u24 v20, 1152, v12
v_add_u32 v20, v20, v13
v_add_u32 v21, 8192, v20
v_add_u32 v22, 8192, v21
v_add_u32 v23, 8192, v22
""")
        for i in range(3):
            e("""
v_add_u32 v12, %d, v0
v_mul_u32_u24 v13, 2731, v12
v_lshrrev_b32 v13, 16, v13
v_mul_u32_u24 v14, 24, v13
v_sub_u32 v14, v12, v14
v_and_b32 v15, 6, v13
v_xor_b32 v14, v14, v15
v_mul_u32_u24 v13, 1152, v13
v_lshl_add_u32 v%d, v14, 4, v13
""" % (64 * i, 17 + i))
        e("""
v_mov_b32 v7, v17
v_add_u32 v8, 0xfffffc00, v18
v_add_u32 v9, 0xfffff800, v19
v_lshlrev_b32 v10, 2, v0
v_add_u32 v10, %d, v10
v_mov_b32 v11, %d
s_mov_b32 s55, 0
""" % (FULL, FREE))
        self.tile_ids()
        cur = [W]

        def run(pats, step_reg_or_imm, n_iter, check_free, label=None):
            n = len(pats)
            L = self.lab("Lrun")
            e("s_mov_b32 s52, %d" % n_iter)
            self.label(L)
            if check_free:
                ok = self.lab("Lok")
                sl = self.lab("Lsl")
                e("s_add_i32 s54, s53, %d\ns_cmp_le_i32 s54, s55\ns_cbranch_scc1 %s" % (n - RING_KB, ok))
                self.label(sl)
                e("""
ds_read_b128 v[12:15], v11
s_waitcnt lgkmcnt(0)
v_min_u32 v12, v12, v13
v_min3_u32 v12, v12, v14, v15
s_nop 0
v_readfirstlane_b32 s55, v12
s_cmp_le_i32 s54, s55
s_cbranch_scc1 %s
s_sub_i32 s69, s69, 1
s_cmp_gt_i32 s69, 0
s_cbranch_scc1 %s
""" % (ok, sl))
                self.label(ok)
            e("s_mov_b32 m0, s50")
            e("s_add_u32 s50, s50, %d" % (n * 1024))
            for i, p in enumerate(pats):
                off = " offset:%d" % (i * 1024) if i else ""
                e("buffer_load_dwordx4 v%d, s[60:63], s51 offen%s%s lds" % (p, off, nt))
            e("s_add_u32 s51, s51, %s" % step_reg_or_imm)
            e("s_cmp_eq_u32 s50, %d\ns_cselect_b32 s50, 0, s50" % RING_BYTES)
            e("s_add_u32 s53, s53, %d" % n)
            lv = sorted(set(self.wrole) if not self.pace else self.plevels, reverse=True)
            if len(lv) > 1:
                dn = self.lab("Lwd")
                for i, w in enumerate(lv):
                    e("s_waitcnt vmcnt(%d)" % w)
                    if i < len(lv) - 1:
                        e("s_cmp_ge_u32 s57, %d\ns_cbranch_scc1 %s" % (w, dn))
                self.label(dn)
                e("s_sub_u32 s54, s53, s57\nv_mov_b32 v16, s54\nds_write_b32 v10, v16")
            else:
                e("s_waitcnt vmcnt(%d)" % cur[0])
                e("s_sub_u32 s54, s53, %d\nv_mov_b32 v16, s54\nds_write_b32 v10, v16" % cur[0])
            e("s_sub_u32 s52, s52, 1\ns_cmp_lg_u32 s52, 0\ns_cbranch_scc1 %s" % L)

        def batch(pats, srd, soff, step):
            n = len(pats)
            e("s_mov_b32 m0, s50")
            e("s_add_u32 s50, s50, %d" % (n * 1024))
            for i, p in enumerate(pats):
                off = " offset:%d" % (i * 1024) if i else ""
                e("buffer_load_dwordx4 v%d, s[%d:%d], %s offen%s%s lds" % (p, srd, srd + 3, soff, off, nt))
            e("s_add_u32 %s, %s, %s" % (soff, soff, step))
            e("s_add_u32 s53, s53, %d" % n)
            e("s_waitcnt vmcnt(%d)" % cur[0])
            e("s_sub_u32 s54, s53, %d\nv_mov_b32 v16, s54\nds_write_b32 v10, v16" % cur[0])

        def ilv_run():
            L = self.lab("Lilv")
            M = self.lab("Lilm")
            e("s_mov_b32 s64, s6\ns_mov_b32 s65, s7\ns_mov_b32 s66, 0x8000000\ns_mov_b32 s67, 0x00020000\ns_mov_b32 s52, 9\ns_branch %s" % M)
            self.label(L)
            batch([3, 4, 5, 6], 60, "s51", "s41")
            self.label(M)
            batch([3, 4, 5, 6], 60, "s51", "s41")
            batch([1, 2, 1, 2], 64, "s46", "4096")
            e("s_sub_u32 s52, s52, 1\ns_cmp_lg_u32 s52, 0\ns_cbranch_scc1 %s" % L)
            e("s_mov_b32 s56, 23\ns_branch L_ld_k")

        def pace():
            if not self.pace:
                return
            A, B, step = self.pace
            e("s_memrealtime s[64:65]\ns_sub_u32 s54, s53, s58\ns_mul_i32 s54, s54, %d\ns_lshr_b32 s54, s54, 8\ns_waitcnt lgkmcnt(0)" % int(B * 256))
            e("s_sub_u32 s64, s64, s28\ns_sub_u32 s64, s64, s54\ns_mov_b32 s57, s59")
            lv = sorted(self.plevels)
            for k in range(1, 4):
                e("s_add_u32 s54, s59, %d\ns_cmp_ge_i32 s64, %d\ns_cselect_b32 s57, s54, s57" % (4 * k, A + k * step))
            e("s_min_u32 s57, s57, %d" % max(lv))
            if min(lv) < 20:
                e("s_cmp_lt_i32 s64, %d\ns_cselect_b32 s57, %d, s57" % (A - self.pslow, min(lv)))

        def stream(W, sfx):
            cur[0] = W
            o0 = len(self.o)
            e("s_barrier\ns_cmp_ge_u32 s31, 26\ns_cbranch_scc1 L_ld_nocol")
            e("s_mov_b32 s50, %d\ns_mov_b32 s53, %d\ns_mov_b32 s56, 32" % (4096 * self.npre, 4 * self.npre))
            run([3, 4, 5, 6], "s41", 18 - self.npre, False)
            e("s_branch L_ld_k")
            self.label("L_ld_nocol")
            e("s_mov_b32 s46, s51\ns_mov_b32 s50, %d\ns_mov_b32 s53, %d\ns_mov_b32 s56, %d" % ((P_K + 4 * self.npre) * 1024, P_K + 4 * self.npre, 32 - self.npre))
            self.label("L_ld_k")
            self.stamp(1)
            e("s_mov_b32 s60, s6\ns_mov_b32 s61, s7\ns_mov_b32 s62, 0x8000000\ns_mov_b32 s51, s46")
            if "fine" in self.abl:
                for q in range(4):
                    run([1, 2, 1, 2], "4096", 8, True)
                    self.stamp(4 + q)
                e("s_mov_b32 s60, s8\ns_mov_b32 s61, s9\ns_mov_b32 s51, s46")
                for q in range(4):
                    run([1, 2, 1, 2], "4096", 8, True)
                    if q < 3:
                        self.stamp(8 + q)
            else:
                if self.pace:
                    e("s_sub_u32 s52, s56, 24\ns_mov_b32 s56, 8")
                    self.label("L_ld_seg")
                    pace()
                    o1 = len(self.o)
                    run([1, 2, 1, 2], "4096", 8, True)
                    del self.o[o1]
                    e("s_cmp_lg_u32 s56, 5\ns_cbranch_scc1 L_ld_seg2\ns_mov_b32 s60, s8\ns_mov_b32 s61, s9\ns_sub_u32 s51, s51, 0x20000")
                    self.label("L_ld_seg2")
                    e("s_mov_b32 s52, 8\ns_sub_u32 s56, s56, 1\ns_cmp_lg_u32 s56, 0\ns_cbranch_scc1 L_ld_seg")
                    pace()
                else:
                    o1 = len(self.o)
                    run([1, 2, 1, 2], "4096", 32, True)
                    self.o[o1] = "    s_mov_b32 s52, s56"
                if self.pace:
                    pass
                else:
                    e("s_mov_b32 s60, s8\ns_mov_b32 s61, s9\ns_sub_u32 s51, s51, 0x20000")
                    run([1, 2, 1, 2], "4096", 32, True)
            self.stamp(2)
            e("""
s_cmp_ge_u32 s31, 26
s_cbranch_scc1 L_ld_down
s_cmp_lt_u32 s31, 8
s_cbranch_scc1 L_ld_drain
s_mov_b32 s60, s12
s_mov_b32 s61, s13
s_mov_b32 s62, %d
s_mul_i32 s51, s37, 294912
s_lshl_b32 s54, s38, 7
s_add_u32 s51, s51, s54
""" % (4096 * 1152))
            run([20, 21, 22, 23], "36864", 8, True)
            e("s_branch L_ld_drain")
            self.label("L_ld_down")
            e("""
s_mov_b32 s60, s20
s_mov_b32 s61, s21
s_mov_b32 s62, %d
s_sub_u32 s51, s37, 16
s_mul_i32 s51, s51, 331776
s_mul_i32 s54, s38, 384
s_add_u32 s51, s51, s54
""" % (4608 * 1152))
            if self.pace:
                e("s_mov_b32 s56, 3")
                self.label("L_ld_dseg")
                run([7, 8, 9], "9216", 12, True)
                pace()
                e("s_sub_u32 s56, s56, 1\ns_cmp_lg_u32 s56, 0\ns_cbranch_scc1 L_ld_dseg")
            else:
                run([7, 8, 9], "9216", 36, True)
            self.label("L_ld_drain")
            for w in (32, 28, 24, 20, 16, 12, 8, 4, 0):
                if w < (max(self.wrole) if not self.pace else max(self.plevels)):
                    e("s_waitcnt vmcnt(%d)\ns_sub_u32 s54, s53, %d\nv_mov_b32 v16, s54\nds_write_b32 v10, v16" % (w, w))
            self.stamp(3)
            if self.stamps:
                e("s_getreg_b32 s%d, hwreg(HW_REG_HW_ID)\ns_mov_b32 s%d, 0" % (self.sreg(12), self.sreg(12) + 1))
            self.flush_stamps([(0, 0), (1, 1), (2, 2), (3, 3), (12, 21)] + ([(4 + q, 25 + q) for q in range(7)] if ("fine" in self.abl or "first" in self.abl) else []))
            e("s_endpgm")
            for i in range(o0, len(self.o)):
                self.o[i] = self.o[i].replace("L_ld_", "L_ld%s_" % sfx)

        wg_, wq_, wd_, w3_ = self.wrole
        e("""
s_mov_b32 s57, %d
s_cmp_lt_u32 s31, 8
s_cselect_b32 s57, %d, s57
s_and_b32 s54, s43, 7
s_cmp_eq_u32 s54, 3
s_cselect_b32 s57, %d, s57
s_cmp_ge_u32 s31, 26
s_cselect_b32 s57, %d, s57
s_cselect_b32 s58, %d, 0
s_mov_b32 s59, s57
""" % (wg_, wq_, w3_, wd_, P_K))
        stream(self.W, "")

    def gather(self, loads, regs, vt, strycnt="s59", sleep=8, preissued=False, idle_sleep=0):
        e = self.e
        L = self.lab("Lg")
        D = self.lab("Lgd")
        P = self.lab("Lgp")
        n = len(loads)
        per = len(regs) // n
        assert n <= 6
        masks = [(self.mbase + 2 * k) for k in range(n)]
        e("s_mov_b32 %s, %d\ns_mov_b64 s[90:91], exec" % (strycnt, self.spin))
        if not preissued:
            for l in loads:
                e(l)
        e("s_branch %s" % P)
        self.label(L)
        for k, l in enumerate(loads):
            if n > 1:
                S = self.lab("Lgs")
                e("s_mov_b64 exec, s[%d:%d]\ns_cbranch_execz %s" % (masks[k], masks[k] + 1, S))
                e(l)
                self.label(S)
            else:
                e("s_mov_b64 exec, vcc")
                e(l)
        e("s_mov_b64 exec, s[90:91]")
        self.label(P)
        e("s_waitcnt vmcnt(0)")
        for k in range(n):
            rs = list(regs[k * per:(k + 1) * per])
            if len(rs) == 2:
                e("v_max_u32 v%d, v%d, v%d" % (vt + k, rs[0], rs[1]))
            else:
                e("v_max3_u32 v%d, v%d, v%d, v%d\nv_max_u32 v%d, v%d, v%d" % (vt + k, rs[0], rs[1], rs[2], vt + k, vt + k, rs[3]))
        if n == 1:
            e("v_cmp_eq_u32 vcc, -1, v%d" % vt)
        else:
            rs = [vt + k for k in range(n)]
            t = vt + n
            e("v_max_u32 v%d, v%d, v%d" % (t, rs[0], rs[1]))
            rs = rs[2:]
            while rs:
                if len(rs) >= 2:
                    e("v_max3_u32 v%d, v%d, v%d, v%d" % (t, t, rs[0], rs[1]))
                    rs = rs[2:]
                else:
                    e("v_max_u32 v%d, v%d, v%d" % (t, t, rs[0]))
                    rs = []
            e("v_cmp_eq_u32 vcc, -1, v%d" % t)
        e("s_cbranch_vccz %s" % D)
        if n > 1:
            for k in range(n):
                e("v_cmp_eq_u32 s[%d:%d], -1, v%d" % (masks[k], masks[k] + 1, vt + k))
        if idle_sleep:
            Z = self.lab("Lgz")
            e("s_and_b64 s[%d:%d], s[%d:%d], s[%d:%d]" % (self.mbase + 12, self.mbase + 13, masks[0], masks[0] + 1, masks[1], masks[1] + 1))
            e("s_cmp_lg_u64 s[%d:%d], s[90:91]\ns_cbranch_scc1 %s\ns_sleep %d" % (self.mbase + 12, self.mbase + 13, Z, idle_sleep))
            self.label(Z)
        if sleep:
            e("s_sleep %d" % sleep)
        e("s_sub_u32 %s, %s, 1\ns_cmp_lg_u32 %s, 0\ns_cbranch_scc1 %s" % (strycnt, strycnt, strycnt, L))
        self.label(D)

    def gather_pipe(self, loads, regs, vt, depth=3, gap=2, preissued=0):
        e = self.e
        L = self.lab("Lgq")
        D = self.lab("Lgqd")
        n = len(loads)
        e("s_mov_b32 s59, %d\ns_mov_b64 s[90:91], exec" % self.spin)
        for r in range(depth - 1 - preissued):
            for l in loads:
                e(l)
            e("s_sleep %d" % gap)
        self.label(L)
        for l in loads:
            e(l)
        e("s_mov_b64 exec, s[90:91]")
        e("s_waitcnt vmcnt(%d)" % (n * (depth - 1)))
        rs = list(regs)
        e("v_max3_u32 v%d, v%d, v%d, v%d" % (vt, rs[0], rs[1], rs[2]))
        e("v_max3_u32 v%d, v%d, v%d, v%d" % (vt + 1, rs[3], rs[4], rs[5]))
        rs = rs[6:]
        i = 0
        while rs:
            e("v_max3_u32 v%d, v%d, v%d, v%d" % (vt + i, vt + i, rs[0], rs[1]))
            rs = rs[2:]
            i ^= 1
        e("v_max_u32 v%d, v%d, v%d" % (vt, vt, vt + 1))
        e("v_cmp_eq_u32 vcc, -1, v%d" % vt)
        e("s_cbranch_vccz %s" % D)
        e("s_mov_b64 exec, vcc")
        e("s_sub_u32 s59, s59, 1\ns_cmp_lg_u32 s59, 0\ns_cbranch_scc1 %s" % L)
        e("s_mov_b64 exec, s[90:91]")
        self.label(D)

    def ws_srd(self):
        if self.wsoff:
            self.e("s_add_u32 s40, s26, %d\ns_addc_u32 s41, s27, 0" % self.wsoff)
        else:
            self.e("s_mov_b32 s40, s26\ns_mov_b32 s41, s27")
        self.e("s_mov_b32 s42, %d\ns_mov_b32 s43, 0x00020000" % WS_SIZE)

    def set_flag(self, addr, vt0, vt1):
        self.e("s_mov_b64 exec, 1\nv_mov_b32 v%d, %d\nv_mov_b32 v%d, 1\nds_write_b32 v%d, v%d\ns_mov_b64 exec, -1" % (vt0, addr, vt1, vt0, vt1))

    def comm(self):
        e = self.e
        self.label("L_comm")
        e("""
v_lshlrev_b32 v1, 3, v0
v_add_u32 v1, %d, v1
v_mov_b32 v2, 0
v_mov_b32 v3, 0
ds_write_b64 v1, v[2:3]
v_mov_b32 v4, -1
v_mov_b32 v5, -1
v_mov_b32 v6, -1
v_mov_b32 v7, -1
v_lshlrev_b32 v8, 4, v0
""" % FULL)
        self.tile_ids()
        self.ct_id()
        share = (WS_SIZE - SH_BASE) // 64
        assert share * 64 == WS_SIZE - SH_BASE and share % 128 == 0
        e("""
s_lshl_b32 s45, s33, 2
s_add_u32 s45, s45, s35
s_movk_i32 s46, %d
s_cmp_lt_u32 s31, 8
s_cselect_b32 s46, %d, s46
s_cselect_b32 s47, 0, %d
s_mul_i32 s52, s44, %d
s_lshl_b32 s44, s44, 7
s_add_u32 s44, s44, s47
v_lshrrev_b32 v9, 3, v0
v_mul_lo_u32 v9, v9, s46
v_and_b32 v10, 7, v0
v_lshl_add_u32 v9, v10, 4, v9
v_lshlrev_b32 v12, 2, v0
v_add_u32 v13, %d, v8
v_mov_b32 v23, %d
s_waitcnt lgkmcnt(0)
s_barrier
""" % (CGU_STRIDE, CQ_STRIDE, WS_CGU - 64 * 128, share, OB, CNT_C))
        if self.cpf:
            e("s_getpc_b64 s[54:55]")
            self.label("L_pc")
            e("s_sub_u32 s54, s54, L_pc-%s_kernel\ns_subb_u32 s55, s55, 0\ns_mul_i32 s56, s31, %d" % (KN, self.cpf * 128))
            for k in range(self.cpf):
                e("s_min_u32 s57, s56, L_code_end-%s_kernel-4\ns_load_dword s78, s[54:55], s57\ns_add_u32 s56, s56, 128" % KN)
        if "nocomm" in self.abl:
            e("s_waitcnt lgkmcnt(0)")
            self.set_flag(FLAG_Q, 21, 22)
            self.set_flag(FLAG_H, 21, 22)
            self.set_flag(FLAG_SC, 21, 22)
            e("s_endpgm")
        self.ws_srd()

        def c_store():
            self.wait_lds("v23", "s46", "4", "v14", cached=False, sleep=2)
            e("""
s_mov_b32 exec_hi, 0
ds_read_b128 v[16:19], v13
s_waitcnt lgkmcnt(0)
buffer_store_dwordx4 v[16:19], v9, s[40:43], s44 offen sc1
s_mov_b32 exec_hi, -1
""")
        e("""
s_mov_b32 s48, s24
s_mov_b32 s49, s25
s_mov_b32 s50, 256
s_mov_b32 s51, 0x00020000
s_cmp_ge_u32 s31, 8
s_cbranch_scc1 L_cm_noclr
s_mov_b32 exec_hi, 0
buffer_store_dwordx4 v[4:7], v9, s[40:43], s44 offen sc1
s_mov_b32 exec_hi, -1
s_add_u32 s52, s52, %d
""" % SH_BASE)
        for i in range(share // 1024):
            e("buffer_store_dwordx4 v[4:7], v8, s[40:43], s52 offen offset:%d sc1" % ((i % 4) * 1024))
            if i % 4 == 3:
                e("s_add_u32 s52, s52, 4096")
        rem = (share % 1024) // 16
        e("s_mov_b32 exec_hi, 0x%x" % ((1 << (rem - 32)) - 1))
        e("buffer_store_dwordx4 v[4:7], v8, s[40:43], s52 offen offset:%d sc1" % (((share // 1024) % 4) * 1024))
        e("""
s_lshr_b32 s46, s44, 5
v_mov_b32 v10, 1
v_mov_b32 v11, 0
s_mov_b64 exec, 1
s_waitcnt vmcnt(0)
buffer_store_dword v10, v11, s[48:51], s46 offen sc1
s_mov_b64 exec, -1
""")
        self.stamp(7)
        c_store()
        self.label("L_cm_noclr")
        e("s_mov_b32 s47, %d\ns_cmp_ge_u32 s31, 26\ns_cselect_b32 s47, %d, s47\nv_mov_b32 v15, %d" % (self.qpos - self.fgap, P_K + self.qposd - self.fgap, FULL))
        self.wait_lds("v15", "s46", "s47", "v14", cached=False, sleep=4)
        self.stamp(8)
        L = self.lab("Lfl")
        D = self.lab("Lfld")
        e("s_mov_b32 s59, %d\ns_mov_b32 s46, 1" % self.spin)
        self.label(L)
        e("""
buffer_load_dword v14, v12, s[48:51], 0 offen sc1
s_waitcnt vmcnt(0)
v_cmp_ne_u32 vcc, s46, v14
s_cbranch_vccz %s
s_sleep 16
s_sub_u32 s59, s59, 1
s_cmp_lg_u32 s59, 0
s_cbranch_scc1 %s
""" % (D, L))
        if "nofl" in self.abl:
            del self.o[-8:]
        self.label(D)
        self.stamp(0)
        self.rawstamp(9, "s59")
        e("s_cmp_lt_u32 s31, 8\ns_cbranch_scc1 L_cm_nocs\ns_cmp_ge_u32 s31, 26\ns_cbranch_scc1 L_cm_nocs")
        c_store()
        self.label("L_cm_nocs")
        if "comm_fl" in self.abl:
            self.set_flag(FLAG_Q, 21, 22)
            self.set_flag(FLAG_H, 21, 22)
            self.set_flag(FLAG_SC, 21, 22)
            e("s_endpgm")
        e("s_add_u32 s47, s47, %d" % self.fgap)
        self.wait_lds("v15", "s46", "s47", "v14", cached=False, sleep=4)
        e("""
s_mul_i32 s46, s34, %d
s_lshl_b32 s47, s32, 9
s_add_u32 s46, s46, s47
s_mov_b32 exec_hi, 0
""" % CQ_STRIDE)
        if "noq" not in self.abl:
            self.gather(["buffer_load_dwordx4 v[16:19], v8, s[40:43], s46 offen sc1"], [16, 17, 18, 19], 20)
        e("v_add_u32 v21, %d, v8\nds_write_b128 v21, v[16:19]\ns_waitcnt lgkmcnt(0)" % QL)
        self.set_flag(FLAG_Q, 21, 22)
        self.stamp(1)
        self.rawstamp(10, "s59")
        if "comm_q" in self.abl:
            self.set_flag(FLAG_H, 21, 22)
            self.set_flag(FLAG_SC, 21, 22)
            e("s_endpgm")
        e("s_cmp_lt_u32 s31, 26\ns_cbranch_scc1 L_cm_noh")
        for i in range(3):
            e("""
v_add_u32 v16, %d, v0
v_mul_u32_u24 v17, 1821, v16
v_lshrrev_b32 v17, 16, v17
v_mul_u32_u24 v18, 36, v17
v_sub_u32 v18, v16, v18
v_mul_u32_u24 v19, %d, v17
v_lshl_add_u32 v%d, v18, 4, v19
v_mul_u32_u24 v19, %d, v17
v_lshrrev_b32 v20, 2, v18
v_lshl_add_u32 v19, v20, 6, v19
v_and_b32 v20, 1, v18
v_lshl_add_u32 v19, v20, 5, v19
v_bfe_u32 v20, v18, 1, 1
v_lshl_add_u32 v19, v20, 3, v19
v_add_u32 v%d, %d, v19
""" % (64 * i, CGU_STRIDE, 24 + i, H_STRIDE, 27 + i, XN))
        e("""
v_cmp_gt_u32 vcc, 16, v0
s_nop 1
v_cndmask_b32 v26, v24, v26, vcc
v_cndmask_b32 v29, v27, v29, vcc
s_sub_u32 s46, s37, 16
s_mul_i32 s46, s46, 576
s_add_u32 s47, s46, %d
s_add_u32 s46, s46, %d
""" % (WS_CGU + 9216, WS_CGU))
        self.wait_lds("v15", "s48", str(P_K + self.hpos), "v14", cached=False, sleep=4)
        loads = []
        for i in range(3):
            loads.append("buffer_load_dwordx4 v[%d:%d], v%d, s[40:43], s46 offen sc1" % (48 + 4 * i, 51 + 4 * i, 24 + i))
            loads.append("buffer_load_dwordx4 v[%d:%d], v%d, s[40:43], s47 offen sc1" % (60 + 4 * i, 63 + 4 * i, 24 + i))
        self.gather(loads, [r for i in range(3) for r in list(range(48 + 4 * i, 52 + 4 * i)) + list(range(60 + 4 * i, 64 + 4 * i))], 72)
        c0 = -2.0 * LOG2E * 0.7978845608028654
        e("s_mov_b32 s46, %s\ns_mov_b32 s47, %s\ns_mov_b32 s56, 0xffff0000" % (f32(c0), f32(c0 * 0.044715)))
        e("v_mov_b32 v20, s46")
        for r in range(12):
            g = 48 + r
            u = 60 + r
            e("""
v_lshlrev_b32 v16, 16, v%(g)d
v_and_b32 v17, s56, v%(g)d
v_mul_f32 v18, v16, v16
v_mul_f32 v19, v17, v17
v_fma_f32 v18, v18, s47, v20
v_fma_f32 v19, v19, s47, v20
v_mul_f32 v18, v18, v16
v_mul_f32 v19, v19, v17
v_exp_f32 v18, v18
v_exp_f32 v19, v19
s_nop 0
v_add_f32 v18, 1.0, v18
v_add_f32 v19, 1.0, v19
v_rcp_f32 v18, v18
v_rcp_f32 v19, v19
s_nop 0
v_mul_f32 v18, v18, v16
v_mul_f32 v19, v19, v17
v_cvt_pk_bf16_f32 v18, v18, v19
v_lshlrev_b32 v16, 16, v%(u)d
v_and_b32 v17, s56, v%(u)d
v_and_b32 v19, s56, v18
v_lshlrev_b32 v18, 16, v18
v_mul_f32 v18, v18, v16
v_mul_f32 v19, v19, v17
v_cvt_pk_bf16_f32 v%(g)d, v18, v19
""" % dict(g=g, u=u))
        for i in range(3):
            e("ds_write2_b64 v%d, v[%d:%d], v[%d:%d] offset0:0 offset1:2" % (27 + i, 48 + 4 * i, 49 + 4 * i, 50 + 4 * i, 51 + 4 * i))
        e("s_waitcnt lgkmcnt(0)")
        self.set_flag(FLAG_H, 21, 22)
        self.label("L_cm_noh")
        e("v_mov_b32 v16, %d" % CNT_STAT)
        self.wait_lds("v16", "s46", "4", "v17", cached=False, sleep=2)
        self.stamp(2)
        e("""
v_and_b32 v16, 7, v0
v_lshlrev_b32 v16, 3, v16
v_add_u32 v17, %d, v16
ds_read_b64 v[18:19], v17
s_mov_b32 s56, %s
v_and_b32 v27, 1, v0
v_lshlrev_b32 v27, 4, v27
v_bfe_u32 v28, v0, 1, 2
v_lshl_add_u32 v27, v28, 2, v27
v_add_u32 v27, %d, v27
s_waitcnt lgkmcnt(0)
v_max_f32_dpp v20, v18, v18 row_ror:2 row_mask:0xf bank_mask:0xf
s_nop 1
v_max_f32_dpp v20, v20, v20 row_ror:4 row_mask:0xf bank_mask:0xf
v_sub_f32 v22, v18, v20
v_mul_f32 v22, s56, v22
v_exp_f32 v22, v22
s_nop 0
v_mul_f32 v21, v22, v19
ds_write_b32 v27, v22
s_nop 0
v_add_f32_dpp v21, v21, v21 row_ror:2 row_mask:0xf bank_mask:0xf
s_nop 1
v_add_f32_dpp v21, v21, v21 row_ror:4 row_mask:0xf bank_mask:0xf
s_lshl_b32 s47, s45, 6
s_add_u32 s47, s47, %d
s_mov_b64 exec, 0xff
buffer_store_dwordx2 v[20:21], v16, s[40:43], s47 offen sc1
s_mov_b64 exec, -1
s_waitcnt lgkmcnt(0)
""" % (STW, f32(LOG2E), SC, WS_ST))
        self.set_flag(FLAG_SC, 23, 24)
        self.stamp(3)
        e("s_sub_u32 s46, s31, 8\ns_cmp_ge_u32 s46, 18\ns_cbranch_scc1 L_cm_end")
        e("""
v_lshrrev_b32 v16, 4, v0
v_and_b32 v17, 15, v0
v_lshlrev_b32 v18, 12, v16
v_lshl_add_u32 v18, v17, 4, v18
s_lshl_b32 s47, s37, 8
s_add_u32 s47, s47, %d
v_lshrrev_b32 v19, 2, v0
v_lshlrev_b32 v19, 3, v19
v_add_u32 v19, %d, v19
""" % (WS_ST, FAC))
        self.wait_lds("v15", "s46", str(self.fpos), "v14", cached=False, sleep=4)
        self.gather(["buffer_load_dwordx4 v[24:27], v18, s[40:43], s47 offen sc1"], [24, 25, 26, 27], 20, sleep=8)
        e("""
v_max_f32_dpp v28, v24, v24 row_ror:4 row_mask:0xf bank_mask:0xf
v_max_f32_dpp v29, v26, v26 row_ror:4 row_mask:0xf bank_mask:0xf
s_nop 0
v_max_f32_dpp v28, v28, v28 row_ror:8 row_mask:0xf bank_mask:0xf
v_max_f32_dpp v29, v29, v29 row_ror:8 row_mask:0xf bank_mask:0xf
v_sub_f32 v28, v24, v28
v_sub_f32 v29, v26, v29
v_mul_f32 v28, s56, v28
v_mul_f32 v29, s56, v29
v_exp_f32 v28, v28
v_exp_f32 v29, v29
s_nop 0
v_mul_f32 v30, v28, v25
v_mul_f32 v31, v29, v27
s_nop 0
v_add_f32_dpp v30, v30, v30 row_ror:4 row_mask:0xf bank_mask:0xf
v_add_f32_dpp v31, v31, v31 row_ror:4 row_mask:0xf bank_mask:0xf
s_nop 0
v_add_f32_dpp v30, v30, v30 row_ror:8 row_mask:0xf bank_mask:0xf
v_add_f32_dpp v31, v31, v31 row_ror:8 row_mask:0xf bank_mask:0xf
v_rcp_f32 v30, v30
v_rcp_f32 v31, v31
s_nop 0
v_mul_f32 v28, v28, v30
v_mul_f32 v29, v29, v31
ds_write_b64 v19, v[28:29]
s_waitcnt lgkmcnt(0)
""")
        self.set_flag(FLAG_F, 23, 24)
        self.label("L_cm_end")
        self.flush_stamps([(0, 4), (1, 5), (2, 6), (3, 7), (7, 16), (8, 17), (9, 18), (10, 19)])
        e("s_endpgm")

    def tlb_warm(self):
        e = self.e
        e("""
s_lshl_b32 s52, s33, 21
s_add_u32 s52, s52, 0x180000
s_lshl_b32 s53, s35, 17
s_add_u32 s52, s52, s53
s_load_dword s78, s[6:7], s52
s_load_dword s78, s[8:9], s52
s_cmp_ge_u32 s31, 26
s_cbranch_scc1 L_tw_dn
s_cmp_lt_u32 s31, 17
s_cselect_b32 s60, s16, s18
s_cselect_b32 s61, s17, s19
s_cmp_lt_u32 s31, 8
s_cselect_b32 s60, s10, s60
s_cselect_b32 s61, s11, s61
s_mov_b32 s53, 0x180000
s_load_dword s78, s[60:61], s53
s_mov_b32 s53, 0x300000
s_load_dword s78, s[60:61], s53
s_mov_b32 s53, 0x47ff00
s_load_dword s78, s[60:61], s53
s_cbranch_scc1 L_tw_end
s_mul_i32 s53, s37, 294912
s_load_dword s78, s[12:13], s53
s_add_u32 s53, s53, 294000
s_load_dword s78, s[12:13], s53
s_branch L_tw_end
L_tw_dn:
s_sub_u32 s53, s37, 16
s_mul_i32 s53, s53, 331776
s_load_dword s78, s[20:21], s53
s_add_u32 s53, s53, 331000
s_load_dword s78, s[20:21], s53
L_tw_end:
""")

    def ct_id(self):
        self.e("""
s_lshl_b32 s44, s30, 3
s_add_u32 s44, s44, s31
s_mul_i32 s46, s30, 9
s_add_u32 s46, s46, s31
s_add_u32 s47, s46, 56
s_add_u32 s46, s46, 119
s_cmp_lt_u32 s31, 17
s_cselect_b32 s46, s47, s46
s_cmp_lt_u32 s31, 8
s_cselect_b32 s44, s44, s46
""")

    def free_write(self, sval):
        self.e("s_mov_b64 exec, 1\nv_mov_b32 v4, %s\nds_write_b32 v3, v4\ns_mov_b64 exec, -1" % sval)

    def cons(self):
        e = self.e
        self.label("L_cons")
        if self.stamps:
            for k in range(15):
                e("s_mov_b64 s[%d:%d], 0" % (self.sreg(k), self.sreg(k) + 1))
        if "perm" in self.abl:
            e("s_min_u32 s36, s36, 4\ns_add_u32 s36, s36, 1")
        e("""
s_sub_u32 s36, s36, 2
v_mov_b32 v2, %d
s_lshl_b32 s44, s36, 2
s_add_u32 s44, s44, %d
v_mov_b32 v3, s44
s_mov_b32 s50, 0
v_and_b32 v8, 15, v0
v_lshrrev_b32 v9, 4, v0
v_lshrrev_b32 v10, 2, v0
v_and_b32 v11, 3, v0
s_mov_b32 s56, 0xffff0000
v_mul_u32_u24 v12, 1152, v9
v_lshl_add_u32 v12, v8, 4, v12
v_mov_b32 v13, 0x40000000
v_cmp_gt_u32 vcc, 8, v8
v_bfe_u32 v7, v0, 3, 2
v_lshlrev_b32 v7, 5, v7
v_cndmask_b32 v13, v13, v12, vcc
v_lshl_add_u32 v7, v10, 7, v7
v_lshl_add_u32 v7, v11, 3, v7
s_waitcnt lgkmcnt(0)
s_mov_b32 s60, s4
s_mov_b32 s61, s5
s_mov_b32 s62, 4608
s_mov_b32 s63, 0x00020000
""" % (FULL, FREE))
        self.ws_srd()
        if "nocons" in self.abl:
            e("s_barrier")
            self.free_write("0x10000")
            e("s_endpgm")
        if "conssleep" in self.abl or "consspin" in self.abl:
            e("s_barrier")
            self.free_write("0x10000")
            self.wait_lds("v2", "s50", "328", "v4", sleep=(32 if "conssleep" in self.abl else 0))
            e("s_endpgm")
        if "nocolc" in self.abl:
            e("s_branch L_cs_nocol")
        e("""
s_cmp_ge_u32 s31, 26
s_cbranch_scc1 L_cs_nocol
""")
        if "nox" not in self.abl:
            e("""
buffer_load_dwordx4 v[32:35], v12, s[60:63], 0 offen
buffer_load_dwordx4 v[36:39], v12, s[60:63], 0 offen offset:256
buffer_load_dwordx4 v[40:43], v12, s[60:63], 0 offen offset:512
buffer_load_dwordx4 v[44:47], v12, s[60:63], 0 offen offset:768
buffer_load_dwordx4 v[48:51], v13, s[60:63], 0 offen offset:1024
""")
        e("s_barrier")
        e("""
v_mul_u32_u24 v14, %d, v9
v_lshrrev_b32 v15, 2, v8
v_lshl_add_u32 v14, v15, 6, v14
v_and_b32 v15, 1, v8
v_lshl_add_u32 v14, v15, 5, v14
v_bfe_u32 v15, v8, 1, 1
v_lshl_add_u32 v14, v15, 3, v14
v_add_u32 v14, %d, v14
s_lshl_b32 s44, s36, 5
v_xor_b32 v15, s44, v7
v_mul_u32_u24 v16, %d, v11
v_lshl_add_u32 v16, v9, 4, v16
v_add_u32 v16, %d, v16
s_waitcnt vmcnt(0)
""" % (XN_STRIDE, XN, XN_STRIDE, XN))
        for k in range(20):
            e("v_lshlrev_b32 v%d, 16, v%d\nv_and_b32 v%d, s56, v%d" % (64 + 2 * k, 32 + k, 65 + 2 * k, 32 + k))
        e("v_add_f32 v52, v64, v65\nv_add_f32 v53, v66, v67")
        for k in range(2, 20):
            e("v_add_f32 v52, v52, v%d\nv_add_f32 v53, v53, v%d" % (64 + 2 * k, 65 + 2 * k))
        e("v_add_f32 v52, v52, v53")
        for ror in (8, 4, 2, 1):
            e("s_nop 1\nv_add_f32_dpp v52, v52, v52 row_ror:%d row_mask:0xf bank_mask:0xf" % ror)
        e("v_mul_f32 v52, %s, v52" % f32(1.0 / 576))
        e("v_cndmask_b32 v55, 0, v52, vcc")
        e("v_mov_b32 v53, 0\nv_mov_b32 v54, 0")
        for k in range(20):
            m = 55 if k >= 16 else 52
            e("v_sub_f32 v56, v%d, v%d\nv_sub_f32 v57, v%d, v%d\nv_fmac_f32 v53, v56, v56\nv_fmac_f32 v54, v57, v57" % (64 + 2 * k, m, 65 + 2 * k, m))
        e("v_add_f32 v53, v53, v54")
        for ror in (8, 4, 2, 1):
            e("s_nop 1\nv_add_f32_dpp v53, v53, v53 row_ror:%d row_mask:0xf bank_mask:0xf" % ror)
        e("""
v_mul_f32 v53, %s, v53
v_cvt_pk_bf16_f32 v52, v52, v53
v_and_b32 v53, s56, v52
v_lshlrev_b32 v52, 16, v52
v_add_f32 v53, %s, v53
v_cvt_pk_bf16_f32 v53, v53, v53
v_and_b32 v53, s56, v53
v_sqrt_f32 v53, v53
s_nop 0
v_cvt_pk_bf16_f32 v53, v53, v53
v_and_b32 v53, s56, v53
v_rcp_f32 v54, v53
""" % (f32(1.0 / 576), f32(1e-5)))
        for k in range(20):
            a, b = 64 + 2 * k, 65 + 2 * k
            e("""
v_sub_f32 v%(a)d, v%(a)d, v52
v_sub_f32 v%(b)d, v%(b)d, v52
v_cvt_pk_bf16_f32 v56, v%(a)d, v%(b)d
v_lshlrev_b32 v%(a)d, 16, v56
v_and_b32 v%(b)d, s56, v56
v_mul_f32 v57, v%(a)d, v54
v_mul_f32 v58, v%(b)d, v54
v_fma_f32 v%(a)d, -v57, v53, v%(a)d
v_fma_f32 v%(b)d, -v58, v53, v%(b)d
v_fmac_f32 v57, v%(a)d, v54
v_fmac_f32 v58, v%(b)d, v54
v_cvt_pk_bf16_f32 v%(d)d, v57, v58
""" % dict(a=a, b=b, d=32 + k))
        for t in range(4):
            e("ds_write2_b64 v14, v[%d:%d], v[%d:%d] offset0:%d offset1:%d" % (32 + 4 * t, 33 + 4 * t, 34 + 4 * t, 35 + 4 * t, 32 * t, 32 * t + 2))
        e("s_mov_b64 exec, vcc\nds_write2_b64 v14, v[48:49], v[50:51] offset0:128 offset1:130\ns_mov_b64 exec, -1")
        e("v_mov_b32 v20, 0\nv_mov_b32 v21, 0\nv_mov_b32 v22, 0\nv_mov_b32 v23, 0\ns_mov_b32 s51, 4")
        self.stamp(0)
        L = self.lab("Lcol")
        self.label(L)
        self.wait_lds("v2", "s50", "s51", "v4")
        e("""
ds_read_b64_tr_b16 v[24:25], v15
ds_read_b64_tr_b16 v[26:27], v15 offset:2048
ds_read_b128 v[28:31], v16
v_add_u32 v15, 4096, v15
v_add_u32 v16, 64, v16
s_add_u32 s51, s51, 4
s_cmp_le_u32 s51, %d
s_waitcnt lgkmcnt(0)
v_mfma_f32_16x16x32_bf16 v[20:23], v[24:27], v[28:31], v[20:23]
s_cbranch_scc1 %s
""" % (P_K, L))
        e("""
s_lshl_b32 s45, s36, 5
s_add_u32 s45, s45, %d
v_lshlrev_b32 v17, 7, v11
v_lshl_add_u32 v17, v9, 3, v17
v_add_u32 v17, s45, v17
v_mov_b32 v18, %d
v_mov_b32 v19, 1
s_nop 2
v_cvt_pk_bf16_f32 v24, v20, v21
v_cvt_pk_bf16_f32 v25, v22, v23
s_mov_b32 exec_lo, 0x000f000f
s_mov_b32 exec_hi, 0x000f000f
ds_write_b64 v17, v[24:25]
s_mov_b64 exec, 1
ds_add_u32 v18, v19
s_mov_b64 exec, -1
s_branch L_cs_k
L_cs_nocol:
s_barrier
L_cs_k:
""" % (OB, CNT_C))
        self.stamp(1)
        if "colonly" in self.abl:
            self.free_write("0x10000")
            e("s_endpgm")
        e("""
v_and_b32 v5, 7, v0
v_lshlrev_b32 v5, 1, v5
v_xor_b32 v5, v5, v9
v_lshlrev_b32 v5, 4, v5
v_lshl_add_u32 v5, v8, 8, v5
v_and_b32 v6, 7, v10
v_lshlrev_b32 v6, 5, v6
v_lshl_add_u32 v6, v10, 8, v6
v_lshl_add_u32 v6, v11, 3, v6
s_lshl_b32 s52, s36, 2
s_add_u32 s51, s52, %d
s_lshl_b32 s53, s51, 10
""" % P_K)
        self.free_write("s51")

        def advance():
            e("s_add_u32 s51, s51, 16\ns_add_u32 s53, s53, 16384\ns_sub_u32 s54, s53, %d\ns_cmp_ge_u32 s53, %d\ns_cselect_b32 s53, s54, s53" % (RING_BYTES, RING_BYTES))

        for i in range(8):
            e("s_add_u32 s55, s51, 4")
            self.wait_lds("v2", "s50", "s55", "v4")
            r = 128 + 16 * i
            e("""
v_add_u32 v12, s53, v5
v_xor_b32 v13, 64, v12
v_xor_b32 v14, 0x80, v12
v_xor_b32 v15, 0xc0, v12
ds_read_b128 v[%d:%d], v12
ds_read_b128 v[%d:%d], v13
ds_read_b128 v[%d:%d], v14
ds_read_b128 v[%d:%d], v15
""" % (r, r + 3, r + 4, r + 7, r + 8, r + 11, r + 12, r + 15))
            advance()
            if i & 1:
                e("s_waitcnt lgkmcnt(0)")
                self.free_write("s51")
        self.stamp(2)
        e("v_mov_b32 v12, %d" % FLAG_Q)
        self.wait_lds("v12", "s54", "1", "v4", cached=False)
        e("""
v_and_b32 v12, 1, v0
v_lshlrev_b32 v12, 8, v12
v_lshl_add_u32 v12, v9, 4, v12
v_add_u32 v12, %d, v12
ds_read_b128 v[32:35], v12
ds_read_b128 v[36:39], v12 offset:64
ds_read_b128 v[40:43], v12 offset:128
ds_read_b128 v[44:47], v12 offset:192
s_mov_b32 s57, %s
s_mov_b32 s58, %s
s_waitcnt lgkmcnt(0)
""" % (QL, f32(128 ** -0.5), f32(LOG2E)))
        for s in range(4):
            for i in range(8):
                c = "0" if s == 0 else "v[%d:%d]" % (48 + 4 * i, 51 + 4 * i)
                e("v_mfma_f32_16x16x32_bf16 v[%d:%d], v[%d:%d], v[%d:%d], %s" % (48 + 4 * i, 51 + 4 * i, 128 + 16 * i + 4 * s, 131 + 16 * i + 4 * s, 32 + 4 * s, 35 + 4 * s, c))
        e("s_nop 1")
        for k in range(16):
            a, b = 48 + 2 * k, 49 + 2 * k
            e("""
v_cvt_pk_bf16_f32 v12, v%(a)d, v%(b)d
v_lshlrev_b32 v%(a)d, 16, v12
v_and_b32 v%(b)d, s56, v12
v_mul_f32 v%(a)d, s57, v%(a)d
v_mul_f32 v%(b)d, s57, v%(b)d
v_cvt_pk_bf16_f32 v12, v%(a)d, v%(b)d
v_lshlrev_b32 v%(a)d, 16, v12
v_and_b32 v%(b)d, s56, v12
""" % dict(a=a, b=b))
        e("v_max3_f32 v12, v48, v49, v50")
        for k in range(51, 79, 2):
            e("v_max3_f32 v12, v12, v%d, v%d" % (k, k + 1))
        e("""
v_max_f32 v12, v12, v79
v_mov_b32 v13, v12
s_nop 1
v_permlane16_swap_b32 v12, v13
s_nop 0
v_max_f32 v12, v12, v13
v_mov_b32 v13, v12
s_nop 1
v_permlane32_swap_b32 v12, v13
s_nop 0
v_max_f32 v12, v12, v13
""")
        for k in range(32):
            e("v_sub_f32 v%d, v%d, v12" % (48 + k, 48 + k))
        for k in range(32):
            e("v_mul_f32 v%d, s58, v%d" % (48 + k, 48 + k))
        for k in range(32):
            e("v_exp_f32 v%d, v%d" % (48 + k, 48 + k))
        e("v_add_f32 v13, v48, v49\nv_add_f32 v14, v50, v51")
        for k in range(52, 80, 2):
            e("v_add_f32 v13, v13, v%d\nv_add_f32 v14, v14, v%d" % (k, k + 1))
        for k in range(16):
            e("v_cvt_pk_bf16_f32 v%d, v%d, v%d" % (80 + k, 48 + 2 * k, 49 + 2 * k))
        e("""
v_add_f32 v13, v13, v14
v_mov_b32 v14, v13
s_nop 1
v_permlane16_swap_b32 v13, v14
s_nop 0
v_add_f32 v13, v13, v14
v_mov_b32 v14, v13
s_nop 1
v_permlane32_swap_b32 v13, v14
s_nop 0
v_add_f32 v13, v13, v14
s_lshl_b32 s54, s36, 4
s_add_u32 s54, s54, %d
v_lshlrev_b32 v14, 3, v0
v_add_u32 v14, s54, v14
s_mov_b64 exec, 3
ds_write_b64 v14, v[12:13]
s_mov_b64 exec, 1
v_mov_b32 v14, %d
v_mov_b32 v15, 1
s_waitcnt lgkmcnt(0)
ds_add_u32 v14, v15
s_mov_b64 exec, -1
""" % (STW, CNT_STAT))
        self.stamp(3)
        self.tile_ids()
        e("""
v_and_b32 v24, 1, v0
v_lshlrev_b32 v24, 9, v24
v_lshl_add_u32 v24, v9, 4, v24
s_lshl_b32 s54, s36, 10
s_add_u32 s54, s54, %d
v_add_u32 v24, s54, v24
v_mov_b32 v25, %d
v_mov_b32 v26, 1
v_lshlrev_b32 v27, 4, v0
v_add_u32 v28, %d, v27
v_lshrrev_b32 v29, 5, v0
v_lshlrev_b32 v29, 4, v29
v_add_u32 v29, %d, v29
s_lshl_b32 s49, s33, 2
s_add_u32 s49, s49, s35
s_lshl_b32 s49, s49, 10
s_add_u32 s49, s49, %d
v_mov_b32 v30, %d
""" % (OW, CNT_O, OW, SC, WS_OP, FLAG_SC))
        for i in range(4):
            fr = 128 + 32 * (i & 1)
            for h in range(2):
                e("s_add_u32 s55, s51, 4")
                if i == 3 and h == 1:
                    self.wait_lds("v30", "s54", "1", "v4", cached=False)
                    e("ds_read_b128 v[32:35], v29")
                self.wait_lds("v2", "s50", "s55", "v4")
                e("v_add_u32 v12, s53, v6")
                for t in range(8):
                    if t:
                        e("v_xor_b32 v%d, %d, v12" % (16 + t, 32 * t))
                for t in range(8):
                    e("ds_read_b64_tr_b16 v[%d:%d], v%d" % (fr + 4 * t + 2 * h, fr + 4 * t + 2 * h + 1, 16 + t if t else 12))
                advance()
            for t in range(8):
                e("s_waitcnt lgkmcnt(%d)" % (7 - t))
                c = "0" if i == 0 else "v[%d:%d]" % (96 + 4 * t, 99 + 4 * t)
                e("v_mfma_f32_16x16x32_bf16 v[%d:%d], v[%d:%d], v[%d:%d], %s" % (96 + 4 * t, 99 + 4 * t, fr + 4 * t, fr + 4 * t + 3, 80 + 4 * i, 83 + 4 * i, c))
            if i < 3:
                self.free_write("s51")
        if "nopost" in self.abl:
            self.free_write("0x10000")
            e("s_branch L_cs_end")
        e("""
s_mov_b32 exec_lo, 0x00030003
s_mov_b32 exec_hi, 0x00030003
v_mov_b32 v4, %d
""" % P_W)
        for t in range(8):
            if t == 6:
                e("s_nop 1")
            e("ds_write_b128 v24, v[%d:%d] offset:%d" % (96 + 4 * t, 99 + 4 * t, 64 * t))
        e("""
s_mov_b64 exec, 1
ds_add_rtn_u32 v16, v25, v26
ds_write_b32 v3, v4
s_mov_b64 exec, -1
s_waitcnt lgkmcnt(1)
v_readfirstlane_b32 s54, v16
s_cmp_lg_u32 s54, 3
s_cbranch_scc1 L_cs_nolast
ds_read_b128 v[96:99], v28
ds_read_b128 v[100:103], v28 offset:1024
ds_read_b128 v[104:107], v28 offset:2048
ds_read_b128 v[108:111], v28 offset:3072
s_waitcnt lgkmcnt(3)
""")
        for k in range(4):
            e("v_mul_f32 v%d, v%d, v32" % (96 + k, 96 + k))
        for w in range(1, 4):
            e("s_waitcnt lgkmcnt(%d)" % (3 - w))
            for k in range(4):
                e("v_fmac_f32 v%d, v%d, v%d" % (96 + k, 96 + 4 * w + k, 32 + w))
        e("buffer_store_dwordx4 v[96:99], v27, s[40:43], s49 offen sc1")
        self.stamp(10)
        self.label("L_cs_nolast")
        self.stamp(4)
        e("""
s_cmp_lt_u32 s31, 8
s_cbranch_scc1 L_cs_red
s_cmp_ge_u32 s31, 26
s_cbranch_scc1 L_cs_down
""")
        if "notile" in self.abl:
            e("s_branch L_cs_end")
        ringw = (P_W % RING_KB) * 1024
        e("""
v_lshlrev_b32 v20, 16, v9
v_lshl_add_u32 v20, v8, 4, v20
s_lshl_b32 s46, s37, 12
s_lshl_b32 s47, s36, 8
s_add_u32 s46, s46, s47
s_add_u32 s46, s46, %d
s_lshl_b32 s54, s36, 13
s_add_u32 s54, s54, %d
v_add_u32 v12, s54, v7
v_xor_b32 v13, 32, v12
v_xor_b32 v14, 64, v12
v_xor_b32 v15, 0x60, v12
s_lshl_b32 s55, s36, 3
s_add_u32 s55, s55, %d
v_lshlrev_b32 v24, 8, v11
v_lshl_add_u32 v24, v9, 4, v24
s_lshl_b32 s54, s36, 10
s_add_u32 s54, s54, %d
v_add_u32 v24, s54, v24
v_mov_b32 v25, %d
v_add_u32 v28, %d, v27
v_mul_u32_u24 v29, 2304, v9
v_lshl_add_u32 v29, v8, 4, v29
s_mul_i32 s44, s37, %d
s_lshl_b32 s45, s38, 8
s_add_u32 s44, s44, s45
s_add_u32 s44, s44, %d
s_lshl_b32 s54, s36, 9
s_add_u32 s54, s54, %d
v_lshlrev_b32 v21, 7, v9
v_bfe_u32 v16, v0, 3, 1
v_lshl_add_u32 v21, v16, 6, v21
v_lshl_add_u32 v21, v11, 4, v21
v_bfe_u32 v16, v0, 2, 1
v_lshl_add_u32 v21, v16, 3, v21
v_add_u32 v21, s54, v21
v_lshlrev_b32 v23, 7, v11
v_lshl_add_u32 v23, v9, 4, v23
v_add_u32 v23, s54, v23
""" % (WS_OP, ringw, P_W + 8, RW, CNT_P, RW, PART_ROW, WS_PART, OB))
        loads = ["buffer_load_dwordx4 v[%d:%d], v20, s[40:43], s46 offen offset:%d sc1" % (216 + 4 * k, 219 + 4 * k, 1024 * k) for k in range(4)]
        e("""
v_lshlrev_b32 v16, 5, v9
v_lshl_add_u32 v16, v11, 3, v16
s_lshr_b32 s47, s36, 1
s_lshl_b32 s47, s47, 2
s_add_u32 s47, s47, %d
v_add_u32 v16, s47, v16
v_mov_b32 v17, %d
""" % (FAC, FLAG_F))
        self.wait_lds("v17", "s47", "1", "v4", cached=False)
        e("ds_read_b32 v234, v16\ns_waitcnt lgkmcnt(0)")
        for g in self.gpos:
            self.wait_lds("v2", "s50", str(P_W + g), "v4")
            for l in loads:
                e(l)
        self.stamp(8)
        self.wait_lds("v2", "s50", "s55", "v4")
        for s in range(2):
            for q in range(4):
                r = 128 + 16 * s + 4 * q
                e("ds_read_b64_tr_b16 v[%d:%d], v%d offset:%d" % (r, r + 1, 12 + q, 4096 * s))
                e("ds_read_b64_tr_b16 v[%d:%d], v%d offset:%d" % (r + 2, r + 3, 12 + q, 4096 * s + 2048))
        Lo = self.lab("Lgo")
        Dn = self.lab("Lgod")

        def ocheck():
            e("v_max3_u32 v36, v216, v217, v218\nv_max3_u32 v37, v219, v220, v221")
            for i, r in enumerate(range(222, 232, 2)):
                e("v_max3_u32 v%d, v%d, v%d, v%d" % (36 + (i & 1), 36 + (i & 1), r, r + 1))
            e("v_max_u32 v36, v36, v37\nv_cmp_eq_u32 vcc, -1, v36\ns_cbranch_vccz %s" % Dn)
        e("s_mov_b32 s59, %d" % self.spin)
        e("s_waitcnt vmcnt(0)")
        ocheck()
        e("s_mov_b64 exec, vcc")
        for r in range(self.opipe - 1):
            for l in loads:
                e(l)
            e("s_sleep %d" % self.ogap)
        self.label(Lo)
        if self.osleep:
            e("s_sleep %d" % self.osleep)
        for l in loads:
            e(l)
        e("s_mov_b64 exec, -1\ns_waitcnt vmcnt(%d)" % (4 * (self.opipe - 1)))
        ocheck()
        e("s_mov_b64 exec, vcc\ns_sub_u32 s59, s59, 1\ns_cmp_lg_u32 s59, 0\ns_cbranch_scc1 %s\ns_mov_b64 exec, -1" % Lo)
        self.label(Dn)
        self.stamp(5)
        self.rawstamp(7, "s59")
        for k in range(4):
            e("v_mul_f32_dpp v%d, v234, v%d quad_perm:[0,0,0,0] row_mask:0xf bank_mask:0xf" % (240 + k, 216 + k))
        for j in range(1, 4):
            for k in range(4):
                e("v_fmac_f32_dpp v%d, v234, v%d quad_perm:[%d,%d,%d,%d] row_mask:0xf bank_mask:0xf" % (240 + k, 216 + 4 * j + k, j, j, j, j))
        e("""
v_cvt_pk_bf16_f32 v244, v240, v241
v_cvt_pk_bf16_f32 v245, v242, v243
ds_write_b64 v21, v[244:245]
ds_read_b128 v[232:235], v23
ds_read_b128 v[236:239], v23 offset:64
""")
        e("s_waitcnt lgkmcnt(0)\ns_nop 0")
        for s in range(2):
            for q in range(4):
                r = 128 + 16 * s + 4 * q
                c = "0" if s == 0 else "v[%d:%d]" % (240 + 4 * q, 243 + 4 * q)
                e("v_mfma_f32_16x16x32_bf16 v[%d:%d], v[%d:%d], v[%d:%d], %s" % (240 + 4 * q, 243 + 4 * q, r, r + 3, 232 + 4 * s, 235 + 4 * s, c))
        e("""
s_mov_b32 exec_lo, 0x000f000f
s_mov_b32 exec_hi, 0x000f000f
s_nop 2
ds_write_b128 v24, v[240:243]
s_nop 0
ds_write_b128 v24, v[244:247] offset:64
s_nop 0
ds_write_b128 v24, v[248:251] offset:128
s_nop 0
ds_write_b128 v24, v[252:255] offset:192
s_mov_b64 exec, 1
ds_add_rtn_u32 v16, v25, v26
s_mov_b64 exec, -1
s_waitcnt lgkmcnt(0)
v_readfirstlane_b32 s54, v16
s_cmp_lg_u32 s54, 3
s_cbranch_scc1 L_cs_end
ds_read_b128 v[96:99], v28
ds_read_b128 v[100:103], v28 offset:1024
ds_read_b128 v[104:107], v28 offset:2048
ds_read_b128 v[108:111], v28 offset:3072
s_waitcnt lgkmcnt(2)
v_add_f32 v96, v96, v100
v_add_f32 v97, v97, v101
v_add_f32 v98, v98, v102
v_add_f32 v99, v99, v103
s_waitcnt lgkmcnt(0)
v_add_f32 v104, v104, v108
v_add_f32 v105, v105, v109
v_add_f32 v106, v106, v110
v_add_f32 v107, v107, v111
v_add_f32 v96, v96, v104
v_add_f32 v97, v97, v105
v_add_f32 v98, v98, v106
v_add_f32 v99, v99, v107
buffer_store_dwordx4 v[96:99], v29, s[40:43], s44 offen sc1
""")
        self.stamp(6)
        e("s_branch L_cs_end")
        self.label("L_cs_down")
        e("""
v_bfe_u32 v13, v0, 3, 2
v_mul_u32_u24 v14, 384, v10
v_lshl_add_u32 v14, v11, 3, v14
v_add_u32 v14, %d, v14
s_mul_i32 s54, s36, 3
v_xor_b32 v16, s54, v13
v_lshl_add_u32 v16, v16, 5, v14
s_add_u32 s54, s54, 1
v_xor_b32 v17, s54, v13
v_lshl_add_u32 v17, v17, 5, v14
s_add_u32 s54, s54, 1
v_xor_b32 v18, s54, v13
v_lshl_add_u32 v18, v18, 5, v14
v_mul_u32_u24 v12, 5462, v0
v_lshrrev_b32 v12, 16, v12
v_mul_u32_u24 v19, 12, v12
v_sub_u32 v19, v0, v19
v_mul_u32_u24 v12, 2304, v12
v_lshl_add_u32 v19, v19, 4, v12
s_mov_b32 s46, %d
s_cmp_lt_u32 s36, 2
s_cselect_b32 s46, %d, s46
s_mul_i32 s45, s36, 768
s_add_u32 s45, s45, s46
v_mul_u32_u24 v21, 192, v11
v_lshl_add_u32 v21, v9, 4, v21
v_add_u32 v21, s45, v21
v_add_u32 v22, s45, v27
s_mul_i32 s44, s37, %d
s_mul_i32 s45, s38, 768
s_add_u32 s44, s44, s45
s_mul_i32 s45, s36, 192
s_add_u32 s44, s44, s45
s_add_u32 s44, s44, %d
v_mov_b32 v12, %d
""" % (ringw, XN + 2304 - 1536, OB, PART_ROW, WS_PART, FLAG_H))
        self.wait_lds("v12", "s54", "1", "v4", cached=False)
        e("""
v_mul_u32_u24 v20, %d, v11
v_lshl_add_u32 v20, v9, 4, v20
v_add_u32 v20, %d, v20
s_mov_b32 s51, %d
""" % (H_STRIDE, XN, P_W + 12))
        for k in range(12):
            e("v_mov_b32 v%d, 0" % (240 + k))
        L = self.lab("Ldn")
        self.label(L)
        self.wait_lds("v2", "s50", "s51", "v4")
        e("ds_read_b128 v[232:235], v20")
        for q in range(3):
            r = 192 + 4 * q
            e("ds_read_b64_tr_b16 v[%d:%d], v%d" % (r, r + 1, 16 + q))
            e("ds_read_b64_tr_b16 v[%d:%d], v%d offset:6144" % (r + 2, r + 3, 16 + q))
        e("v_add_u32 v20, 64, v20")
        for q in range(3):
            e("v_add_u32 v%d, 12288, v%d" % (16 + q, 16 + q))
        e("s_add_u32 s51, s51, 12\ns_cmp_le_u32 s51, %d" % (P_W + 108))
        for q in range(3):
            r = 192 + 4 * q
            e("s_waitcnt lgkmcnt(%d)" % (4 - 2 * q))
            e("v_mfma_f32_16x16x32_bf16 v[%d:%d], v[%d:%d], v[232:235], v[%d:%d]" % (240 + 4 * q, 243 + 4 * q, r, r + 3, 240 + 4 * q, 243 + 4 * q))
        e("s_cbranch_scc1 %s" % L)
        e("""
s_mov_b32 exec_lo, 0x000f000f
s_mov_b32 exec_hi, 0x000f000f
s_nop 4
ds_write_b128 v21, v[240:243]
s_nop 0
ds_write_b128 v21, v[244:247] offset:64
s_nop 0
ds_write_b128 v21, v[248:251] offset:128
s_mov_b32 exec_lo, -1
s_mov_b32 exec_hi, 0xffff
ds_read_b128 v[240:243], v22
s_waitcnt lgkmcnt(0)
buffer_store_dwordx4 v[240:243], v19, s[40:43], s44 offen sc1
""")
        self.stamp(6)
        e("s_branch L_cs_end")
        self.label("L_cs_red")
        if "nored" in self.abl:
            e("s_branch L_cs_end")
        e("""
s_lshl_b32 s44, s30, 3
s_add_u32 s44, s44, s31
s_lshl_b32 s45, s36, 6
s_add_u32 s44, s44, s45
s_cmp_ge_u32 s44, 72
s_cbranch_scc1 L_cs_end
s_lshl_b32 s54, s44, 6
v_and_b32 v17, 7, v0
v_lshlrev_b32 v42, 3, v17
buffer_load_dwordx2 v[40:41], v42, s[60:63], s54 offen
v_bfe_u32 v16, v0, 3, 2
v_lshrrev_b32 v18, 5, v0
v_lshl_add_u32 v16, v18, 4, v16
v_mul_u32_u24 v16, %d, v16
v_lshl_add_u32 v16, v17, 4, v16
s_lshl_b32 s44, s44, 7
s_add_u32 s44, s44, %d
s_add_u32 s45, s44, %d
s_add_u32 s46, s45, %d
s_add_u32 s47, s46, %d
s_mov_b32 s57, %s
s_mov_b32 s60, s22
s_mov_b32 s61, s23
""" % (PART_ROW, WS_PART, 4 * PART_ROW, 4 * PART_ROW, 4 * PART_ROW, f32(-LOG2E)))
        self.stamp(8)
        loads = ["buffer_load_dwordx4 v[%d:%d], v16, s[40:43], s%d offen sc1" % (48 + 4 * k, 51 + 4 * k, 44 + k) for k in range(4)]
        Lp = self.lab("Lpr")
        Lq = self.lab("Lprd")
        e("s_mov_b32 s59, %d\ns_mov_b32 exec_lo, 1\ns_mov_b32 exec_hi, 1" % self.spin)
        self.label(Lp)
        e("""
buffer_load_dword v48, v16, s[40:43], s44 offen sc1
buffer_load_dword v56, v16, s[40:43], s46 offen sc1
s_waitcnt vmcnt(0)
v_min_u32 v64, v48, v56
v_cmp_ne_u32 vcc, -1, v64
s_cbranch_vccnz %s
s_sleep %d
s_sub_u32 s59, s59, 1
s_cmp_lg_u32 s59, 0
s_cbranch_scc1 %s
""" % (Lq, self.isleep, Lp))
        self.label(Lq)
        e("""
s_mov_b64 exec, -1
v_lshlrev_b32 v76, 16, v40
v_and_b32 v77, s56, v40
v_lshlrev_b32 v78, 16, v41
v_and_b32 v79, s56, v41
""")
        if self.pipe:
            self.gather_pipe(loads, list(range(48, 64)), 64, depth=self.pipe)
        else:
            self.gather(loads, list(range(48, 64)), 64, sleep=self.tsleep)
        self.stamp(5)
        self.rawstamp(7, "s59")
        for k in range(4):
            e("v_add_f32 v%d, v%d, v%d" % (64 + k, 48 + k, 52 + k))
        for k in range(4):
            e("v_add_f32 v%d, v%d, v%d" % (68 + k, 56 + k, 60 + k))
        for k in range(4):
            e("v_add_f32 v%d, v%d, v%d" % (64 + k, 64 + k, 68 + k))
        for k in range(4):
            e("v_add_f32_dpp v%d, v%d, v%d row_ror:8 row_mask:0xf bank_mask:0xf" % (64 + k, 64 + k, 64 + k))
        for k in range(4):
            e("v_mov_b32 v%d, v%d" % (68 + k, 64 + k))
        e("s_nop 0")
        for k in range(4):
            e("v_permlane16_swap_b32 v%d, v%d" % (64 + k, 68 + k))
        for k in range(4):
            e("v_add_f32 v%d, v%d, v%d" % (64 + k, 64 + k, 68 + k))
        e("""
v_cvt_pk_bf16_f32 v68, v64, v65
v_cvt_pk_bf16_f32 v69, v66, v67
v_lshlrev_b32 v64, 16, v68
v_and_b32 v65, s56, v68
v_lshlrev_b32 v66, 16, v69
v_and_b32 v67, s56, v69
""")
        for k in range(4):
            e("v_mul_f32 v%d, s57, v%d" % (72 + k, 64 + k))
        for k in range(4):
            e("v_exp_f32 v%d, v%d" % (72 + k, 72 + k))
        for k in range(4):
            e("v_add_f32 v%d, 1.0, v%d" % (72 + k, 72 + k))
        for k in range(4):
            e("v_rcp_f32 v%d, v%d" % (72 + k, 72 + k))
        for k in range(4):
            e("v_mul_f32 v%d, v%d, v%d" % (72 + k, 72 + k, 64 + k))
        e("""
v_cvt_pk_bf16_f32 v68, v72, v73
v_cvt_pk_bf16_f32 v69, v74, v75
s_nop 1
v_permlane32_swap_b32 v70, v68
v_permlane32_swap_b32 v71, v69
s_nop 0
""")
        self.o[-3] = "    v_permlane32_swap_b32 v68, v70"
        self.o[-2] = "    v_permlane32_swap_b32 v69, v71"
        e("""
v_lshlrev_b32 v72, 16, v70
v_and_b32 v73, s56, v70
v_lshlrev_b32 v74, 16, v71
v_and_b32 v75, s56, v71
""")
        for k in range(4):
            e("v_mul_f32 v%d, v%d, v%d" % (64 + k, 64 + k, 72 + k))
        e("""
v_cvt_pk_bf16_f32 v68, v64, v65
v_cvt_pk_bf16_f32 v69, v66, v67
v_lshlrev_b32 v64, 16, v68
v_and_b32 v65, s56, v68
v_lshlrev_b32 v66, 16, v69
v_and_b32 v67, s56, v69
v_add_f32 v64, v64, v76
v_add_f32 v65, v65, v77
v_add_f32 v66, v66, v78
v_add_f32 v67, v67, v79
v_cvt_pk_bf16_f32 v68, v64, v65
v_cvt_pk_bf16_f32 v69, v66, v67
s_mov_b64 exec, 0xff
buffer_store_dwordx2 v[68:69], v42, s[60:63], s54 offen%s
""" % self.outflag)
        self.stamp(6)
        self.label("L_cs_end")
        if self.stamps:
            e("s_waitcnt vmcnt(0)")
            self.stamp(9)
            self.flush_stamps([(4, 32), (10, 33), (8, 34), (5, 35), (6, 36), (9, 37), (7, 38)], wave_off=True)
            e("s_cmp_lg_u32 s36, 0\ns_cbranch_scc1 L_end")
            self.flush_stamps([(0, 11), (1, 12), (2, 13), (3, 14), (4, 8), (5, 15), (7, 22), (8, 23), (6, 24), (9, 10)])
        self.label("L_end")
        e("s_endpgm")
        self.label("L_code_end")

    def build(self):
        hdr = open("cdna_kernels/%s.s.ref" % KN).read().split("\n")
        head = []
        for l in hdr:
            if l.startswith("; @launch"):
                break
            head.append(l)
        head.append("; @launch grid=(256,1,1) block=(384,1,1) lds=%d" % LDS_TOTAL)
        head += """;
; One persistent launch, 256 workgroups (one per CU) x 6 waves.  Written with a generator script (dev/gen.py).
;   wg = 8*idx + x.  Attention: kv head 2x + (idx>>4), batch (idx>>2)&3, 512-key split idx&3 of the 2048-key window.
;   Weight role: idx<8 'Q' (64 wq columns), idx<17 gate / idx<26 up (64 columns, plus a 256x64 tile of wo),
;                idx>=26 a 288x192 tile of w_down.
;   wave 0  loader  : streams [column tile][K][V][wo / w_down tile] into a 148 KiB LDS ring with LDS-DMA, bounded window
;   wave 1  comm    : cross-workgroup hand-offs (q, gate/up -> h, softmax stats)
;   wave 2-5        : LayerNorm, MFMA GEMVs, QK^T, softmax (true max, combined over waves and splits), PV, output
; Hand-offs go through d_ws with sc1 (write-through) stores and sc1 loads.  Every hand-off word is first set to the
; sentinel 0xffffffff by a Q workgroup, which then raises its flag in d_debug.  A word is published only after its
; clear has completed and read only after all 64 flags are up; a reader retries while it still sees the sentinel.
; All spins are bounded.
""".split("\n")[:-1]
        head += ['.amdgcn_target "amdgcn-amd-amdhsa--gfx950"', ".text", ".globl %s_kernel" % KN, ".p2align 8",
                 ".type %s_kernel,@function" % KN, "%s_kernel:" % KN]
        self.prologue()
        self.loader()
        self.comm()
        self.cons()
        tail = """.section .rodata,"a"
.p2align 6
.amdhsa_kernel %s_kernel
  .amdhsa_next_free_vgpr 256
  .amdhsa_next_free_sgpr 102
  .amdhsa_accum_offset 256
  .amdhsa_group_segment_fixed_size 0
  .amdhsa_kernarg_size 96
  .amdhsa_user_sgpr_count 2
  .amdhsa_user_sgpr_kernarg_segment_ptr 1
  .amdhsa_system_sgpr_workgroup_id_x 1
  .amdhsa_float_denorm_mode_32 3
.end_amdhsa_kernel
""" % KN
        return "\n".join(head + self.o) + "\n" + tail


if __name__ == "__main__":
    import argparse
    ap = argparse.ArgumentParser()
    ap.add_argument("out")
    ap.add_argument("--stamps", action="store_true")
    ap.add_argument("--W", type=int, default=20)
    ap.add_argument("--nont", action="store_true")
    ap.add_argument("--tsleep", type=int, default=1)
    ap.add_argument("--csleep", type=int, default=0)
    ap.add_argument("--abl", type=str, default="")
    ap.add_argument("--gearly", type=int, default=-16)
    ap.add_argument("--isleep", type=int, default=4)
    ap.add_argument("--Wlate", type=int, default=0)
    ap.add_argument("--pipe", type=int, default=3)
    ap.add_argument("--adapt", action="store_true")
    ap.add_argument("--wlevels", type=str, default="16,20,24,28")
    ap.add_argument("--wthr", type=str, default="-20,20,55")
    ap.add_argument("--outflag", type=str, default="")
    ap.add_argument("--gpos", type=str, default="32")
    ap.add_argument("--Wc3", type=int, default=0)
    ap.add_argument("--Wcol", type=int, default=0)
    ap.add_argument("--ilv", type=int, default=0)
    ap.add_argument("--cpf", type=int, default=0)
    ap.add_argument("--wrole", type=str, default="20,20,20,24")
    ap.add_argument("--npre", type=int, default=6)
    ap.add_argument("--pace", type=str, default="30,3.40,20")
    ap.add_argument("--plevels", type=str, default="20,24,28,32")
    ap.add_argument("--pslow", type=int, default=40)
    ap.add_argument("--stat_i", type=int, default=2)
    ap.add_argument("--fpos", type=int, default=312)
    ap.add_argument("--opipe", type=int, default=1)
    ap.add_argument("--ogap", type=int, default=2)
    ap.add_argument("--osleep", type=int, default=2)
    ap.add_argument("--qpos", type=int, default=120)
    ap.add_argument("--qposd", type=int, default=130)
    ap.add_argument("--noprobe", action="store_true")
    ap.add_argument("--wsoff", type=lambda x: int(x, 0), default=0)
    a = ap.parse_args()
    open(a.out, "w").write(Gen(W=a.W, stamps=a.stamps, nt=not a.nont, tsleep=a.tsleep, csleep=a.csleep, abl=a.abl.split(","), gearly=a.gearly, isleep=a.isleep, wsoff=a.wsoff, qpos=a.qpos, qposd=a.qposd, probe=not a.noprobe, Wlate=a.Wlate, pipe=a.pipe, osleep=a.osleep, opipe=a.opipe, ogap=a.ogap, fpos=a.fpos, stat_i=a.stat_i, pslow=a.pslow, plevels=tuple(int(x) for x in a.plevels.split(",")), pace=(tuple(float(x) if "." in x else int(x) for x in a.pace.split(",")) if a.pace else None), npre=a.npre, wrole=tuple(int(x) for x in a.wrole.split(",")), cpf=a.cpf, ilv=a.ilv, Wc3=a.Wc3, Wcol=a.Wcol, gpos=tuple(int(x) for x in a.gpos.split(",")), outflag=(" " + a.outflag.replace("_", " ") if a.outflag else ""), adapt=a.adapt, wlevels=tuple(int(x) for x in a.wlevels.split(",")), wthr=tuple(int(x) for x in a.wthr.split(","))).build())
```

```python
import sys, struct

KN = "recurrent_scan__sliding_block_cached__geglu_ffn__decode"

RING_KB = 148
RING_BYTES = RING_KB * 1024
AUX = RING_BYTES
XN = AUX
XN_STRIDE = 1216
H_STRIDE = 576
QL = AUX + 4864
OW = AUX + 5376
FULL = AUX + 9472
FREE = AUX + 9728
STW = AUX + 9744
SC = AUX + 9808
CNT_STAT = AUX + 9840
CNT_O = AUX + 9844
FLAG_Q = AUX + 9848
FLAG_H = AUX + 9852
FLAG_SC = AUX + 9856
CNT_P = AUX + 9860
CNT_C = AUX + 9864
FLAG_CLR = AUX + 9868
WCLS = AUX + 9872
FLAG_F = AUX + 9876
FAC = QL
OB = AUX + 9984
LDS_TOTAL = AUX + 9984 + 2048

WS_CQ = 0
CQ_STRIDE = 8192
WS_CGU = 0x8000
CGU_STRIDE = 18432
SH_BASE = 0x8000
WS_ST = 0x1A000
WS_OP = 0x1E000
WS_PART = 0x5E000
PART_ROW = 9216
WS_SIZE = 0x5E000 + 32 * 9216
RW = XN

P_K, P_V, P_W = 72, 200, 328

def f32(x):
    return "0x%08x" % struct.unpack("<I", struct.pack("<f", x))[0]

LOG2E = 1.4426950408889634


class Gen:
    def __init__(self, W=20, stamps=False, nt=True, spin=1 << 16, sleep=True, tsleep=1, csleep=0, abl=(), gearly=-16, isleep=12, wsoff=0, qpos=120, qposd=130, probe=True, Wlate=None, gpos=(28,), glob=0, opipe=1, ogap=2, osleep=0, stat_i=2, fpos=312, pace=None, plevels=(20, 24, 28, 32), pslow=40, npre=6, wrole=(20, 22, 22, 24), cpf=0, ilv=0, Wc3=0, Wcol=0, pipe=3, outflag="", adapt=False, wlevels=(16, 20, 24, 28), wthr=(-20, 20, 55)):
        self.o = []
        self.n = 0
        self.W = W
        self.glob = glob
        self.osleep = osleep
        self.opipe = opipe
        self.ogap = ogap
        self.fpos = fpos
        self.stat_i = stat_i
        self.pslow = pslow
        self.pace = pace
        self.plevels = plevels
        self.npre = npre
        self.wrole = wrole
        self.cpf = cpf
        self.ilv = ilv
        self.Wc3 = Wc3
        self.Wcol = Wcol
        self.gpos = gpos
        self.outflag = outflag
        self.adapt = adapt
        self.wlevels = wlevels
        self.wthr = wthr
        self.pipe = pipe
        self.Wlate = Wlate or W
        self.stamps = stamps
        self.nt = " nt" if nt else ""
        self.spin = spin
        self.sleep = sleep
        self.qpos = qpos
        self.qposd = qposd
        self.fgap = 32
        self.mbase = 4
        self.hpos = 190
        self.probe = probe
        self.gearly = gearly
        self.wsoff = wsoff
        self.isleep = isleep
        self.tsleep = tsleep
        self.abl = set(abl)
        self.csleep = csleep

    def e(self, s):
        for line in s.strip("\n").split("\n"):
            self.o.append(line if line.rstrip().endswith(":") and not line.startswith(" ") else "    " + line.strip())

    def lab(self, p="L"):
        self.n += 1
        return "%s_%d" % (p, self.n)

    def label(self, l):
        self.o.append(l + ":")

    def sreg(self, k):
        return 70 + 2 * k if k < 10 else 92 + 2 * (k - 10)

    def stamp(self, k):
        if self.stamps:
            self.e("s_memrealtime s[%d:%d]" % (self.sreg(k), self.sreg(k) + 1))

    def rawstamp(self, k, expr_reg):
        if self.stamps:
            self.e("s_sub_u32 s%d, %d, %s\ns_mov_b32 s%d, 0" % (self.sreg(k), self.spin, expr_reg, self.sreg(k) + 1))

    def flush_stamps(self, items, wave_off=False):
        if not self.stamps:
            return
        self.e("""
s_waitcnt lgkmcnt(0)
s_add_u32 s64, s26, 0x10000000
s_addc_u32 s65, s27, 0
s_mov_b32 s66, 0x100000
s_mov_b32 s67, 0x00020000
s_mul_i32 s68, s2, 512
s_mov_b64 exec, 1
""")
        if wave_off:
            self.e("s_lshl_b32 s64, s36, 6\ns_add_u32 s68, s68, s64\ns_add_u32 s64, s26, 0x10000000")
        for k, slot in items:
            self.e("""
v_mov_b32 v250, s%d
v_mov_b32 v251, s%d
v_mov_b32 v252, %d
buffer_store_dwordx2 v[250:251], v252, s[64:67], s68 offen
s_nop 1
""" % (self.sreg(k), self.sreg(k) + 1, slot * 8))

    def wait_lds(self, vaddr, sreg, thr, vtmp, cached=True, sleep=0):
        l = self.lab("Lw")
        d = self.lab("Ld")
        if cached:
            self.e("s_cmp_ge_i32 %s, %s\ns_cbranch_scc1 %s" % (sreg, thr, d))
        self.label(l)
        self.e("ds_read_b32 %s, %s\ns_waitcnt lgkmcnt(0)\nv_readfirstlane_b32 %s, %s" % (vtmp, vaddr, sreg, vtmp))
        self.e("s_cmp_ge_i32 %s, %s\ns_cbranch_scc1 %s" % (sreg, thr, d))
        sleep = sleep or self.csleep
        if sleep:
            self.e("s_sleep %d" % sleep)
        self.e("s_sub_i32 s69, s69, 1\ns_cmp_gt_i32 s69, 0\ns_cbranch_scc1 %s" % l)
        self.label(d)

    def prologue(self):
        self.e("""
s_cmp_ge_u32 s2, 256
s_cbranch_scc1 L_end
s_load_dwordx16 s[4:19], s[0:1], 0
s_load_dwordx8 s[20:27], s[0:1], 64
v_lshrrev_b32 v1, 6, v0
v_and_b32 v0, 63, v0
s_and_b32 s30, s2, 7
s_mov_b32 s69, 0x400000
v_readfirstlane_b32 s36, v1
s_lshr_b32 s31, s2, 3
s_lshr_b32 s32, s31, 4
s_lshl_b32 s33, s30, 1
s_add_u32 s32, s32, s33
s_lshr_b32 s34, s31, 2
s_and_b32 s34, s34, 3
s_and_b32 s35, s31, 3
s_lshl_b32 s33, s34, 4
s_add_u32 s33, s33, s32
s_cmp_eq_u32 s36, %d
s_cbranch_scc1 L_comm
s_cmp_lg_u32 s36, 0
s_cbranch_scc1 L_cons
""" % (4 if "perm" in self.abl else 1))

    def tile_ids(self):
        self.e("""
s_sub_u32 s38, s31, 8
s_cmp_ge_u32 s38, 9
s_cselect_b32 s37, 1, 0
s_cselect_b32 s39, 9, 0
s_sub_u32 s38, s38, s39
s_cmp_ge_u32 s31, 26
s_cbranch_scc0 %(l)s
s_sub_u32 s38, s31, 26
s_cmp_ge_u32 s38, 3
s_cselect_b32 s37, 17, 16
s_cselect_b32 s39, 3, 0
s_sub_u32 s38, s38, s39
%(l)s:
s_lshl_b32 s39, s30, 1
s_add_u32 s37, s37, s39
""" % dict(l=self.lab("Lt")))

    def loader(self):
        W = self.W
        nt = self.nt
        e = self.e
        self.stamp(0)
        e("""
s_setprio 3
PACE0
v_lshrrev_b32 v12, 3, v0
v_and_b32 v13, 7, v0
v_and_b32 v14, 6, v12
v_xor_b32 v13, v13, v14
v_lshlrev_b32 v13, 4, v13
s_lshl_b32 s46, s33, 21
s_lshl_b32 s47, s35, 17
s_add_u32 s46, s46, s47
s_add_u32 s46, s46, 0x180000
s_mov_b32 s63, 0x00020000
s_cmp_lt_u32 s31, 26
s_cbranch_scc1 L_ld_cfirst
v_lshrrev_b32 v8, 4, v0
v_and_b32 v9, 15, v0
v_lshlrev_b32 v10, 1, v8
v_xor_b32 v11, v9, v10
v_lshlrev_b32 v11, 4, v11
v_lshl_add_u32 v3, v8, 8, v11
v_xor_b32 v4, 0x80, v3
v_mov_b32 v5, v3
v_mov_b32 v6, v4
s_movk_i32 s41, 4096
s_mov_b32 s51, s46
s_mov_b32 s43, 0
s_mov_b32 s62, 0x8000000
s_mov_b32 m0, 0x12000
s_waitcnt lgkmcnt(0)
s_mov_b32 s60, s6
s_mov_b32 s61, s7
s_branch L_ld_pre
L_ld_cfirst:
s_mul_i32 s43, s30, 9
s_add_u32 s43, s43, s31
s_cmp_lt_u32 s31, 17
s_cselect_b32 s44, 8, 17
s_movk_i32 s40, 0x2400
s_cmp_lt_u32 s31, 8
s_cselect_b32 s44, s30, s44
s_cselect_b32 s40, 0x2000, s40
s_sub_u32 s43, s43, s44
s_lshl_b32 s51, s43, 7
v_mad_u32_u24 v3, v12, s40, v13
s_lshl_b32 s41, s40, 5
s_lshl_b32 s42, s40, 3
s_sub_u32 s42, s42, 1024
v_add_u32 v4, s42, v3
v_add_u32 v5, s42, v4
v_add_u32 v6, s42, v5
s_mul_i32 s62, s40, 576
s_mov_b32 m0, 0
s_cmp_lt_u32 s31, 17
s_waitcnt lgkmcnt(0)
s_cselect_b32 s60, s16, s18
s_cselect_b32 s61, s17, s19
s_cmp_lt_u32 s31, 8
s_cselect_b32 s60, s10, s60
s_cselect_b32 s61, s11, s61
L_ld_pre:
""".replace("PACE0\n", "s_memrealtime s[28:29]\n" if self.pace else ""))
        self.stamp(4)
        for k in range(self.npre):
            if k:
                e("s_add_u32 m0, m0, 4096\ns_add_u32 s51, s51, s41")
            for i, p in enumerate([3, 4, 5, 6]):
                off = " offset:%d" % (i * 1024) if i else ""
                e("buffer_load_dwordx4 v%d, s[60:63], s51 offen%s%s lds" % (p, off, nt))
        e("s_add_u32 s51, s51, s41")
        self.stamp(5)
        kvpat = """
v_lshrrev_b32 v8, 4, v0
v_and_b32 v9, 15, v0
v_lshlrev_b32 v10, 1, v8
v_xor_b32 v11, v9, v10
v_lshlrev_b32 v11, 4, v11
v_lshl_add_u32 v1, v8, 8, v11
v_xor_b32 v2, 0x80, v1
"""
        e(kvpat)
        e("""
v_mul_u32_u24 v20, 1152, v12
v_add_u32 v20, v20, v13
v_add_u32 v21, 8192, v20
v_add_u32 v22, 8192, v21
v_add_u32 v23, 8192, v22
""")
        for i in range(3):
            e("""
v_add_u32 v12, %d, v0
v_mul_u32_u24 v13, 2731, v12
v_lshrrev_b32 v13, 16, v13
v_mul_u32_u24 v14, 24, v13
v_sub_u32 v14, v12, v14
v_and_b32 v15, 6, v13
v_xor_b32 v14, v14, v15
v_mul_u32_u24 v13, 1152, v13
v_lshl_add_u32 v%d, v14, 4, v13
""" % (64 * i, 17 + i))
        e("""
v_mov_b32 v7, v17
v_add_u32 v8, 0xfffffc00, v18
v_add_u32 v9, 0xfffff800, v19
v_lshlrev_b32 v10, 2, v0
v_add_u32 v10, %d, v10
v_mov_b32 v11, %d
v_mov_b32 v18, %d
s_mov_b32 s55, 0
""" % (FULL, FREE, WCLS))
        self.tile_ids()
        cur = [W]

        def run(pats, step_reg_or_imm, n_iter, check_free, label=None):
            n = len(pats)
            L = self.lab("Lrun")
            e("s_mov_b32 s52, %d" % n_iter)
            self.label(L)
            if check_free:
                ok = self.lab("Lok")
                sl = self.lab("Lsl")
                e("s_add_i32 s54, s53, %d\ns_cmp_le_i32 s54, s55\ns_cbranch_scc1 %s" % (n - RING_KB, ok))
                self.label(sl)
                e("""
ds_read_b128 v[12:15], v11
s_waitcnt lgkmcnt(0)
v_min_u32 v12, v12, v13
v_min3_u32 v12, v12, v14, v15
s_nop 0
v_readfirstlane_b32 s55, v12
s_cmp_le_i32 s54, s55
s_cbranch_scc1 %s
s_sub_i32 s69, s69, 1
s_cmp_gt_i32 s69, 0
s_cbranch_scc1 %s
""" % (ok, sl))
                self.label(ok)
            e("s_mov_b32 m0, s50")
            e("s_add_u32 s50, s50, %d" % (n * 1024))
            for i, p in enumerate(pats):
                off = " offset:%d" % (i * 1024) if i else ""
                e("buffer_load_dwordx4 v%d, s[60:63], s51 offen%s%s lds" % (p, off, nt))
            e("s_add_u32 s51, s51, %s" % step_reg_or_imm)
            e("s_cmp_eq_u32 s50, %d\ns_cselect_b32 s50, 0, s50" % RING_BYTES)
            e("s_add_u32 s53, s53, %d" % n)
            lv = sorted(set(self.wrole) if not self.pace else self.plevels, reverse=True)
            if len(lv) > 1:
                dn = self.lab("Lwd")
                for i, w in enumerate(lv):
                    e("s_waitcnt vmcnt(%d)" % w)
                    if i < len(lv) - 1:
                        e("s_cmp_ge_u32 s57, %d\ns_cbranch_scc1 %s" % (w, dn))
                self.label(dn)
                e("s_sub_u32 s54, s53, s57\nv_mov_b32 v16, s54\nds_write_b32 v10, v16")
            else:
                e("s_waitcnt vmcnt(%d)" % cur[0])
                e("s_sub_u32 s54, s53, %d\nv_mov_b32 v16, s54\nds_write_b32 v10, v16" % cur[0])
            e("s_sub_u32 s52, s52, 1\ns_cmp_lg_u32 s52, 0\ns_cbranch_scc1 %s" % L)

        def batch(pats, srd, soff, step):
            n = len(pats)
            e("s_mov_b32 m0, s50")
            e("s_add_u32 s50, s50, %d" % (n * 1024))
            for i, p in enumerate(pats):
                off = " offset:%d" % (i * 1024) if i else ""
                e("buffer_load_dwordx4 v%d, s[%d:%d], %s offen%s%s lds" % (p, srd, srd + 3, soff, off, nt))
            e("s_add_u32 %s, %s, %s" % (soff, soff, step))
            e("s_add_u32 s53, s53, %d" % n)
            e("s_waitcnt vmcnt(%d)" % cur[0])
            e("s_sub_u32 s54, s53, %d\nv_mov_b32 v16, s54\nds_write_b32 v10, v16" % cur[0])

        def ilv_run():
            L = self.lab("Lilv")
            M = self.lab("Lilm")
            e("s_mov_b32 s64, s6\ns_mov_b32 s65, s7\ns_mov_b32 s66, 0x8000000\ns_mov_b32 s67, 0x00020000\ns_mov_b32 s52, 9\ns_branch %s" % M)
            self.label(L)
            batch([3, 4, 5, 6], 60, "s51", "s41")
            self.label(M)
            batch([3, 4, 5, 6], 60, "s51", "s41")
            batch([1, 2, 1, 2], 64, "s46", "4096")
            e("s_sub_u32 s52, s52, 1\ns_cmp_lg_u32 s52, 0\ns_cbranch_scc1 %s" % L)
            e("s_mov_b32 s56, 23\ns_branch L_ld_k")

        def pace():
            if not self.pace:
                return
            A, B, step = self.pace
            if self.glob:
                e("ds_read_b32 v17, v18")
            e("s_memrealtime s[64:65]\ns_sub_u32 s54, s53, s58\ns_mul_i32 s54, s54, %d\ns_lshr_b32 s54, s54, 8\ns_waitcnt lgkmcnt(0)" % int(B * 256))
            if self.glob:
                e("v_readfirstlane_b32 s65, v17\ns_cmp_lg_u32 s65, 0\ns_cselect_b32 s28, s65, s28")
            e("s_sub_u32 s64, s64, s28\ns_sub_u32 s64, s64, s54\ns_mov_b32 s57, s59")
            lv = sorted(self.plevels)
            for k in range(1, 4):
                e("s_add_u32 s54, s59, %d\ns_cmp_ge_i32 s64, %d\ns_cselect_b32 s57, s54, s57" % (4 * k, A + k * step))
            e("s_min_u32 s57, s57, %d" % max(lv))
            if min(lv) < 20:
                e("s_cmp_lt_i32 s64, %d\ns_cselect_b32 s57, %d, s57" % (A - self.pslow, min(lv)))

        def stream(W, sfx):
            cur[0] = W
            o0 = len(self.o)
            e("s_barrier\ns_cmp_ge_u32 s31, 26\ns_cbranch_scc1 L_ld_nocol")
            e("s_mov_b32 s50, %d\ns_mov_b32 s53, %d\ns_mov_b32 s56, 32" % (4096 * self.npre, 4 * self.npre))
            run([3, 4, 5, 6], "s41", 18 - self.npre, False)
            e("s_branch L_ld_k")
            self.label("L_ld_nocol")
            e("s_mov_b32 s46, s51\ns_mov_b32 s50, %d\ns_mov_b32 s53, %d\ns_mov_b32 s56, %d" % ((P_K + 4 * self.npre) * 1024, P_K + 4 * self.npre, 32 - self.npre))
            self.label("L_ld_k")
            self.stamp(1)
            e("s_mov_b32 s60, s6\ns_mov_b32 s61, s7\ns_mov_b32 s62, 0x8000000\ns_mov_b32 s51, s46")
            if "fine" in self.abl:
                for q in range(4):
                    run([1, 2, 1, 2], "4096", 8, True)
                    self.stamp(4 + q)
                e("s_mov_b32 s60, s8\ns_mov_b32 s61, s9\ns_mov_b32 s51, s46")
                for q in range(4):
                    run([1, 2, 1, 2], "4096", 8, True)
                    if q < 3:
                        self.stamp(8 + q)
            else:
                if self.pace:
                    e("s_sub_u32 s52, s56, 24\ns_mov_b32 s56, 8")
                    self.label("L_ld_seg")
                    pace()
                    o1 = len(self.o)
                    run([1, 2, 1, 2], "4096", 8, True)
                    del self.o[o1]
                    e("s_cmp_lg_u32 s56, 5\ns_cbranch_scc1 L_ld_seg2\ns_mov_b32 s60, s8\ns_mov_b32 s61, s9\ns_sub_u32 s51, s51, 0x20000")
                    self.label("L_ld_seg2")
                    e("s_mov_b32 s52, 8\ns_sub_u32 s56, s56, 1\ns_cmp_lg_u32 s56, 0\ns_cbranch_scc1 L_ld_seg")
                    pace()
                else:
                    o1 = len(self.o)
                    run([1, 2, 1, 2], "4096", 32, True)
                    self.o[o1] = "    s_mov_b32 s52, s56"
                if self.pace:
                    pass
                else:
                    e("s_mov_b32 s60, s8\ns_mov_b32 s61, s9\ns_sub_u32 s51, s51, 0x20000")
                    run([1, 2, 1, 2], "4096", 32, True)
            self.stamp(2)
            e("""
s_cmp_ge_u32 s31, 26
s_cbranch_scc1 L_ld_down
s_cmp_lt_u32 s31, 8
s_cbranch_scc1 L_ld_drain
s_mov_b32 s60, s12
s_mov_b32 s61, s13
s_mov_b32 s62, %d
s_mul_i32 s51, s37, 294912
s_lshl_b32 s54, s38, 7
s_add_u32 s51, s51, s54
""" % (4096 * 1152))
            run([20, 21, 22, 23], "36864", 8, True)
            e("s_branch L_ld_drain")
            self.label("L_ld_down")
            e("""
s_mov_b32 s60, s20
s_mov_b32 s61, s21
s_mov_b32 s62, %d
s_sub_u32 s51, s37, 16
s_mul_i32 s51, s51, 331776
s_mul_i32 s54, s38, 384
s_add_u32 s51, s51, s54
""" % (4608 * 1152))
            if self.pace:
                e("s_mov_b32 s56, 3")
                self.label("L_ld_dseg")
                run([7, 8, 9], "9216", 12, True)
                pace()
                e("s_sub_u32 s56, s56, 1\ns_cmp_lg_u32 s56, 0\ns_cbranch_scc1 L_ld_dseg")
            else:
                run([7, 8, 9], "9216", 36, True)
            self.label("L_ld_drain")
            for w in (32, 28, 24, 20, 16, 12, 8, 4, 0):
                if w < (max(self.wrole) if not self.pace else max(self.plevels)):
                    e("s_waitcnt vmcnt(%d)\ns_sub_u32 s54, s53, %d\nv_mov_b32 v16, s54\nds_write_b32 v10, v16" % (w, w))
            self.stamp(3)
            if self.stamps:
                e("s_getreg_b32 s%d, hwreg(HW_REG_HW_ID)\ns_mov_b32 s%d, 0" % (self.sreg(12), self.sreg(12) + 1))
            self.flush_stamps([(0, 0), (1, 1), (2, 2), (3, 3), (12, 21)] + ([(4 + q, 25 + q) for q in range(7)] if ("fine" in self.abl or "first" in self.abl) else []))
            e("s_endpgm")
            for i in range(o0, len(self.o)):
                self.o[i] = self.o[i].replace("L_ld_", "L_ld%s_" % sfx)

        wg_, wq_, wd_, w3_ = self.wrole
        e("""
s_mov_b32 s57, %d
s_cmp_lt_u32 s31, 8
s_cselect_b32 s57, %d, s57
s_and_b32 s54, s43, 7
s_cmp_eq_u32 s54, 3
s_cselect_b32 s57, %d, s57
s_cmp_ge_u32 s31, 26
s_cselect_b32 s57, %d, s57
s_cselect_b32 s58, %d, 0
s_mov_b32 s59, s57
""" % (wg_, wq_, w3_, wd_, P_K))
        stream(self.W, "")

    def gather(self, loads, regs, vt, strycnt="s59", sleep=8, preissued=False, idle_sleep=0):
        e = self.e
        L = self.lab("Lg")
        D = self.lab("Lgd")
        P = self.lab("Lgp")
        n = len(loads)
        per = len(regs) // n
        assert n <= 6
        masks = [(self.mbase + 2 * k) for k in range(n)]
        e("s_mov_b32 %s, %d\ns_mov_b64 s[90:91], exec" % (strycnt, self.spin))
        if not preissued:
            for l in loads:
                e(l)
        e("s_branch %s" % P)
        self.label(L)
        for k, l in enumerate(loads):
            if n > 1:
                S = self.lab("Lgs")
                e("s_mov_b64 exec, s[%d:%d]\ns_cbranch_execz %s" % (masks[k], masks[k] + 1, S))
                e(l)
                self.label(S)
            else:
                e("s_mov_b64 exec, vcc")
                e(l)
        e("s_mov_b64 exec, s[90:91]")
        self.label(P)
        e("s_waitcnt vmcnt(0)")
        for k in range(n):
            rs = list(regs[k * per:(k + 1) * per])
            if len(rs) == 2:
                e("v_max_u32 v%d, v%d, v%d" % (vt + k, rs[0], rs[1]))
            else:
                e("v_max3_u32 v%d, v%d, v%d, v%d\nv_max_u32 v%d, v%d, v%d" % (vt + k, rs[0], rs[1], rs[2], vt + k, vt + k, rs[3]))
        if n == 1:
            e("v_cmp_eq_u32 vcc, -1, v%d" % vt)
        else:
            rs = [vt + k for k in range(n)]
            t = vt + n
            e("v_max_u32 v%d, v%d, v%d" % (t, rs[0], rs[1]))
            rs = rs[2:]
            while rs:
                if len(rs) >= 2:
                    e("v_max3_u32 v%d, v%d, v%d, v%d" % (t, t, rs[0], rs[1]))
                    rs = rs[2:]
                else:
                    e("v_max_u32 v%d, v%d, v%d" % (t, t, rs[0]))
                    rs = []
            e("v_cmp_eq_u32 vcc, -1, v%d" % t)
        e("s_cbranch_vccz %s" % D)
        if n > 1:
            for k in range(n):
                e("v_cmp_eq_u32 s[%d:%d], -1, v%d" % (masks[k], masks[k] + 1, vt + k))
        if idle_sleep:
            Z = self.lab("Lgz")
            e("s_and_b64 s[%d:%d], s[%d:%d], s[%d:%d]" % (self.mbase + 12, self.mbase + 13, masks[0], masks[0] + 1, masks[1], masks[1] + 1))
            e("s_cmp_lg_u64 s[%d:%d], s[90:91]\ns_cbranch_scc1 %s\ns_sleep %d" % (self.mbase + 12, self.mbase + 13, Z, idle_sleep))
            self.label(Z)
        if sleep:
            e("s_sleep %d" % sleep)
        e("s_sub_u32 %s, %s, 1\ns_cmp_lg_u32 %s, 0\ns_cbranch_scc1 %s" % (strycnt, strycnt, strycnt, L))
        self.label(D)

    def gather_pipe(self, loads, regs, vt, depth=3, gap=2, preissued=0):
        e = self.e
        L = self.lab("Lgq")
        D = self.lab("Lgqd")
        n = len(loads)
        e("s_mov_b32 s59, %d\ns_mov_b64 s[90:91], exec" % self.spin)
        for r in range(depth - 1 - preissued):
            for l in loads:
                e(l)
            e("s_sleep %d" % gap)
        self.label(L)
        for l in loads:
            e(l)
        e("s_mov_b64 exec, s[90:91]")
        e("s_waitcnt vmcnt(%d)" % (n * (depth - 1)))
        rs = list(regs)
        e("v_max3_u32 v%d, v%d, v%d, v%d" % (vt, rs[0], rs[1], rs[2]))
        e("v_max3_u32 v%d, v%d, v%d, v%d" % (vt + 1, rs[3], rs[4], rs[5]))
        rs = rs[6:]
        i = 0
        while rs:
            e("v_max3_u32 v%d, v%d, v%d, v%d" % (vt + i, vt + i, rs[0], rs[1]))
            rs = rs[2:]
            i ^= 1
        e("v_max_u32 v%d, v%d, v%d" % (vt, vt, vt + 1))
        e("v_cmp_eq_u32 vcc, -1, v%d" % vt)
        e("s_cbranch_vccz %s" % D)
        e("s_mov_b64 exec, vcc")
        e("s_sub_u32 s59, s59, 1\ns_cmp_lg_u32 s59, 0\ns_cbranch_scc1 %s" % L)
        e("s_mov_b64 exec, s[90:91]")
        self.label(D)

    def ws_srd(self):
        if self.wsoff:
            self.e("s_add_u32 s40, s26, %d\ns_addc_u32 s41, s27, 0" % self.wsoff)
        else:
            self.e("s_mov_b32 s40, s26\ns_mov_b32 s41, s27")
        self.e("s_mov_b32 s42, %d\ns_mov_b32 s43, 0x00020000" % WS_SIZE)

    def set_flag(self, addr, vt0, vt1):
        self.e("s_mov_b64 exec, 1\nv_mov_b32 v%d, %d\nv_mov_b32 v%d, 1\nds_write_b32 v%d, v%d\ns_mov_b64 exec, -1" % (vt0, addr, vt1, vt0, vt1))

    def comm(self):
        e = self.e
        self.label("L_comm")
        e("""
v_lshlrev_b32 v1, 3, v0
v_add_u32 v1, %d, v1
v_mov_b32 v2, 0
v_mov_b32 v3, 0
ds_write_b64 v1, v[2:3]
v_mov_b32 v4, -1
v_mov_b32 v5, -1
v_mov_b32 v6, -1
v_mov_b32 v7, -1
v_lshlrev_b32 v8, 4, v0
""" % FULL)
        if self.glob:
            e("s_memrealtime s[28:29]")
        self.tile_ids()
        self.ct_id()
        share = (WS_SIZE - SH_BASE) // 64
        assert share * 64 == WS_SIZE - SH_BASE and share % 128 == 0
        e("""
s_lshl_b32 s45, s33, 2
s_add_u32 s45, s45, s35
s_movk_i32 s46, %d
s_cmp_lt_u32 s31, 8
s_cselect_b32 s46, %d, s46
s_cselect_b32 s47, 0, %d
s_mul_i32 s52, s44, %d
s_lshl_b32 s44, s44, 7
s_add_u32 s44, s44, s47
v_lshrrev_b32 v9, 3, v0
v_mul_lo_u32 v9, v9, s46
v_and_b32 v10, 7, v0
v_lshl_add_u32 v9, v10, 4, v9
v_lshlrev_b32 v12, 2, v0
v_add_u32 v13, %d, v8
v_mov_b32 v23, %d
s_waitcnt lgkmcnt(0)
s_barrier
""" % (CGU_STRIDE, CQ_STRIDE, WS_CGU - 64 * 128, share, OB, CNT_C))
        if self.cpf:
            e("s_getpc_b64 s[54:55]")
            self.label("L_pc")
            e("s_sub_u32 s54, s54, L_pc-%s_kernel\ns_subb_u32 s55, s55, 0\ns_mul_i32 s56, s31, %d" % (KN, self.cpf * 128))
            for k in range(self.cpf):
                e("s_min_u32 s57, s56, L_code_end-%s_kernel-4\ns_load_dword s78, s[54:55], s57\ns_add_u32 s56, s56, 128" % KN)
        if "nocomm" in self.abl:
            e("s_waitcnt lgkmcnt(0)")
            self.set_flag(FLAG_Q, 21, 22)
            self.set_flag(FLAG_H, 21, 22)
            self.set_flag(FLAG_SC, 21, 22)
            e("s_endpgm")
        self.ws_srd()

        def c_store():
            self.wait_lds("v23", "s46", "4", "v14", cached=False, sleep=2)
            e("""
s_mov_b32 exec_hi, 0
ds_read_b128 v[16:19], v13
s_waitcnt lgkmcnt(0)
buffer_store_dwordx4 v[16:19], v9, s[40:43], s44 offen sc1
s_mov_b32 exec_hi, -1
""")
        e("""
s_mov_b32 s48, s24
s_mov_b32 s49, s25
s_mov_b32 s50, 256
s_mov_b32 s51, 0x00020000
s_cmp_ge_u32 s31, 8
s_cbranch_scc1 L_cm_noclr
s_mov_b32 exec_hi, 0
buffer_store_dwordx4 v[4:7], v9, s[40:43], s44 offen sc1
s_mov_b32 exec_hi, -1
s_add_u32 s52, s52, %d
""" % SH_BASE)
        for i in range(share // 1024):
            e("buffer_store_dwordx4 v[4:7], v8, s[40:43], s52 offen offset:%d sc1" % ((i % 4) * 1024))
            if i % 4 == 3:
                e("s_add_u32 s52, s52, 4096")
        rem = (share % 1024) // 16
        e("s_mov_b32 exec_hi, 0x%x" % ((1 << (rem - 32)) - 1))
        e("buffer_store_dwordx4 v[4:7], v8, s[40:43], s52 offen offset:%d sc1" % (((share // 1024) % 4) * 1024))
        e("""
s_lshr_b32 s46, s44, 5
FLAGVAL
v_mov_b32 v11, 0
s_mov_b64 exec, 1
s_waitcnt vmcnt(0)
buffer_store_dword v10, v11, s[48:51], s46 offen sc1
s_mov_b64 exec, -1
""".replace("FLAGVAL", "s_or_b32 s47, s28, 1\nv_mov_b32 v10, s47" if self.glob else "v_mov_b32 v10, 1"))
        self.stamp(7)
        c_store()
        self.label("L_cm_noclr")
        e("s_mov_b32 s47, %d\ns_cmp_ge_u32 s31, 26\ns_cselect_b32 s47, %d, s47\nv_mov_b32 v15, %d" % (self.qpos - self.fgap, P_K + self.qposd - self.fgap, FULL))
        self.wait_lds("v15", "s46", "s47", "v14", cached=False, sleep=4)
        self.stamp(8)
        L = self.lab("Lfl")
        D = self.lab("Lfld")
        e("s_mov_b32 s59, %d\ns_mov_b32 s46, 1" % self.spin)
        self.label(L)
        e("""
buffer_load_dword v14, v12, s[48:51], 0 offen sc1
s_waitcnt vmcnt(0)
v_cmp_eq_u32 vcc, 0, v14
s_cbranch_vccz %s
s_sleep 16
s_sub_u32 s59, s59, 1
s_cmp_lg_u32 s59, 0
s_cbranch_scc1 %s
""" % (D, L))
        if "nofl" in self.abl:
            del self.o[-8:]
        self.label(D)
        self.stamp(0)
        self.rawstamp(9, "s59")
        if self.glob:
            e("v_sub_u32 v16, s28, v14\nv_mov_b32 v17, %d\nv_med3_i32 v16, v16, v17, %d" % (-self.glob, 0) if False else
              "v_sub_u32 v16, s28, v14\nv_max_i32 v16, %d, v16\nv_min_i32 v16, %d, v16" % (-self.glob, self.glob))
            for ror in (1, 2, 4, 8):
                e("s_nop 1\nv_add_u32_dpp v16, v16, v16 row_ror:%d row_mask:0xf bank_mask:0xf" % ror)
            e("""
s_nop 0
v_readlane_b32 s52, v16, 0
v_readlane_b32 s53, v16, 16
v_readlane_b32 s54, v16, 32
v_readlane_b32 s55, v16, 48
s_add_i32 s52, s52, s53
s_add_i32 s54, s54, s55
s_add_i32 s52, s52, s54
s_ashr_i32 s52, s52, 6
s_sub_u32 s52, s28, s52
s_or_b32 s52, s52, 1
s_mov_b64 exec, 1
v_mov_b32 v16, %d
v_mov_b32 v17, s52
ds_write_b32 v16, v17
s_mov_b64 exec, -1
""" % WCLS)
        e("s_cmp_lt_u32 s31, 8\ns_cbranch_scc1 L_cm_nocs\ns_cmp_ge_u32 s31, 26\ns_cbranch_scc1 L_cm_nocs")
        c_store()
        self.label("L_cm_nocs")
        if "comm_fl" in self.abl:
            self.set_flag(FLAG_Q, 21, 22)
            self.set_flag(FLAG_H, 21, 22)
            self.set_flag(FLAG_SC, 21, 22)
            e("s_endpgm")
        e("s_add_u32 s47, s47, %d" % self.fgap)
        self.wait_lds("v15", "s46", "s47", "v14", cached=False, sleep=4)
        e("""
s_mul_i32 s46, s34, %d
s_lshl_b32 s47, s32, 9
s_add_u32 s46, s46, s47
s_mov_b32 exec_hi, 0
""" % CQ_STRIDE)
        if "noq" not in self.abl:
            self.gather(["buffer_load_dwordx4 v[16:19], v8, s[40:43], s46 offen sc1"], [16, 17, 18, 19], 20)
        e("v_add_u32 v21, %d, v8\nds_write_b128 v21, v[16:19]\ns_waitcnt lgkmcnt(0)" % QL)
        self.set_flag(FLAG_Q, 21, 22)
        self.stamp(1)
        self.rawstamp(10, "s59")
        if "comm_q" in self.abl:
            self.set_flag(FLAG_H, 21, 22)
            self.set_flag(FLAG_SC, 21, 22)
            e("s_endpgm")
        e("s_cmp_lt_u32 s31, 26\ns_cbranch_scc1 L_cm_noh")
        for i in range(3):
            e("""
v_add_u32 v16, %d, v0
v_mul_u32_u24 v17, 1821, v16
v_lshrrev_b32 v17, 16, v17
v_mul_u32_u24 v18, 36, v17
v_sub_u32 v18, v16, v18
v_mul_u32_u24 v19, %d, v17
v_lshl_add_u32 v%d, v18, 4, v19
v_mul_u32_u24 v19, %d, v17
v_lshrrev_b32 v20, 2, v18
v_lshl_add_u32 v19, v20, 6, v19
v_and_b32 v20, 1, v18
v_lshl_add_u32 v19, v20, 5, v19
v_bfe_u32 v20, v18, 1, 1
v_lshl_add_u32 v19, v20, 3, v19
v_add_u32 v%d, %d, v19
""" % (64 * i, CGU_STRIDE, 24 + i, H_STRIDE, 27 + i, XN))
        e("""
v_cmp_gt_u32 vcc, 16, v0
s_nop 1
v_cndmask_b32 v26, v24, v26, vcc
v_cndmask_b32 v29, v27, v29, vcc
s_sub_u32 s46, s37, 16
s_mul_i32 s46, s46, 576
s_add_u32 s47, s46, %d
s_add_u32 s46, s46, %d
""" % (WS_CGU + 9216, WS_CGU))
        self.wait_lds("v15", "s48", str(P_K + self.hpos), "v14", cached=False, sleep=4)
        loads = []
        for i in range(3):
            loads.append("buffer_load_dwordx4 v[%d:%d], v%d, s[40:43], s46 offen sc1" % (48 + 4 * i, 51 + 4 * i, 24 + i))
            loads.append("buffer_load_dwordx4 v[%d:%d], v%d, s[40:43], s47 offen sc1" % (60 + 4 * i, 63 + 4 * i, 24 + i))
        self.gather(loads, [r for i in range(3) for r in list(range(48 + 4 * i, 52 + 4 * i)) + list(range(60 + 4 * i, 64 + 4 * i))], 72)
        c0 = -2.0 * LOG2E * 0.7978845608028654
        e("s_mov_b32 s46, %s\ns_mov_b32 s47, %s\ns_mov_b32 s56, 0xffff0000" % (f32(c0), f32(c0 * 0.044715)))
        e("v_mov_b32 v20, s46")
        for r in range(12):
            g = 48 + r
            u = 60 + r
            e("""
v_lshlrev_b32 v16, 16, v%(g)d
v_and_b32 v17, s56, v%(g)d
v_mul_f32 v18, v16, v16
v_mul_f32 v19, v17, v17
v_fma_f32 v18, v18, s47, v20
v_fma_f32 v19, v19, s47, v20
v_mul_f32 v18, v18, v16
v_mul_f32 v19, v19, v17
v_exp_f32 v18, v18
v_exp_f32 v19, v19
s_nop 0
v_add_f32 v18, 1.0, v18
v_add_f32 v19, 1.0, v19
v_rcp_f32 v18, v18
v_rcp_f32 v19, v19
s_nop 0
v_mul_f32 v18, v18, v16
v_mul_f32 v19, v19, v17
v_cvt_pk_bf16_f32 v18, v18, v19
v_lshlrev_b32 v16, 16, v%(u)d
v_and_b32 v17, s56, v%(u)d
v_and_b32 v19, s56, v18
v_lshlrev_b32 v18, 16, v18
v_mul_f32 v18, v18, v16
v_mul_f32 v19, v19, v17
v_cvt_pk_bf16_f32 v%(g)d, v18, v19
""" % dict(g=g, u=u))
        for i in range(3):
            e("ds_write2_b64 v%d, v[%d:%d], v[%d:%d] offset0:0 offset1:2" % (27 + i, 48 + 4 * i, 49 + 4 * i, 50 + 4 * i, 51 + 4 * i))
        e("s_waitcnt lgkmcnt(0)")
        self.set_flag(FLAG_H, 21, 22)
        self.label("L_cm_noh")
        e("v_mov_b32 v16, %d" % CNT_STAT)
        self.wait_lds("v16", "s46", "4", "v17", cached=False, sleep=2)
        self.stamp(2)
        e("""
v_and_b32 v16, 7, v0
v_lshlrev_b32 v16, 3, v16
v_add_u32 v17, %d, v16
ds_read_b64 v[18:19], v17
s_mov_b32 s56, %s
v_and_b32 v27, 1, v0
v_lshlrev_b32 v27, 4, v27
v_bfe_u32 v28, v0, 1, 2
v_lshl_add_u32 v27, v28, 2, v27
v_add_u32 v27, %d, v27
s_waitcnt lgkmcnt(0)
v_max_f32_dpp v20, v18, v18 row_ror:2 row_mask:0xf bank_mask:0xf
s_nop 1
v_max_f32_dpp v20, v20, v20 row_ror:4 row_mask:0xf bank_mask:0xf
v_sub_f32 v22, v18, v20
v_mul_f32 v22, s56, v22
v_exp_f32 v22, v22
s_nop 0
v_mul_f32 v21, v22, v19
ds_write_b32 v27, v22
s_nop 0
v_add_f32_dpp v21, v21, v21 row_ror:2 row_mask:0xf bank_mask:0xf
s_nop 1
v_add_f32_dpp v21, v21, v21 row_ror:4 row_mask:0xf bank_mask:0xf
s_lshl_b32 s47, s45, 6
s_add_u32 s47, s47, %d
s_mov_b64 exec, 0xff
buffer_store_dwordx2 v[20:21], v16, s[40:43], s47 offen sc1
s_mov_b64 exec, -1
s_waitcnt lgkmcnt(0)
""" % (STW, f32(LOG2E), SC, WS_ST))
        self.set_flag(FLAG_SC, 23, 24)
        self.stamp(3)
        e("s_sub_u32 s46, s31, 8\ns_cmp_ge_u32 s46, 18\ns_cbranch_scc1 L_cm_end")
        e("""
v_lshrrev_b32 v16, 4, v0
v_and_b32 v17, 15, v0
v_lshlrev_b32 v18, 12, v16
v_lshl_add_u32 v18, v17, 4, v18
s_lshl_b32 s47, s37, 8
s_add_u32 s47, s47, %d
v_lshrrev_b32 v19, 2, v0
v_lshlrev_b32 v19, 3, v19
v_add_u32 v19, %d, v19
""" % (WS_ST, FAC))
        self.wait_lds("v15", "s46", str(self.fpos), "v14", cached=False, sleep=4)
        self.gather(["buffer_load_dwordx4 v[24:27], v18, s[40:43], s47 offen sc1"], [24, 25, 26, 27], 20, sleep=8)
        e("""
v_max_f32_dpp v28, v24, v24 row_ror:4 row_mask:0xf bank_mask:0xf
v_max_f32_dpp v29, v26, v26 row_ror:4 row_mask:0xf bank_mask:0xf
s_nop 0
v_max_f32_dpp v28, v28, v28 row_ror:8 row_mask:0xf bank_mask:0xf
v_max_f32_dpp v29, v29, v29 row_ror:8 row_mask:0xf bank_mask:0xf
v_sub_f32 v28, v24, v28
v_sub_f32 v29, v26, v29
v_mul_f32 v28, s56, v28
v_mul_f32 v29, s56, v29
v_exp_f32 v28, v28
v_exp_f32 v29, v29
s_nop 0
v_mul_f32 v30, v28, v25
v_mul_f32 v31, v29, v27
s_nop 0
v_add_f32_dpp v30, v30, v30 row_ror:4 row_mask:0xf bank_mask:0xf
v_add_f32_dpp v31, v31, v31 row_ror:4 row_mask:0xf bank_mask:0xf
s_nop 0
v_add_f32_dpp v30, v30, v30 row_ror:8 row_mask:0xf bank_mask:0xf
v_add_f32_dpp v31, v31, v31 row_ror:8 row_mask:0xf bank_mask:0xf
v_rcp_f32 v30, v30
v_rcp_f32 v31, v31
s_nop 0
v_mul_f32 v28, v28, v30
v_mul_f32 v29, v29, v31
ds_write_b64 v19, v[28:29]
s_waitcnt lgkmcnt(0)
""")
        self.set_flag(FLAG_F, 23, 24)
        self.label("L_cm_end")
        self.flush_stamps([(0, 4), (1, 5), (2, 6), (3, 7), (7, 16), (8, 17), (9, 18), (10, 19)])
        e("s_endpgm")

    def tlb_warm(self):
        e = self.e
        e("""
s_lshl_b32 s52, s33, 21
s_add_u32 s52, s52, 0x180000
s_lshl_b32 s53, s35, 17
s_add_u32 s52, s52, s53
s_load_dword s78, s[6:7], s52
s_load_dword s78, s[8:9], s52
s_cmp_ge_u32 s31, 26
s_cbranch_scc1 L_tw_dn
s_cmp_lt_u32 s31, 17
s_cselect_b32 s60, s16, s18
s_cselect_b32 s61, s17, s19
s_cmp_lt_u32 s31, 8
s_cselect_b32 s60, s10, s60
s_cselect_b32 s61, s11, s61
s_mov_b32 s53, 0x180000
s_load_dword s78, s[60:61], s53
s_mov_b32 s53, 0x300000
s_load_dword s78, s[60:61], s53
s_mov_b32 s53, 0x47ff00
s_load_dword s78, s[60:61], s53
s_cbranch_scc1 L_tw_end
s_mul_i32 s53, s37, 294912
s_load_dword s78, s[12:13], s53
s_add_u32 s53, s53, 294000
s_load_dword s78, s[12:13], s53
s_branch L_tw_end
L_tw_dn:
s_sub_u32 s53, s37, 16
s_mul_i32 s53, s53, 331776
s_load_dword s78, s[20:21], s53
s_add_u32 s53, s53, 331000
s_load_dword s78, s[20:21], s53
L_tw_end:
""")

    def ct_id(self):
        self.e("""
s_lshl_b32 s44, s30, 3
s_add_u32 s44, s44, s31
s_mul_i32 s46, s30, 9
s_add_u32 s46, s46, s31
s_add_u32 s47, s46, 56
s_add_u32 s46, s46, 119
s_cmp_lt_u32 s31, 17
s_cselect_b32 s46, s47, s46
s_cmp_lt_u32 s31, 8
s_cselect_b32 s44, s44, s46
""")

    def free_write(self, sval):
        self.e("s_mov_b64 exec, 1\nv_mov_b32 v4, %s\nds_write_b32 v3, v4\ns_mov_b64 exec, -1" % sval)

    def cons(self):
        e = self.e
        self.label("L_cons")
        if self.stamps:
            for k in range(15):
                e("s_mov_b64 s[%d:%d], 0" % (self.sreg(k), self.sreg(k) + 1))
        if "perm" in self.abl:
            e("s_min_u32 s36, s36, 4\ns_add_u32 s36, s36, 1")
        e("""
s_sub_u32 s36, s36, 2
v_mov_b32 v2, %d
s_lshl_b32 s44, s36, 2
s_add_u32 s44, s44, %d
v_mov_b32 v3, s44
s_mov_b32 s50, 0
v_and_b32 v8, 15, v0
v_lshrrev_b32 v9, 4, v0
v_lshrrev_b32 v10, 2, v0
v_and_b32 v11, 3, v0
s_mov_b32 s56, 0xffff0000
v_mul_u32_u24 v12, 1152, v9
v_lshl_add_u32 v12, v8, 4, v12
v_mov_b32 v13, 0x40000000
v_cmp_gt_u32 vcc, 8, v8
v_bfe_u32 v7, v0, 3, 2
v_lshlrev_b32 v7, 5, v7
v_cndmask_b32 v13, v13, v12, vcc
v_lshl_add_u32 v7, v10, 7, v7
v_lshl_add_u32 v7, v11, 3, v7
s_waitcnt lgkmcnt(0)
s_mov_b32 s60, s4
s_mov_b32 s61, s5
s_mov_b32 s62, 4608
s_mov_b32 s63, 0x00020000
""" % (FULL, FREE))
        self.ws_srd()
        if "nocons" in self.abl:
            e("s_barrier")
            self.free_write("0x10000")
            e("s_endpgm")
        if "conssleep" in self.abl or "consspin" in self.abl:
            e("s_barrier")
            self.free_write("0x10000")
            self.wait_lds("v2", "s50", "328", "v4", sleep=(32 if "conssleep" in self.abl else 0))
            e("s_endpgm")
        if "nocolc" in self.abl:
            e("s_branch L_cs_nocol")
        e("""
s_cmp_ge_u32 s31, 26
s_cbranch_scc1 L_cs_nocol
""")
        if "nox" not in self.abl:
            e("""
buffer_load_dwordx4 v[32:35], v12, s[60:63], 0 offen
buffer_load_dwordx4 v[36:39], v12, s[60:63], 0 offen offset:256
buffer_load_dwordx4 v[40:43], v12, s[60:63], 0 offen offset:512
buffer_load_dwordx4 v[44:47], v12, s[60:63], 0 offen offset:768
buffer_load_dwordx4 v[48:51], v13, s[60:63], 0 offen offset:1024
""")
        e("s_barrier")
        e("""
v_mul_u32_u24 v14, %d, v9
v_lshrrev_b32 v15, 2, v8
v_lshl_add_u32 v14, v15, 6, v14
v_and_b32 v15, 1, v8
v_lshl_add_u32 v14, v15, 5, v14
v_bfe_u32 v15, v8, 1, 1
v_lshl_add_u32 v14, v15, 3, v14
v_add_u32 v14, %d, v14
s_lshl_b32 s44, s36, 5
v_xor_b32 v15, s44, v7
v_mul_u32_u24 v16, %d, v11
v_lshl_add_u32 v16, v9, 4, v16
v_add_u32 v16, %d, v16
s_waitcnt vmcnt(0)
""" % (XN_STRIDE, XN, XN_STRIDE, XN))
        for k in range(20):
            e("v_lshlrev_b32 v%d, 16, v%d\nv_and_b32 v%d, s56, v%d" % (64 + 2 * k, 32 + k, 65 + 2 * k, 32 + k))
        e("v_add_f32 v52, v64, v65\nv_add_f32 v53, v66, v67")
        for k in range(2, 20):
            e("v_add_f32 v52, v52, v%d\nv_add_f32 v53, v53, v%d" % (64 + 2 * k, 65 + 2 * k))
        e("v_add_f32 v52, v52, v53")
        for ror in (8, 4, 2, 1):
            e("s_nop 1\nv_add_f32_dpp v52, v52, v52 row_ror:%d row_mask:0xf bank_mask:0xf" % ror)
        e("v_mul_f32 v52, %s, v52" % f32(1.0 / 576))
        e("v_cndmask_b32 v55, 0, v52, vcc")
        e("v_mov_b32 v53, 0\nv_mov_b32 v54, 0")
        for k in range(20):
            m = 55 if k >= 16 else 52
            e("v_sub_f32 v56, v%d, v%d\nv_sub_f32 v57, v%d, v%d\nv_fmac_f32 v53, v56, v56\nv_fmac_f32 v54, v57, v57" % (64 + 2 * k, m, 65 + 2 * k, m))
        e("v_add_f32 v53, v53, v54")
        for ror in (8, 4, 2, 1):
            e("s_nop 1\nv_add_f32_dpp v53, v53, v53 row_ror:%d row_mask:0xf bank_mask:0xf" % ror)
        e("""
v_mul_f32 v53, %s, v53
v_cvt_pk_bf16_f32 v52, v52, v53
v_and_b32 v53, s56, v52
v_lshlrev_b32 v52, 16, v52
v_add_f32 v53, %s, v53
v_cvt_pk_bf16_f32 v53, v53, v53
v_and_b32 v53, s56, v53
v_sqrt_f32 v53, v53
s_nop 0
v_cvt_pk_bf16_f32 v53, v53, v53
v_and_b32 v53, s56, v53
v_rcp_f32 v54, v53
""" % (f32(1.0 / 576), f32(1e-5)))
        for k in range(20):
            a, b = 64 + 2 * k, 65 + 2 * k
            e("""
v_sub_f32 v%(a)d, v%(a)d, v52
v_sub_f32 v%(b)d, v%(b)d, v52
v_cvt_pk_bf16_f32 v56, v%(a)d, v%(b)d
v_lshlrev_b32 v%(a)d, 16, v56
v_and_b32 v%(b)d, s56, v56
v_mul_f32 v57, v%(a)d, v54
v_mul_f32 v58, v%(b)d, v54
v_fma_f32 v%(a)d, -v57, v53, v%(a)d
v_fma_f32 v%(b)d, -v58, v53, v%(b)d
v_fmac_f32 v57, v%(a)d, v54
v_fmac_f32 v58, v%(b)d, v54
v_cvt_pk_bf16_f32 v%(d)d, v57, v58
""" % dict(a=a, b=b, d=32 + k))
        for t in range(4):
            e("ds_write2_b64 v14, v[%d:%d], v[%d:%d] offset0:%d offset1:%d" % (32 + 4 * t, 33 + 4 * t, 34 + 4 * t, 35 + 4 * t, 32 * t, 32 * t + 2))
        e("s_mov_b64 exec, vcc\nds_write2_b64 v14, v[48:49], v[50:51] offset0:128 offset1:130\ns_mov_b64 exec, -1")
        e("v_mov_b32 v20, 0\nv_mov_b32 v21, 0\nv_mov_b32 v22, 0\nv_mov_b32 v23, 0\ns_mov_b32 s51, 4")
        self.stamp(0)
        L = self.lab("Lcol")
        self.label(L)
        self.wait_lds("v2", "s50", "s51", "v4")
        e("""
ds_read_b64_tr_b16 v[24:25], v15
ds_read_b64_tr_b16 v[26:27], v15 offset:2048
ds_read_b128 v[28:31], v16
v_add_u32 v15, 4096, v15
v_add_u32 v16, 64, v16
s_add_u32 s51, s51, 4
s_cmp_le_u32 s51, %d
s_waitcnt lgkmcnt(0)
v_mfma_f32_16x16x32_bf16 v[20:23], v[24:27], v[28:31], v[20:23]
s_cbranch_scc1 %s
""" % (P_K, L))
        e("""
s_lshl_b32 s45, s36, 5
s_add_u32 s45, s45, %d
v_lshlrev_b32 v17, 7, v11
v_lshl_add_u32 v17, v9, 3, v17
v_add_u32 v17, s45, v17
v_mov_b32 v18, %d
v_mov_b32 v19, 1
s_nop 2
v_cvt_pk_bf16_f32 v24, v20, v21
v_cvt_pk_bf16_f32 v25, v22, v23
s_mov_b32 exec_lo, 0x000f000f
s_mov_b32 exec_hi, 0x000f000f
ds_write_b64 v17, v[24:25]
s_mov_b64 exec, 1
ds_add_u32 v18, v19
s_mov_b64 exec, -1
s_branch L_cs_k
L_cs_nocol:
s_barrier
L_cs_k:
""" % (OB, CNT_C))
        self.stamp(1)
        if "colonly" in self.abl:
            self.free_write("0x10000")
            e("s_endpgm")
        e("""
v_and_b32 v5, 7, v0
v_lshlrev_b32 v5, 1, v5
v_xor_b32 v5, v5, v9
v_lshlrev_b32 v5, 4, v5
v_lshl_add_u32 v5, v8, 8, v5
v_and_b32 v6, 7, v10
v_lshlrev_b32 v6, 5, v6
v_lshl_add_u32 v6, v10, 8, v6
v_lshl_add_u32 v6, v11, 3, v6
s_lshl_b32 s52, s36, 2
s_add_u32 s51, s52, %d
s_lshl_b32 s53, s51, 10
""" % P_K)
        self.free_write("s51")

        def advance():
            e("s_add_u32 s51, s51, 16\ns_add_u32 s53, s53, 16384\ns_sub_u32 s54, s53, %d\ns_cmp_ge_u32 s53, %d\ns_cselect_b32 s53, s54, s53" % (RING_BYTES, RING_BYTES))

        for i in range(8):
            e("s_add_u32 s55, s51, 4")
            self.wait_lds("v2", "s50", "s55", "v4")
            r = 128 + 16 * i
            e("""
v_add_u32 v12, s53, v5
v_xor_b32 v13, 64, v12
v_xor_b32 v14, 0x80, v12
v_xor_b32 v15, 0xc0, v12
ds_read_b128 v[%d:%d], v12
ds_read_b128 v[%d:%d], v13
ds_read_b128 v[%d:%d], v14
ds_read_b128 v[%d:%d], v15
""" % (r, r + 3, r + 4, r + 7, r + 8, r + 11, r + 12, r + 15))
            advance()
            if i & 1:
                e("s_waitcnt lgkmcnt(0)")
                self.free_write("s51")
        self.stamp(2)
        e("v_mov_b32 v12, %d" % FLAG_Q)
        self.wait_lds("v12", "s54", "1", "v4", cached=False)
        e("""
v_and_b32 v12, 1, v0
v_lshlrev_b32 v12, 8, v12
v_lshl_add_u32 v12, v9, 4, v12
v_add_u32 v12, %d, v12
ds_read_b128 v[32:35], v12
ds_read_b128 v[36:39], v12 offset:64
ds_read_b128 v[40:43], v12 offset:128
ds_read_b128 v[44:47], v12 offset:192
s_mov_b32 s57, %s
s_mov_b32 s58, %s
s_waitcnt lgkmcnt(0)
""" % (QL, f32(128 ** -0.5), f32(LOG2E)))
        for s in range(4):
            for i in range(8):
                c = "0" if s == 0 else "v[%d:%d]" % (48 + 4 * i, 51 + 4 * i)
                e("v_mfma_f32_16x16x32_bf16 v[%d:%d], v[%d:%d], v[%d:%d], %s" % (48 + 4 * i, 51 + 4 * i, 128 + 16 * i + 4 * s, 131 + 16 * i + 4 * s, 32 + 4 * s, 35 + 4 * s, c))
        e("s_nop 1")
        for k in range(16):
            a, b = 48 + 2 * k, 49 + 2 * k
            e("""
v_cvt_pk_bf16_f32 v12, v%(a)d, v%(b)d
v_lshlrev_b32 v%(a)d, 16, v12
v_and_b32 v%(b)d, s56, v12
v_mul_f32 v%(a)d, s57, v%(a)d
v_mul_f32 v%(b)d, s57, v%(b)d
v_cvt_pk_bf16_f32 v12, v%(a)d, v%(b)d
v_lshlrev_b32 v%(a)d, 16, v12
v_and_b32 v%(b)d, s56, v12
""" % dict(a=a, b=b))
        e("v_max3_f32 v12, v48, v49, v50")
        for k in range(51, 79, 2):
            e("v_max3_f32 v12, v12, v%d, v%d" % (k, k + 1))
        e("""
v_max_f32 v12, v12, v79
v_mov_b32 v13, v12
s_nop 1
v_permlane16_swap_b32 v12, v13
s_nop 0
v_max_f32 v12, v12, v13
v_mov_b32 v13, v12
s_nop 1
v_permlane32_swap_b32 v12, v13
s_nop 0
v_max_f32 v12, v12, v13
""")
        for k in range(32):
            e("v_sub_f32 v%d, v%d, v12" % (48 + k, 48 + k))
        for k in range(32):
            e("v_mul_f32 v%d, s58, v%d" % (48 + k, 48 + k))
        for k in range(32):
            e("v_exp_f32 v%d, v%d" % (48 + k, 48 + k))
        e("v_add_f32 v13, v48, v49\nv_add_f32 v14, v50, v51")
        for k in range(52, 80, 2):
            e("v_add_f32 v13, v13, v%d\nv_add_f32 v14, v14, v%d" % (k, k + 1))
        for k in range(16):
            e("v_cvt_pk_bf16_f32 v%d, v%d, v%d" % (80 + k, 48 + 2 * k, 49 + 2 * k))
        e("""
v_add_f32 v13, v13, v14
v_mov_b32 v14, v13
s_nop 1
v_permlane16_swap_b32 v13, v14
s_nop 0
v_add_f32 v13, v13, v14
v_mov_b32 v14, v13
s_nop 1
v_permlane32_swap_b32 v13, v14
s_nop 0
v_add_f32 v13, v13, v14
s_lshl_b32 s54, s36, 4
s_add_u32 s54, s54, %d
v_lshlrev_b32 v14, 3, v0
v_add_u32 v14, s54, v14
s_mov_b64 exec, 3
ds_write_b64 v14, v[12:13]
s_mov_b64 exec, 1
v_mov_b32 v14, %d
v_mov_b32 v15, 1
s_waitcnt lgkmcnt(0)
ds_add_u32 v14, v15
s_mov_b64 exec, -1
""" % (STW, CNT_STAT))
        self.stamp(3)
        self.tile_ids()
        e("""
v_and_b32 v24, 1, v0
v_lshlrev_b32 v24, 9, v24
v_lshl_add_u32 v24, v9, 4, v24
s_lshl_b32 s54, s36, 10
s_add_u32 s54, s54, %d
v_add_u32 v24, s54, v24
v_mov_b32 v25, %d
v_mov_b32 v26, 1
v_lshlrev_b32 v27, 4, v0
v_add_u32 v28, %d, v27
v_lshrrev_b32 v29, 5, v0
v_lshlrev_b32 v29, 4, v29
v_add_u32 v29, %d, v29
s_lshl_b32 s49, s33, 2
s_add_u32 s49, s49, s35
s_lshl_b32 s49, s49, 10
s_add_u32 s49, s49, %d
v_mov_b32 v30, %d
""" % (OW, CNT_O, OW, SC, WS_OP, FLAG_SC))
        for i in range(4):
            fr = 128 + 32 * (i & 1)
            for h in range(2):
                e("s_add_u32 s55, s51, 4")
                if i == 3 and h == 1:
                    self.wait_lds("v30", "s54", "1", "v4", cached=False)
                    e("ds_read_b128 v[32:35], v29")
                self.wait_lds("v2", "s50", "s55", "v4")
                e("v_add_u32 v12, s53, v6")
                for t in range(8):
                    if t:
                        e("v_xor_b32 v%d, %d, v12" % (16 + t, 32 * t))
                for t in range(8):
                    e("ds_read_b64_tr_b16 v[%d:%d], v%d" % (fr + 4 * t + 2 * h, fr + 4 * t + 2 * h + 1, 16 + t if t else 12))
                advance()
            for t in range(8):
                e("s_waitcnt lgkmcnt(%d)" % (7 - t))
                c = "0" if i == 0 else "v[%d:%d]" % (96 + 4 * t, 99 + 4 * t)
                e("v_mfma_f32_16x16x32_bf16 v[%d:%d], v[%d:%d], v[%d:%d], %s" % (96 + 4 * t, 99 + 4 * t, fr + 4 * t, fr + 4 * t + 3, 80 + 4 * i, 83 + 4 * i, c))
            if i < 3:
                self.free_write("s51")
        if "nopost" in self.abl:
            self.free_write("0x10000")
            e("s_branch L_cs_end")
        e("""
s_mov_b32 exec_lo, 0x00030003
s_mov_b32 exec_hi, 0x00030003
v_mov_b32 v4, %d
""" % P_W)
        for t in range(8):
            if t == 6:
                e("s_nop 1")
            e("ds_write_b128 v24, v[%d:%d] offset:%d" % (96 + 4 * t, 99 + 4 * t, 64 * t))
        e("""
s_mov_b64 exec, 1
ds_add_rtn_u32 v16, v25, v26
ds_write_b32 v3, v4
s_mov_b64 exec, -1
s_waitcnt lgkmcnt(1)
v_readfirstlane_b32 s54, v16
s_cmp_lg_u32 s54, 3
s_cbranch_scc1 L_cs_nolast
ds_read_b128 v[96:99], v28
ds_read_b128 v[100:103], v28 offset:1024
ds_read_b128 v[104:107], v28 offset:2048
ds_read_b128 v[108:111], v28 offset:3072
s_waitcnt lgkmcnt(3)
""")
        for k in range(4):
            e("v_mul_f32 v%d, v%d, v32" % (96 + k, 96 + k))
        for w in range(1, 4):
            e("s_waitcnt lgkmcnt(%d)" % (3 - w))
            for k in range(4):
                e("v_fmac_f32 v%d, v%d, v%d" % (96 + k, 96 + 4 * w + k, 32 + w))
        e("buffer_store_dwordx4 v[96:99], v27, s[40:43], s49 offen sc1")
        self.stamp(10)
        self.label("L_cs_nolast")
        self.stamp(4)
        e("""
s_cmp_lt_u32 s31, 8
s_cbranch_scc1 L_cs_red
s_cmp_ge_u32 s31, 26
s_cbranch_scc1 L_cs_down
""")
        if "notile" in self.abl:
            e("s_branch L_cs_end")
        ringw = (P_W % RING_KB) * 1024
        e("""
v_lshlrev_b32 v20, 16, v9
v_lshl_add_u32 v20, v8, 4, v20
s_lshl_b32 s46, s37, 12
s_lshl_b32 s47, s36, 8
s_add_u32 s46, s46, s47
s_add_u32 s46, s46, %d
s_lshl_b32 s54, s36, 13
s_add_u32 s54, s54, %d
v_add_u32 v12, s54, v7
v_xor_b32 v13, 32, v12
v_xor_b32 v14, 64, v12
v_xor_b32 v15, 0x60, v12
s_lshl_b32 s55, s36, 3
s_add_u32 s55, s55, %d
v_lshlrev_b32 v24, 8, v11
v_lshl_add_u32 v24, v9, 4, v24
s_lshl_b32 s54, s36, 10
s_add_u32 s54, s54, %d
v_add_u32 v24, s54, v24
v_mov_b32 v25, %d
v_add_u32 v28, %d, v27
v_mul_u32_u24 v29, 2304, v9
v_lshl_add_u32 v29, v8, 4, v29
s_mul_i32 s44, s37, %d
s_lshl_b32 s45, s38, 8
s_add_u32 s44, s44, s45
s_add_u32 s44, s44, %d
s_lshl_b32 s54, s36, 9
s_add_u32 s54, s54, %d
v_lshlrev_b32 v21, 7, v9
v_bfe_u32 v16, v0, 3, 1
v_lshl_add_u32 v21, v16, 6, v21
v_lshl_add_u32 v21, v11, 4, v21
v_bfe_u32 v16, v0, 2, 1
v_lshl_add_u32 v21, v16, 3, v21
v_add_u32 v21, s54, v21
v_lshlrev_b32 v23, 7, v11
v_lshl_add_u32 v23, v9, 4, v23
v_add_u32 v23, s54, v23
""" % (WS_OP, ringw, P_W + 8, RW, CNT_P, RW, PART_ROW, WS_PART, OB))
        loads = ["buffer_load_dwordx4 v[%d:%d], v20, s[40:43], s46 offen offset:%d sc1" % (216 + 4 * k, 219 + 4 * k, 1024 * k) for k in range(4)]
        e("""
v_lshlrev_b32 v16, 5, v9
v_lshl_add_u32 v16, v11, 3, v16
s_lshr_b32 s47, s36, 1
s_lshl_b32 s47, s47, 2
s_add_u32 s47, s47, %d
v_add_u32 v16, s47, v16
v_mov_b32 v17, %d
""" % (FAC, FLAG_F))
        self.wait_lds("v17", "s47", "1", "v4", cached=False)
        e("ds_read_b32 v234, v16\ns_waitcnt lgkmcnt(0)")
        for g in self.gpos:
            self.wait_lds("v2", "s50", str(P_W + g), "v4")
            for l in loads:
                e(l)
        self.stamp(8)
        self.wait_lds("v2", "s50", "s55", "v4")
        for s in range(2):
            for q in range(4):
                r = 128 + 16 * s + 4 * q
                e("ds_read_b64_tr_b16 v[%d:%d], v%d offset:%d" % (r, r + 1, 12 + q, 4096 * s))
                e("ds_read_b64_tr_b16 v[%d:%d], v%d offset:%d" % (r + 2, r + 3, 12 + q, 4096 * s + 2048))
        Lo = self.lab("Lgo")
        Dn = self.lab("Lgod")

        def ocheck():
            e("v_max3_u32 v36, v216, v217, v218\nv_max3_u32 v37, v219, v220, v221")
            for i, r in enumerate(range(222, 232, 2)):
                e("v_max3_u32 v%d, v%d, v%d, v%d" % (36 + (i & 1), 36 + (i & 1), r, r + 1))
            e("v_max_u32 v36, v36, v37\nv_cmp_eq_u32 vcc, -1, v36\ns_cbranch_vccz %s" % Dn)
        e("s_mov_b32 s59, %d" % self.spin)
        e("s_waitcnt vmcnt(0)")
        ocheck()
        e("s_mov_b64 exec, vcc")
        for r in range(self.opipe - 1):
            for l in loads:
                e(l)
            e("s_sleep %d" % self.ogap)
        self.label(Lo)
        if self.osleep:
            e("s_sleep %d" % self.osleep)
        for l in loads:
            e(l)
        e("s_mov_b64 exec, -1\ns_waitcnt vmcnt(%d)" % (4 * (self.opipe - 1)))
        ocheck()
        e("s_mov_b64 exec, vcc\ns_sub_u32 s59, s59, 1\ns_cmp_lg_u32 s59, 0\ns_cbranch_scc1 %s\ns_mov_b64 exec, -1" % Lo)
        self.label(Dn)
        self.stamp(5)
        self.rawstamp(7, "s59")
        for k in range(4):
            e("v_mul_f32_dpp v%d, v234, v%d quad_perm:[0,0,0,0] row_mask:0xf bank_mask:0xf" % (240 + k, 216 + k))
        for j in range(1, 4):
            for k in range(4):
                e("v_fmac_f32_dpp v%d, v234, v%d quad_perm:[%d,%d,%d,%d] row_mask:0xf bank_mask:0xf" % (240 + k, 216 + 4 * j + k, j, j, j, j))
        e("""
v_cvt_pk_bf16_f32 v244, v240, v241
v_cvt_pk_bf16_f32 v245, v242, v243
ds_write_b64 v21, v[244:245]
ds_read_b128 v[232:235], v23
ds_read_b128 v[236:239], v23 offset:64
""")
        e("s_waitcnt lgkmcnt(0)\ns_nop 0")
        for s in range(2):
            for q in range(4):
                r = 128 + 16 * s + 4 * q
                c = "0" if s == 0 else "v[%d:%d]" % (240 + 4 * q, 243 + 4 * q)
                e("v_mfma_f32_16x16x32_bf16 v[%d:%d], v[%d:%d], v[%d:%d], %s" % (240 + 4 * q, 243 + 4 * q, r, r + 3, 232 + 4 * s, 235 + 4 * s, c))
        e("""
s_mov_b32 exec_lo, 0x000f000f
s_mov_b32 exec_hi, 0x000f000f
s_nop 2
ds_write_b128 v24, v[240:243]
s_nop 0
ds_write_b128 v24, v[244:247] offset:64
s_nop 0
ds_write_b128 v24, v[248:251] offset:128
s_nop 0
ds_write_b128 v24, v[252:255] offset:192
s_mov_b64 exec, 1
ds_add_rtn_u32 v16, v25, v26
s_mov_b64 exec, -1
s_waitcnt lgkmcnt(0)
v_readfirstlane_b32 s54, v16
s_cmp_lg_u32 s54, 3
s_cbranch_scc1 L_cs_end
ds_read_b128 v[96:99], v28
ds_read_b128 v[100:103], v28 offset:1024
ds_read_b128 v[104:107], v28 offset:2048
ds_read_b128 v[108:111], v28 offset:3072
s_waitcnt lgkmcnt(2)
v_add_f32 v96, v96, v100
v_add_f32 v97, v97, v101
v_add_f32 v98, v98, v102
v_add_f32 v99, v99, v103
s_waitcnt lgkmcnt(0)
v_add_f32 v104, v104, v108
v_add_f32 v105, v105, v109
v_add_f32 v106, v106, v110
v_add_f32 v107, v107, v111
v_add_f32 v96, v96, v104
v_add_f32 v97, v97, v105
v_add_f32 v98, v98, v106
v_add_f32 v99, v99, v107
buffer_store_dwordx4 v[96:99], v29, s[40:43], s44 offen sc1
""")
        self.stamp(6)
        e("s_branch L_cs_end")
        self.label("L_cs_down")
        e("""
v_bfe_u32 v13, v0, 3, 2
v_mul_u32_u24 v14, 384, v10
v_lshl_add_u32 v14, v11, 3, v14
v_add_u32 v14, %d, v14
s_mul_i32 s54, s36, 3
v_xor_b32 v16, s54, v13
v_lshl_add_u32 v16, v16, 5, v14
s_add_u32 s54, s54, 1
v_xor_b32 v17, s54, v13
v_lshl_add_u32 v17, v17, 5, v14
s_add_u32 s54, s54, 1
v_xor_b32 v18, s54, v13
v_lshl_add_u32 v18, v18, 5, v14
v_mul_u32_u24 v12, 5462, v0
v_lshrrev_b32 v12, 16, v12
v_mul_u32_u24 v19, 12, v12
v_sub_u32 v19, v0, v19
v_mul_u32_u24 v12, 2304, v12
v_lshl_add_u32 v19, v19, 4, v12
s_mov_b32 s46, %d
s_cmp_lt_u32 s36, 2
s_cselect_b32 s46, %d, s46
s_mul_i32 s45, s36, 768
s_add_u32 s45, s45, s46
v_mul_u32_u24 v21, 192, v11
v_lshl_add_u32 v21, v9, 4, v21
v_add_u32 v21, s45, v21
v_add_u32 v22, s45, v27
s_mul_i32 s44, s37, %d
s_mul_i32 s45, s38, 768
s_add_u32 s44, s44, s45
s_mul_i32 s45, s36, 192
s_add_u32 s44, s44, s45
s_add_u32 s44, s44, %d
v_mov_b32 v12, %d
""" % (ringw, XN + 2304 - 1536, OB, PART_ROW, WS_PART, FLAG_H))
        self.wait_lds("v12", "s54", "1", "v4", cached=False)
        e("""
v_mul_u32_u24 v20, %d, v11
v_lshl_add_u32 v20, v9, 4, v20
v_add_u32 v20, %d, v20
s_mov_b32 s51, %d
""" % (H_STRIDE, XN, P_W + 12))
        for k in range(12):
            e("v_mov_b32 v%d, 0" % (240 + k))
        L = self.lab("Ldn")
        self.label(L)
        self.wait_lds("v2", "s50", "s51", "v4")
        e("ds_read_b128 v[232:235], v20")
        for q in range(3):
            r = 192 + 4 * q
            e("ds_read_b64_tr_b16 v[%d:%d], v%d" % (r, r + 1, 16 + q))
            e("ds_read_b64_tr_b16 v[%d:%d], v%d offset:6144" % (r + 2, r + 3, 16 + q))
        e("v_add_u32 v20, 64, v20")
        for q in range(3):
            e("v_add_u32 v%d, 12288, v%d" % (16 + q, 16 + q))
        e("s_add_u32 s51, s51, 12\ns_cmp_le_u32 s51, %d" % (P_W + 108))
        for q in range(3):
            r = 192 + 4 * q
            e("s_waitcnt lgkmcnt(%d)" % (4 - 2 * q))
            e("v_mfma_f32_16x16x32_bf16 v[%d:%d], v[%d:%d], v[232:235], v[%d:%d]" % (240 + 4 * q, 243 + 4 * q, r, r + 3, 240 + 4 * q, 243 + 4 * q))
        e("s_cbranch_scc1 %s" % L)
        e("""
s_mov_b32 exec_lo, 0x000f000f
s_mov_b32 exec_hi, 0x000f000f
s_nop 4
ds_write_b128 v21, v[240:243]
s_nop 0
ds_write_b128 v21, v[244:247] offset:64
s_nop 0
ds_write_b128 v21, v[248:251] offset:128
s_mov_b32 exec_lo, -1
s_mov_b32 exec_hi, 0xffff
ds_read_b128 v[240:243], v22
s_waitcnt lgkmcnt(0)
buffer_store_dwordx4 v[240:243], v19, s[40:43], s44 offen sc1
""")
        self.stamp(6)
        e("s_branch L_cs_end")
        self.label("L_cs_red")
        if "nored" in self.abl:
            e("s_branch L_cs_end")
        e("""
s_lshl_b32 s44, s30, 3
s_add_u32 s44, s44, s31
s_lshl_b32 s45, s36, 6
s_add_u32 s44, s44, s45
s_cmp_ge_u32 s44, 72
s_cbranch_scc1 L_cs_end
s_lshl_b32 s54, s44, 6
v_and_b32 v17, 7, v0
v_lshlrev_b32 v42, 3, v17
buffer_load_dwordx2 v[40:41], v42, s[60:63], s54 offen
v_bfe_u32 v16, v0, 3, 2
v_lshrrev_b32 v18, 5, v0
v_lshl_add_u32 v16, v18, 4, v16
v_mul_u32_u24 v16, %d, v16
v_lshl_add_u32 v16, v17, 4, v16
s_lshl_b32 s44, s44, 7
s_add_u32 s44, s44, %d
s_add_u32 s45, s44, %d
s_add_u32 s46, s45, %d
s_add_u32 s47, s46, %d
s_mov_b32 s57, %s
s_mov_b32 s60, s22
s_mov_b32 s61, s23
""" % (PART_ROW, WS_PART, 4 * PART_ROW, 4 * PART_ROW, 4 * PART_ROW, f32(-LOG2E)))
        self.stamp(8)
        loads = ["buffer_load_dwordx4 v[%d:%d], v16, s[40:43], s%d offen sc1" % (48 + 4 * k, 51 + 4 * k, 44 + k) for k in range(4)]
        Lp = self.lab("Lpr")
        Lq = self.lab("Lprd")
        e("s_mov_b32 s59, %d\ns_mov_b32 exec_lo, 1\ns_mov_b32 exec_hi, 1" % self.spin)
        self.label(Lp)
        e("""
buffer_load_dword v48, v16, s[40:43], s44 offen sc1
buffer_load_dword v56, v16, s[40:43], s46 offen sc1
s_waitcnt vmcnt(0)
v_min_u32 v64, v48, v56
v_cmp_ne_u32 vcc, -1, v64
s_cbranch_vccnz %s
s_sleep %d
s_sub_u32 s59, s59, 1
s_cmp_lg_u32 s59, 0
s_cbranch_scc1 %s
""" % (Lq, self.isleep, Lp))
        self.label(Lq)
        e("""
s_mov_b64 exec, -1
v_lshlrev_b32 v76, 16, v40
v_and_b32 v77, s56, v40
v_lshlrev_b32 v78, 16, v41
v_and_b32 v79, s56, v41
""")
        if self.pipe:
            self.gather_pipe(loads, list(range(48, 64)), 64, depth=self.pipe)
        else:
            self.gather(loads, list(range(48, 64)), 64, sleep=self.tsleep)
        self.stamp(5)
        self.rawstamp(7, "s59")
        for k in range(4):
            e("v_add_f32 v%d, v%d, v%d" % (64 + k, 48 + k, 52 + k))
        for k in range(4):
            e("v_add_f32 v%d, v%d, v%d" % (68 + k, 56 + k, 60 + k))
        for k in range(4):
            e("v_add_f32 v%d, v%d, v%d" % (64 + k, 64 + k, 68 + k))
        for k in range(4):
            e("v_add_f32_dpp v%d, v%d, v%d row_ror:8 row_mask:0xf bank_mask:0xf" % (64 + k, 64 + k, 64 + k))
        for k in range(4):
            e("v_mov_b32 v%d, v%d" % (68 + k, 64 + k))
        e("s_nop 0")
        for k in range(4):
            e("v_permlane16_swap_b32 v%d, v%d" % (64 + k, 68 + k))
        for k in range(4):
            e("v_add_f32 v%d, v%d, v%d" % (64 + k, 64 + k, 68 + k))
        e("""
v_cvt_pk_bf16_f32 v68, v64, v65
v_cvt_pk_bf16_f32 v69, v66, v67
v_lshlrev_b32 v64, 16, v68
v_and_b32 v65, s56, v68
v_lshlrev_b32 v66, 16, v69
v_and_b32 v67, s56, v69
""")
        for k in range(4):
            e("v_mul_f32 v%d, s57, v%d" % (72 + k, 64 + k))
        for k in range(4):
            e("v_exp_f32 v%d, v%d" % (72 + k, 72 + k))
        for k in range(4):
            e("v_add_f32 v%d, 1.0, v%d" % (72 + k, 72 + k))
        for k in range(4):
            e("v_rcp_f32 v%d, v%d" % (72 + k, 72 + k))
        for k in range(4):
            e("v_mul_f32 v%d, v%d, v%d" % (72 + k, 72 + k, 64 + k))
        e("""
v_cvt_pk_bf16_f32 v68, v72, v73
v_cvt_pk_bf16_f32 v69, v74, v75
s_nop 1
v_permlane32_swap_b32 v70, v68
v_permlane32_swap_b32 v71, v69
s_nop 0
""")
        self.o[-3] = "    v_permlane32_swap_b32 v68, v70"
        self.o[-2] = "    v_permlane32_swap_b32 v69, v71"
        e("""
v_lshlrev_b32 v72, 16, v70
v_and_b32 v73, s56, v70
v_lshlrev_b32 v74, 16, v71
v_and_b32 v75, s56, v71
""")
        for k in range(4):
            e("v_mul_f32 v%d, v%d, v%d" % (64 + k, 64 + k, 72 + k))
        e("""
v_cvt_pk_bf16_f32 v68, v64, v65
v_cvt_pk_bf16_f32 v69, v66, v67
v_lshlrev_b32 v64, 16, v68
v_and_b32 v65, s56, v68
v_lshlrev_b32 v66, 16, v69
v_and_b32 v67, s56, v69
v_add_f32 v64, v64, v76
v_add_f32 v65, v65, v77
v_add_f32 v66, v66, v78
v_add_f32 v67, v67, v79
v_cvt_pk_bf16_f32 v68, v64, v65
v_cvt_pk_bf16_f32 v69, v66, v67
s_mov_b64 exec, 0xff
buffer_store_dwordx2 v[68:69], v42, s[60:63], s54 offen%s
""" % self.outflag)
        self.stamp(6)
        self.label("L_cs_end")
        if self.stamps:
            e("s_waitcnt vmcnt(0)")
            self.stamp(9)
            self.flush_stamps([(4, 32), (10, 33), (8, 34), (5, 35), (6, 36), (9, 37), (7, 38)], wave_off=True)
            e("s_cmp_lg_u32 s36, 0\ns_cbranch_scc1 L_end")
            self.flush_stamps([(0, 11), (1, 12), (2, 13), (3, 14), (4, 8), (5, 15), (7, 22), (8, 23), (6, 24), (9, 10)])
        self.label("L_end")
        e("s_endpgm")
        self.label("L_code_end")

    def build(self):
        hdr = open("cdna_kernels/%s.s.ref" % KN).read().split("\n")
        head = []
        for l in hdr:
            if l.startswith("; @launch"):
                break
            head.append(l)
        head.append("; @launch grid=(256,1,1) block=(384,1,1) lds=%d" % LDS_TOTAL)
        head += """;
; One persistent launch, 256 workgroups (one per CU) x 6 waves.  Written with a generator script (dev/gen.py).
;   wg = 8*idx + x.  Attention: kv head 2x + (idx>>4), batch (idx>>2)&3, 512-key split idx&3 of the 2048-key window.
;   Weight role: idx<8 'Q' (64 wq columns), idx<17 gate / idx<26 up (64 columns, plus a 256x64 tile of wo),
;                idx>=26 a 288x192 tile of w_down.
;   wave 0  loader  : streams [column tile][K][V][wo / w_down tile] into a 148 KiB LDS ring with LDS-DMA; 20..32 KiB in
;                     flight, more for a workgroup whose stream lags (so that all 256 streams end together)
;   wave 1  comm    : cross-workgroup hand-offs (q, gate/up -> h, softmax stats)
;   wave 2-5        : LayerNorm, MFMA GEMVs, QK^T, softmax (true max, combined over waves and splits), PV, output
; Hand-offs go through d_ws with sc1 (write-through) stores and sc1 loads.  Every hand-off word is first set to the
; sentinel 0xffffffff by a Q workgroup, which then raises its flag in d_debug.  A word is published only after its
; clear has completed and read only after all 64 flags are up; a reader retries while it still sees the sentinel.
; All spins are bounded.
""".split("\n")[:-1]
        head += ['.amdgcn_target "amdgcn-amd-amdhsa--gfx950"', ".text", ".globl %s_kernel" % KN, ".p2align 8",
                 ".type %s_kernel,@function" % KN, "%s_kernel:" % KN]
        self.prologue()
        self.loader()
        self.comm()
        self.cons()
        tail = """.section .rodata,"a"
.p2align 6
.amdhsa_kernel %s_kernel
  .amdhsa_next_free_vgpr 256
  .amdhsa_next_free_sgpr 102
  .amdhsa_accum_offset 256
  .amdhsa_group_segment_fixed_size 0
  .amdhsa_kernarg_size 96
  .amdhsa_user_sgpr_count 2
  .amdhsa_user_sgpr_kernarg_segment_ptr 1
  .amdhsa_system_sgpr_workgroup_id_x 1
  .amdhsa_float_denorm_mode_32 3
.end_amdhsa_kernel
""" % KN
        return "\n".join(head + self.o) + "\n" + tail


if __name__ == "__main__":
    import argparse
    ap = argparse.ArgumentParser()
    ap.add_argument("out")
    ap.add_argument("--stamps", action="store_true")
    ap.add_argument("--W", type=int, default=20)
    ap.add_argument("--nont", action="store_true")
    ap.add_argument("--tsleep", type=int, default=1)
    ap.add_argument("--csleep", type=int, default=0)
    ap.add_argument("--abl", type=str, default="")
    ap.add_argument("--gearly", type=int, default=-16)
    ap.add_argument("--isleep", type=int, default=4)
    ap.add_argument("--Wlate", type=int, default=0)
    ap.add_argument("--pipe", type=int, default=3)
    ap.add_argument("--adapt", action="store_true")
    ap.add_argument("--wlevels", type=str, default="16,20,24,28")
    ap.add_argument("--wthr", type=str, default="-20,20,55")
    ap.add_argument("--outflag", type=str, default="")
    ap.add_argument("--gpos", type=str, default="32")
    ap.add_argument("--Wc3", type=int, default=0)
    ap.add_argument("--Wcol", type=int, default=0)
    ap.add_argument("--ilv", type=int, default=0)
    ap.add_argument("--cpf", type=int, default=0)
    ap.add_argument("--wrole", type=str, default="20,20,20,24")
    ap.add_argument("--npre", type=int, default=6)
    ap.add_argument("--pace", type=str, default="30,3.40,20")
    ap.add_argument("--plevels", type=str, default="20,24,28,32")
    ap.add_argument("--pslow", type=int, default=40)
    ap.add_argument("--stat_i", type=int, default=2)
    ap.add_argument("--fpos", type=int, default=312)
    ap.add_argument("--opipe", type=int, default=1)
    ap.add_argument("--ogap", type=int, default=2)
    ap.add_argument("--osleep", type=int, default=2)
    ap.add_argument("--glob", type=int, default=0)
    ap.add_argument("--qpos", type=int, default=120)
    ap.add_argument("--qposd", type=int, default=130)
    ap.add_argument("--noprobe", action="store_true")
    ap.add_argument("--wsoff", type=lambda x: int(x, 0), default=0)
    a = ap.parse_args()
    open(a.out, "w").write(Gen(W=a.W, stamps=a.stamps, nt=not a.nont, tsleep=a.tsleep, csleep=a.csleep, abl=a.abl.split(","), gearly=a.gearly, isleep=a.isleep, wsoff=a.wsoff, qpos=a.qpos, qposd=a.qposd, probe=not a.noprobe, Wlate=a.Wlate, pipe=a.pipe, glob=a.glob, osleep=a.osleep, opipe=a.opipe, ogap=a.ogap, fpos=a.fpos, stat_i=a.stat_i, pslow=a.pslow, plevels=tuple(int(x) for x in a.plevels.split(",")), pace=(tuple(float(x) if "." in x else int(x) for x in a.pace.split(",")) if a.pace else None), npre=a.npre, wrole=tuple(int(x) for x in a.wrole.split(",")), cpf=a.cpf, ilv=a.ilv, Wc3=a.Wc3, Wcol=a.Wcol, gpos=tuple(int(x) for x in a.gpos.split(",")), outflag=(" " + a.outflag.replace("_", " ") if a.outflag else ""), adapt=a.adapt, wlevels=tuple(int(x) for x in a.wlevels.split(",")), wthr=tuple(int(x) for x in a.wthr.split(","))).build())
```

```python
import sys, struct

KN = "recurrent_scan__sliding_block_cached__geglu_ffn__decode"

RING_KB = 148
RING_BYTES = RING_KB * 1024
AUX = RING_BYTES
XN = AUX
XN_STRIDE = 1216
H_STRIDE = 576
QL = AUX + 4864
OW = AUX + 5376
FULL = AUX + 9472
FREE = AUX + 9728
STW = AUX + 9744
SC = AUX + 9808
CNT_STAT = AUX + 9840
CNT_O = AUX + 9844
FLAG_Q = AUX + 9848
FLAG_H = AUX + 9852
FLAG_SC = AUX + 9856
CNT_P = AUX + 9860
CNT_C = AUX + 9864
FLAG_CLR = AUX + 9868
WCLS = AUX + 9872
FLAG_F = AUX + 9876
CNT_M = AUX + 9880
PB = OW
FAC = QL
OB = AUX + 9984
LDS_TOTAL = AUX + 9984 + 2048

WS_CQ = 0
CQ_STRIDE = 8192
WS_CGU = 0x8000
CGU_STRIDE = 18432
SH_BASE = 0x8000
WS_ST = 0x1A000
WS_OP = 0x1E000
WS_PART = 0x5E000
PART_ROW = 9216
WS_SIZE = 0x5E000 + 32 * 9216
RW = XN

P_K, P_V, P_W = 72, 200, 328

def f32(x):
    return "0x%08x" % struct.unpack("<I", struct.pack("<f", x))[0]

LOG2E = 1.4426950408889634


class Gen:
    def __init__(self, W=20, stamps=False, nt=True, spin=1 << 16, sleep=True, tsleep=1, csleep=0, abl=(), gearly=-16, isleep=12, wsoff=0, qpos=120, qposd=130, probe=True, Wlate=None, gpos=(28,), glob=0, opipe=1, ogap=2, osleep=0, stat_i=2, fpos=312, pace=None, plevels=(20, 24, 28, 32), pslow=40, npre=6, wrole=(20, 22, 22, 24), cpf=0, ilv=0, Wc3=0, Wcol=0, pipe=3, outflag="", adapt=False, wlevels=(16, 20, 24, 28), wthr=(-20, 20, 55)):
        self.o = []
        self.n = 0
        self.W = W
        self.glob = glob
        self.osleep = osleep
        self.opipe = opipe
        self.ogap = ogap
        self.fpos = fpos
        self.stat_i = stat_i
        self.pslow = pslow
        self.pace = pace
        self.plevels = plevels
        self.npre = npre
        self.wrole = wrole
        self.cpf = cpf
        self.ilv = ilv
        self.Wc3 = Wc3
        self.Wcol = Wcol
        self.gpos = gpos
        self.outflag = outflag
        self.adapt = adapt
        self.wlevels = wlevels
        self.wthr = wthr
        self.pipe = pipe
        self.Wlate = Wlate or W
        self.stamps = stamps
        self.nt = " nt" if nt else ""
        self.spin = spin
        self.sleep = sleep
        self.qpos = qpos
        self.qposd = qposd
        self.fgap = 32
        self.mbase = 4
        self.hpos = 190
        self.probe = probe
        self.gearly = gearly
        self.wsoff = wsoff
        self.isleep = isleep
        self.tsleep = tsleep
        self.abl = set(abl)
        self.csleep = csleep

    def e(self, s):
        for line in s.strip("\n").split("\n"):
            self.o.append(line if line.rstrip().endswith(":") and not line.startswith(" ") else "    " + line.strip())

    def lab(self, p="L"):
        self.n += 1
        return "%s_%d" % (p, self.n)

    def label(self, l):
        self.o.append(l + ":")

    def sreg(self, k):
        return 70 + 2 * k if k < 10 else 92 + 2 * (k - 10)

    def stamp(self, k):
        if self.stamps:
            self.e("s_memrealtime s[%d:%d]" % (self.sreg(k), self.sreg(k) + 1))

    def rawstamp(self, k, expr_reg):
        if self.stamps:
            self.e("s_sub_u32 s%d, %d, %s\ns_mov_b32 s%d, 0" % (self.sreg(k), self.spin, expr_reg, self.sreg(k) + 1))

    def flush_stamps(self, items, wave_off=False):
        if not self.stamps:
            return
        self.e("""
s_waitcnt lgkmcnt(0)
s_add_u32 s64, s26, 0x10000000
s_addc_u32 s65, s27, 0
s_mov_b32 s66, 0x100000
s_mov_b32 s67, 0x00020000
s_mul_i32 s68, s2, 512
s_mov_b64 exec, 1
""")
        if wave_off:
            self.e("s_lshl_b32 s64, s36, 6\ns_add_u32 s68, s68, s64\ns_add_u32 s64, s26, 0x10000000")
        for k, slot in items:
            self.e("""
v_mov_b32 v250, s%d
v_mov_b32 v251, s%d
v_mov_b32 v252, %d
buffer_store_dwordx2 v[250:251], v252, s[64:67], s68 offen
s_nop 1
""" % (self.sreg(k), self.sreg(k) + 1, slot * 8))

    def wait_lds(self, vaddr, sreg, thr, vtmp, cached=True, sleep=0):
        l = self.lab("Lw")
        d = self.lab("Ld")
        if cached:
            self.e("s_cmp_ge_i32 %s, %s\ns_cbranch_scc1 %s" % (sreg, thr, d))
        self.label(l)
        self.e("ds_read_b32 %s, %s\ns_waitcnt lgkmcnt(0)\nv_readfirstlane_b32 %s, %s" % (vtmp, vaddr, sreg, vtmp))
        self.e("s_cmp_ge_i32 %s, %s\ns_cbranch_scc1 %s" % (sreg, thr, d))
        sleep = sleep or self.csleep
        if sleep:
            self.e("s_sleep %d" % sleep)
        self.e("s_sub_i32 s69, s69, 1\ns_cmp_gt_i32 s69, 0\ns_cbranch_scc1 %s" % l)
        self.label(d)

    def prologue(self):
        self.e("""
s_cmp_ge_u32 s2, 256
s_cbranch_scc1 L_end
s_load_dwordx16 s[4:19], s[0:1], 0
s_load_dwordx8 s[20:27], s[0:1], 64
v_lshrrev_b32 v1, 6, v0
v_and_b32 v0, 63, v0
s_and_b32 s30, s2, 7
s_mov_b32 s69, 0x400000
v_readfirstlane_b32 s36, v1
s_lshr_b32 s31, s2, 3
s_lshr_b32 s32, s31, 4
s_lshl_b32 s33, s30, 1
s_add_u32 s32, s32, s33
s_lshr_b32 s34, s31, 2
s_and_b32 s34, s34, 3
s_and_b32 s35, s31, 3
s_lshl_b32 s33, s34, 4
s_add_u32 s33, s33, s32
s_cmp_eq_u32 s36, %d
s_cbranch_scc1 L_comm
s_cmp_lg_u32 s36, 0
s_cbranch_scc1 L_cons
""" % (4 if "perm" in self.abl else 1))

    def tile_ids(self):
        self.e("""
s_sub_u32 s38, s31, 8
s_cmp_ge_u32 s38, 9
s_cselect_b32 s37, 1, 0
s_cselect_b32 s39, 9, 0
s_sub_u32 s38, s38, s39
s_cmp_ge_u32 s31, 26
s_cbranch_scc0 %(l)s
s_sub_u32 s38, s31, 26
s_cmp_ge_u32 s38, 3
s_cselect_b32 s37, 17, 16
s_cselect_b32 s39, 3, 0
s_sub_u32 s38, s38, s39
%(l)s:
s_lshl_b32 s39, s30, 1
s_add_u32 s37, s37, s39
""" % dict(l=self.lab("Lt")))

    def loader(self):
        W = self.W
        nt = self.nt
        e = self.e
        self.stamp(0)
        e("""
s_setprio 3
PACE0
v_lshrrev_b32 v12, 3, v0
v_and_b32 v13, 7, v0
v_and_b32 v14, 6, v12
v_xor_b32 v13, v13, v14
v_lshlrev_b32 v13, 4, v13
s_lshl_b32 s46, s33, 21
s_lshl_b32 s47, s35, 17
s_add_u32 s46, s46, s47
s_add_u32 s46, s46, 0x180000
s_mov_b32 s63, 0x00020000
s_cmp_lt_u32 s31, 26
s_cbranch_scc1 L_ld_cfirst
v_lshrrev_b32 v8, 4, v0
v_and_b32 v9, 15, v0
v_lshlrev_b32 v10, 1, v8
v_xor_b32 v11, v9, v10
v_lshlrev_b32 v11, 4, v11
v_lshl_add_u32 v3, v8, 8, v11
v_xor_b32 v4, 0x80, v3
v_mov_b32 v5, v3
v_mov_b32 v6, v4
s_movk_i32 s41, 4096
s_mov_b32 s51, s46
s_mov_b32 s43, 0
s_mov_b32 s62, 0x8000000
s_mov_b32 m0, 0x12000
s_waitcnt lgkmcnt(0)
s_mov_b32 s60, s6
s_mov_b32 s61, s7
s_branch L_ld_pre
L_ld_cfirst:
s_mul_i32 s43, s30, 9
s_add_u32 s43, s43, s31
s_cmp_lt_u32 s31, 17
s_cselect_b32 s44, 8, 17
s_movk_i32 s40, 0x2400
s_cmp_lt_u32 s31, 8
s_cselect_b32 s44, s30, s44
s_cselect_b32 s40, 0x2000, s40
s_sub_u32 s43, s43, s44
s_lshl_b32 s51, s43, 7
v_mad_u32_u24 v3, v12, s40, v13
s_lshl_b32 s41, s40, 5
s_lshl_b32 s42, s40, 3
s_sub_u32 s42, s42, 1024
v_add_u32 v4, s42, v3
v_add_u32 v5, s42, v4
v_add_u32 v6, s42, v5
s_mul_i32 s62, s40, 576
s_mov_b32 m0, 0
s_cmp_lt_u32 s31, 17
s_waitcnt lgkmcnt(0)
s_cselect_b32 s60, s16, s18
s_cselect_b32 s61, s17, s19
s_cmp_lt_u32 s31, 8
s_cselect_b32 s60, s10, s60
s_cselect_b32 s61, s11, s61
L_ld_pre:
""".replace("PACE0\n", "s_memrealtime s[28:29]\n" if self.pace else ""))
        self.stamp(4)
        for k in range(self.npre):
            if k:
                e("s_add_u32 m0, m0, 4096\ns_add_u32 s51, s51, s41")
            for i, p in enumerate([3, 4, 5, 6]):
                off = " offset:%d" % (i * 1024) if i else ""
                e("buffer_load_dwordx4 v%d, s[60:63], s51 offen%s%s lds" % (p, off, nt))
        e("s_add_u32 s51, s51, s41")
        self.stamp(5)
        kvpat = """
v_lshrrev_b32 v8, 4, v0
v_and_b32 v9, 15, v0
v_lshlrev_b32 v10, 1, v8
v_xor_b32 v11, v9, v10
v_lshlrev_b32 v11, 4, v11
v_lshl_add_u32 v1, v8, 8, v11
v_xor_b32 v2, 0x80, v1
"""
        e(kvpat)
        e("""
v_mul_u32_u24 v20, 1152, v12
v_add_u32 v20, v20, v13
v_add_u32 v21, 8192, v20
v_add_u32 v22, 8192, v21
v_add_u32 v23, 8192, v22
""")
        for i in range(3):
            e("""
v_add_u32 v12, %d, v0
v_mul_u32_u24 v13, 2731, v12
v_lshrrev_b32 v13, 16, v13
v_mul_u32_u24 v14, 24, v13
v_sub_u32 v14, v12, v14
v_and_b32 v15, 6, v13
v_xor_b32 v14, v14, v15
v_mul_u32_u24 v13, 1152, v13
v_lshl_add_u32 v%d, v14, 4, v13
""" % (64 * i, 17 + i))
        e("""
v_mov_b32 v7, v17
v_add_u32 v8, 0xfffffc00, v18
v_add_u32 v9, 0xfffff800, v19
v_lshlrev_b32 v10, 2, v0
v_add_u32 v10, %d, v10
v_mov_b32 v11, %d
v_mov_b32 v18, %d
s_mov_b32 s55, 0
""" % (FULL, FREE, WCLS))
        self.tile_ids()
        cur = [W]

        def run(pats, step_reg_or_imm, n_iter, check_free, label=None):
            n = len(pats)
            L = self.lab("Lrun")
            e("s_mov_b32 s52, %d" % n_iter)
            self.label(L)
            if check_free:
                ok = self.lab("Lok")
                sl = self.lab("Lsl")
                e("s_add_i32 s54, s53, %d\ns_cmp_le_i32 s54, s55\ns_cbranch_scc1 %s" % (n - RING_KB, ok))
                self.label(sl)
                e("""
ds_read_b128 v[12:15], v11
s_waitcnt lgkmcnt(0)
v_min_u32 v12, v12, v13
v_min3_u32 v12, v12, v14, v15
s_nop 0
v_readfirstlane_b32 s55, v12
s_cmp_le_i32 s54, s55
s_cbranch_scc1 %s
s_sub_i32 s69, s69, 1
s_cmp_gt_i32 s69, 0
s_cbranch_scc1 %s
""" % (ok, sl))
                self.label(ok)
            e("s_mov_b32 m0, s50")
            e("s_add_u32 s50, s50, %d" % (n * 1024))
            for i, p in enumerate(pats):
                off = " offset:%d" % (i * 1024) if i else ""
                e("buffer_load_dwordx4 v%d, s[60:63], s51 offen%s%s lds" % (p, off, nt))
            e("s_add_u32 s51, s51, %s" % step_reg_or_imm)
            e("s_cmp_eq_u32 s50, %d\ns_cselect_b32 s50, 0, s50" % RING_BYTES)
            e("s_add_u32 s53, s53, %d" % n)
            lv = sorted(set(self.wrole) if not self.pace else self.plevels, reverse=True)
            if len(lv) > 1:
                dn = self.lab("Lwd")
                for i, w in enumerate(lv):
                    e("s_waitcnt vmcnt(%d)" % w)
                    if i < len(lv) - 1:
                        e("s_cmp_ge_u32 s57, %d\ns_cbranch_scc1 %s" % (w, dn))
                self.label(dn)
                e("s_sub_u32 s54, s53, s57\nv_mov_b32 v16, s54\nds_write_b32 v10, v16")
            else:
                e("s_waitcnt vmcnt(%d)" % cur[0])
                e("s_sub_u32 s54, s53, %d\nv_mov_b32 v16, s54\nds_write_b32 v10, v16" % cur[0])
            e("s_sub_u32 s52, s52, 1\ns_cmp_lg_u32 s52, 0\ns_cbranch_scc1 %s" % L)

        def batch(pats, srd, soff, step):
            n = len(pats)
            e("s_mov_b32 m0, s50")
            e("s_add_u32 s50, s50, %d" % (n * 1024))
            for i, p in enumerate(pats):
                off = " offset:%d" % (i * 1024) if i else ""
                e("buffer_load_dwordx4 v%d, s[%d:%d], %s offen%s%s lds" % (p, srd, srd + 3, soff, off, nt))
            e("s_add_u32 %s, %s, %s" % (soff, soff, step))
            e("s_add_u32 s53, s53, %d" % n)
            e("s_waitcnt vmcnt(%d)" % cur[0])
            e("s_sub_u32 s54, s53, %d\nv_mov_b32 v16, s54\nds_write_b32 v10, v16" % cur[0])

        def ilv_run():
            L = self.lab("Lilv")
            M = self.lab("Lilm")
            e("s_mov_b32 s64, s6\ns_mov_b32 s65, s7\ns_mov_b32 s66, 0x8000000\ns_mov_b32 s67, 0x00020000\ns_mov_b32 s52, 9\ns_branch %s" % M)
            self.label(L)
            batch([3, 4, 5, 6], 60, "s51", "s41")
            self.label(M)
            batch([3, 4, 5, 6], 60, "s51", "s41")
            batch([1, 2, 1, 2], 64, "s46", "4096")
            e("s_sub_u32 s52, s52, 1\ns_cmp_lg_u32 s52, 0\ns_cbranch_scc1 %s" % L)
            e("s_mov_b32 s56, 23\ns_branch L_ld_k")

        def pace():
            if not self.pace:
                return
            A, B, step = self.pace
            if self.glob:
                e("ds_read_b32 v17, v18")
            e("s_memrealtime s[64:65]\ns_sub_u32 s54, s53, s58\ns_mul_i32 s54, s54, %d\ns_lshr_b32 s54, s54, 8\ns_waitcnt lgkmcnt(0)" % int(B * 256))
            if self.glob:
                e("v_readfirstlane_b32 s65, v17\ns_cmp_lg_u32 s65, 0\ns_cselect_b32 s28, s65, s28")
            e("s_sub_u32 s64, s64, s28\ns_sub_u32 s64, s64, s54\ns_mov_b32 s57, s59")
            lv = sorted(self.plevels)
            for k in range(1, 4):
                e("s_add_u32 s54, s59, %d\ns_cmp_ge_i32 s64, %d\ns_cselect_b32 s57, s54, s57" % (4 * k, A + k * step))
            e("s_min_u32 s57, s57, %d" % max(lv))
            if min(lv) < 20:
                e("s_cmp_lt_i32 s64, %d\ns_cselect_b32 s57, %d, s57" % (A - self.pslow, min(lv)))

        def stream(W, sfx):
            cur[0] = W
            o0 = len(self.o)
            e("s_barrier\ns_cmp_ge_u32 s31, 26\ns_cbranch_scc1 L_ld_nocol")
            e("s_mov_b32 s50, %d\ns_mov_b32 s53, %d\ns_mov_b32 s56, 32" % (4096 * self.npre, 4 * self.npre))
            run([3, 4, 5, 6], "s41", 18 - self.npre, False)
            e("s_branch L_ld_k")
            self.label("L_ld_nocol")
            e("s_mov_b32 s46, s51\ns_mov_b32 s50, %d\ns_mov_b32 s53, %d\ns_mov_b32 s56, %d" % ((P_K + 4 * self.npre) * 1024, P_K + 4 * self.npre, 32 - self.npre))
            self.label("L_ld_k")
            self.stamp(1)
            e("s_mov_b32 s60, s6\ns_mov_b32 s61, s7\ns_mov_b32 s62, 0x8000000\ns_mov_b32 s51, s46")
            if "fine" in self.abl:
                for q in range(4):
                    run([1, 2, 1, 2], "4096", 8, True)
                    self.stamp(4 + q)
                e("s_mov_b32 s60, s8\ns_mov_b32 s61, s9\ns_mov_b32 s51, s46")
                for q in range(4):
                    run([1, 2, 1, 2], "4096", 8, True)
                    if q < 3:
                        self.stamp(8 + q)
            else:
                if self.pace:
                    e("s_sub_u32 s52, s56, 24\ns_mov_b32 s56, 8")
                    self.label("L_ld_seg")
                    pace()
                    o1 = len(self.o)
                    run([1, 2, 1, 2], "4096", 8, True)
                    del self.o[o1]
                    e("s_cmp_lg_u32 s56, 5\ns_cbranch_scc1 L_ld_seg2\ns_mov_b32 s60, s8\ns_mov_b32 s61, s9\ns_sub_u32 s51, s51, 0x20000")
                    self.label("L_ld_seg2")
                    e("s_mov_b32 s52, 8\ns_sub_u32 s56, s56, 1\ns_cmp_lg_u32 s56, 0\ns_cbranch_scc1 L_ld_seg")
                    pace()
                else:
                    o1 = len(self.o)
                    run([1, 2, 1, 2], "4096", 32, True)
                    self.o[o1] = "    s_mov_b32 s52, s56"
                if self.pace:
                    pass
                else:
                    e("s_mov_b32 s60, s8\ns_mov_b32 s61, s9\ns_sub_u32 s51, s51, 0x20000")
                    run([1, 2, 1, 2], "4096", 32, True)
            self.stamp(2)
            e("""
s_cmp_ge_u32 s31, 26
s_cbranch_scc1 L_ld_down
s_cmp_lt_u32 s31, 8
s_cbranch_scc1 L_ld_drain
s_mov_b32 s60, s12
s_mov_b32 s61, s13
s_mov_b32 s62, %d
s_mul_i32 s51, s37, 294912
s_lshl_b32 s54, s38, 7
s_add_u32 s51, s51, s54
""" % (4096 * 1152))
            run([20, 21, 22, 23], "36864", 8, True)
            e("s_branch L_ld_drain")
            self.label("L_ld_down")
            e("""
s_mov_b32 s60, s20
s_mov_b32 s61, s21
s_mov_b32 s62, %d
s_sub_u32 s51, s37, 16
s_mul_i32 s51, s51, 331776
s_mul_i32 s54, s38, 384
s_add_u32 s51, s51, s54
""" % (4608 * 1152))
            if self.pace:
                e("s_mov_b32 s56, 3")
                self.label("L_ld_dseg")
                run([7, 8, 9], "9216", 12, True)
                pace()
                e("s_sub_u32 s56, s56, 1\ns_cmp_lg_u32 s56, 0\ns_cbranch_scc1 L_ld_dseg")
            else:
                run([7, 8, 9], "9216", 36, True)
            self.label("L_ld_drain")
            for w in (32, 28, 24, 20, 16, 12, 8, 4, 0):
                if w < (max(self.wrole) if not self.pace else max(self.plevels)):
                    e("s_waitcnt vmcnt(%d)\ns_sub_u32 s54, s53, %d\nv_mov_b32 v16, s54\nds_write_b32 v10, v16" % (w, w))
            self.stamp(3)
            if self.stamps:
                e("s_getreg_b32 s%d, hwreg(HW_REG_HW_ID)\ns_mov_b32 s%d, 0" % (self.sreg(12), self.sreg(12) + 1))
            self.flush_stamps([(0, 0), (1, 1), (2, 2), (3, 3), (12, 21)] + ([(4 + q, 25 + q) for q in range(7)] if ("fine" in self.abl or "first" in self.abl) else []))
            e("s_endpgm")
            for i in range(o0, len(self.o)):
                self.o[i] = self.o[i].replace("L_ld_", "L_ld%s_" % sfx)

        wg_, wq_, wd_, w3_ = self.wrole
        e("""
s_mov_b32 s57, %d
s_cmp_lt_u32 s31, 8
s_cselect_b32 s57, %d, s57
s_and_b32 s54, s43, 7
s_cmp_eq_u32 s54, 3
s_cselect_b32 s57, %d, s57
s_cmp_ge_u32 s31, 26
s_cselect_b32 s57, %d, s57
s_cselect_b32 s58, %d, 0
s_mov_b32 s59, s57
""" % (wg_, wq_, w3_, wd_, P_K))
        stream(self.W, "")

    def gather(self, loads, regs, vt, strycnt="s59", sleep=8, preissued=False, idle_sleep=0):
        e = self.e
        L = self.lab("Lg")
        D = self.lab("Lgd")
        P = self.lab("Lgp")
        n = len(loads)
        per = len(regs) // n
        assert n <= 6
        masks = [(self.mbase + 2 * k) for k in range(n)]
        e("s_mov_b32 %s, %d\ns_mov_b64 s[90:91], exec" % (strycnt, self.spin))
        if not preissued:
            for l in loads:
                e(l)
        e("s_branch %s" % P)
        self.label(L)
        for k, l in enumerate(loads):
            if n > 1:
                S = self.lab("Lgs")
                e("s_mov_b64 exec, s[%d:%d]\ns_cbranch_execz %s" % (masks[k], masks[k] + 1, S))
                e(l)
                self.label(S)
            else:
                e("s_mov_b64 exec, vcc")
                e(l)
        e("s_mov_b64 exec, s[90:91]")
        self.label(P)
        e("s_waitcnt vmcnt(0)")
        for k in range(n):
            rs = list(regs[k * per:(k + 1) * per])
            if len(rs) == 2:
                e("v_max_u32 v%d, v%d, v%d" % (vt + k, rs[0], rs[1]))
            else:
                e("v_max3_u32 v%d, v%d, v%d, v%d\nv_max_u32 v%d, v%d, v%d" % (vt + k, rs[0], rs[1], rs[2], vt + k, vt + k, rs[3]))
        if n == 1:
            e("v_cmp_eq_u32 vcc, -1, v%d" % vt)
        else:
            rs = [vt + k for k in range(n)]
            t = vt + n
            e("v_max_u32 v%d, v%d, v%d" % (t, rs[0], rs[1]))
            rs = rs[2:]
            while rs:
                if len(rs) >= 2:
                    e("v_max3_u32 v%d, v%d, v%d, v%d" % (t, t, rs[0], rs[1]))
                    rs = rs[2:]
                else:
                    e("v_max_u32 v%d, v%d, v%d" % (t, t, rs[0]))
                    rs = []
            e("v_cmp_eq_u32 vcc, -1, v%d" % t)
        e("s_cbranch_vccz %s" % D)
        if n > 1:
            for k in range(n):
                e("v_cmp_eq_u32 s[%d:%d], -1, v%d" % (masks[k], masks[k] + 1, vt + k))
        if idle_sleep:
            Z = self.lab("Lgz")
            e("s_and_b64 s[%d:%d], s[%d:%d], s[%d:%d]" % (self.mbase + 12, self.mbase + 13, masks[0], masks[0] + 1, masks[1], masks[1] + 1))
            e("s_cmp_lg_u64 s[%d:%d], s[90:91]\ns_cbranch_scc1 %s\ns_sleep %d" % (self.mbase + 12, self.mbase + 13, Z, idle_sleep))
            self.label(Z)
        if sleep:
            e("s_sleep %d" % sleep)
        e("s_sub_u32 %s, %s, 1\ns_cmp_lg_u32 %s, 0\ns_cbranch_scc1 %s" % (strycnt, strycnt, strycnt, L))
        self.label(D)

    def gather_pipe(self, loads, regs, vt, depth=3, gap=2, preissued=0):
        e = self.e
        L = self.lab("Lgq")
        D = self.lab("Lgqd")
        n = len(loads)
        e("s_mov_b32 s59, %d\ns_mov_b64 s[90:91], exec" % self.spin)
        for r in range(depth - 1 - preissued):
            for l in loads:
                e(l)
            e("s_sleep %d" % gap)
        self.label(L)
        for l in loads:
            e(l)
        e("s_mov_b64 exec, s[90:91]")
        e("s_waitcnt vmcnt(%d)" % (n * (depth - 1)))
        rs = list(regs)
        e("v_max3_u32 v%d, v%d, v%d, v%d" % (vt, rs[0], rs[1], rs[2]))
        e("v_max3_u32 v%d, v%d, v%d, v%d" % (vt + 1, rs[3], rs[4], rs[5]))
        rs = rs[6:]
        i = 0
        while rs:
            e("v_max3_u32 v%d, v%d, v%d, v%d" % (vt + i, vt + i, rs[0], rs[1]))
            rs = rs[2:]
            i ^= 1
        e("v_max_u32 v%d, v%d, v%d" % (vt, vt, vt + 1))
        e("v_cmp_eq_u32 vcc, -1, v%d" % vt)
        e("s_cbranch_vccz %s" % D)
        e("s_mov_b64 exec, vcc")
        e("s_sub_u32 s59, s59, 1\ns_cmp_lg_u32 s59, 0\ns_cbranch_scc1 %s" % L)
        e("s_mov_b64 exec, s[90:91]")
        self.label(D)

    def ws_srd(self):
        if self.wsoff:
            self.e("s_add_u32 s40, s26, %d\ns_addc_u32 s41, s27, 0" % self.wsoff)
        else:
            self.e("s_mov_b32 s40, s26\ns_mov_b32 s41, s27")
        self.e("s_mov_b32 s42, %d\ns_mov_b32 s43, 0x00020000" % WS_SIZE)

    def set_flag(self, addr, vt0, vt1):
        self.e("s_mov_b64 exec, 1\nv_mov_b32 v%d, %d\nv_mov_b32 v%d, 1\nds_write_b32 v%d, v%d\ns_mov_b64 exec, -1" % (vt0, addr, vt1, vt0, vt1))

    def comm(self):
        e = self.e
        self.label("L_comm")
        e("""
v_lshlrev_b32 v1, 3, v0
v_add_u32 v1, %d, v1
v_mov_b32 v2, 0
v_mov_b32 v3, 0
ds_write_b64 v1, v[2:3]
v_mov_b32 v4, -1
v_mov_b32 v5, -1
v_mov_b32 v6, -1
v_mov_b32 v7, -1
v_lshlrev_b32 v8, 4, v0
""" % FULL)
        if self.glob:
            e("s_memrealtime s[28:29]")
        self.tile_ids()
        self.ct_id()
        share = (WS_SIZE - SH_BASE) // 64
        assert share * 64 == WS_SIZE - SH_BASE and share % 128 == 0
        e("""
s_lshl_b32 s45, s33, 2
s_add_u32 s45, s45, s35
s_movk_i32 s46, %d
s_cmp_lt_u32 s31, 8
s_cselect_b32 s46, %d, s46
s_cselect_b32 s47, 0, %d
s_mul_i32 s52, s44, %d
s_lshl_b32 s44, s44, 7
s_add_u32 s44, s44, s47
v_lshrrev_b32 v9, 3, v0
v_mul_lo_u32 v9, v9, s46
v_and_b32 v10, 7, v0
v_lshl_add_u32 v9, v10, 4, v9
v_lshlrev_b32 v12, 2, v0
v_add_u32 v13, %d, v8
v_mov_b32 v23, %d
s_waitcnt lgkmcnt(0)
s_barrier
""" % (CGU_STRIDE, CQ_STRIDE, WS_CGU - 64 * 128, share, OB, CNT_C))
        if self.cpf:
            e("s_getpc_b64 s[54:55]")
            self.label("L_pc")
            e("s_sub_u32 s54, s54, L_pc-%s_kernel\ns_subb_u32 s55, s55, 0\ns_mul_i32 s56, s31, %d" % (KN, self.cpf * 128))
            for k in range(self.cpf):
                e("s_min_u32 s57, s56, L_code_end-%s_kernel-4\ns_load_dword s78, s[54:55], s57\ns_add_u32 s56, s56, 128" % KN)
        if "nocomm" in self.abl:
            e("s_waitcnt lgkmcnt(0)")
            self.set_flag(FLAG_Q, 21, 22)
            self.set_flag(FLAG_H, 21, 22)
            self.set_flag(FLAG_SC, 21, 22)
            e("s_endpgm")
        self.ws_srd()

        def c_store():
            self.wait_lds("v23", "s46", "4", "v14", cached=False, sleep=2)
            e("""
s_mov_b32 exec_hi, 0
ds_read_b128 v[16:19], v13
s_waitcnt lgkmcnt(0)
buffer_store_dwordx4 v[16:19], v9, s[40:43], s44 offen sc1
s_mov_b32 exec_hi, -1
""")
        e("""
s_mov_b32 s48, s24
s_mov_b32 s49, s25
s_mov_b32 s50, 256
s_mov_b32 s51, 0x00020000
s_cmp_ge_u32 s31, 8
s_cbranch_scc1 L_cm_noclr
s_mov_b32 exec_hi, 0
buffer_store_dwordx4 v[4:7], v9, s[40:43], s44 offen sc1
s_mov_b32 exec_hi, -1
s_add_u32 s52, s52, %d
""" % SH_BASE)
        for i in range(share // 1024):
            e("buffer_store_dwordx4 v[4:7], v8, s[40:43], s52 offen offset:%d sc1" % ((i % 4) * 1024))
            if i % 4 == 3:
                e("s_add_u32 s52, s52, 4096")
        rem = (share % 1024) // 16
        e("s_mov_b32 exec_hi, 0x%x" % ((1 << (rem - 32)) - 1))
        e("buffer_store_dwordx4 v[4:7], v8, s[40:43], s52 offen offset:%d sc1" % (((share // 1024) % 4) * 1024))
        e("""
s_lshr_b32 s46, s44, 5
FLAGVAL
v_mov_b32 v11, 0
s_mov_b64 exec, 1
s_waitcnt vmcnt(0)
buffer_store_dword v10, v11, s[48:51], s46 offen sc1
s_mov_b64 exec, -1
""".replace("FLAGVAL", "s_or_b32 s47, s28, 1\nv_mov_b32 v10, s47" if self.glob else "v_mov_b32 v10, 1"))
        self.stamp(7)
        c_store()
        self.label("L_cm_noclr")
        e("s_mov_b32 s47, %d\ns_cmp_ge_u32 s31, 26\ns_cselect_b32 s47, %d, s47\nv_mov_b32 v15, %d" % (self.qpos - self.fgap, P_K + self.qposd - self.fgap, FULL))
        self.wait_lds("v15", "s46", "s47", "v14", cached=False, sleep=4)
        self.stamp(8)
        L = self.lab("Lfl")
        D = self.lab("Lfld")
        e("s_mov_b32 s59, %d\ns_mov_b32 s46, 1" % self.spin)
        self.label(L)
        e("""
buffer_load_dword v14, v12, s[48:51], 0 offen sc1
s_waitcnt vmcnt(0)
v_cmp_eq_u32 vcc, 0, v14
s_cbranch_vccz %s
s_sleep 16
s_sub_u32 s59, s59, 1
s_cmp_lg_u32 s59, 0
s_cbranch_scc1 %s
""" % (D, L))
        if "nofl" in self.abl:
            del self.o[-8:]
        self.label(D)
        self.stamp(0)
        self.rawstamp(9, "s59")
        if self.glob:
            e("v_sub_u32 v16, s28, v14\nv_mov_b32 v17, %d\nv_med3_i32 v16, v16, v17, %d" % (-self.glob, 0) if False else
              "v_sub_u32 v16, s28, v14\nv_max_i32 v16, %d, v16\nv_min_i32 v16, %d, v16" % (-self.glob, self.glob))
            for ror in (1, 2, 4, 8):
                e("s_nop 1\nv_add_u32_dpp v16, v16, v16 row_ror:%d row_mask:0xf bank_mask:0xf" % ror)
            e("""
s_nop 0
v_readlane_b32 s52, v16, 0
v_readlane_b32 s53, v16, 16
v_readlane_b32 s54, v16, 32
v_readlane_b32 s55, v16, 48
s_add_i32 s52, s52, s53
s_add_i32 s54, s54, s55
s_add_i32 s52, s52, s54
s_ashr_i32 s52, s52, 6
s_sub_u32 s52, s28, s52
s_or_b32 s52, s52, 1
s_mov_b64 exec, 1
v_mov_b32 v16, %d
v_mov_b32 v17, s52
ds_write_b32 v16, v17
s_mov_b64 exec, -1
""" % WCLS)
        e("s_cmp_lt_u32 s31, 8\ns_cbranch_scc1 L_cm_nocs\ns_cmp_ge_u32 s31, 26\ns_cbranch_scc1 L_cm_nocs")
        c_store()
        self.label("L_cm_nocs")
        if "comm_fl" in self.abl:
            self.set_flag(FLAG_Q, 21, 22)
            self.set_flag(FLAG_H, 21, 22)
            self.set_flag(FLAG_SC, 21, 22)
            e("s_endpgm")
        e("s_add_u32 s47, s47, %d" % self.fgap)
        self.wait_lds("v15", "s46", "s47", "v14", cached=False, sleep=4)
        e("""
s_mul_i32 s46, s34, %d
s_lshl_b32 s47, s32, 9
s_add_u32 s46, s46, s47
s_mov_b32 exec_hi, 0
""" % CQ_STRIDE)
        if "noq" not in self.abl:
            self.gather(["buffer_load_dwordx4 v[16:19], v8, s[40:43], s46 offen sc1"], [16, 17, 18, 19], 20)
        e("v_add_u32 v21, %d, v8\nds_write_b128 v21, v[16:19]\ns_waitcnt lgkmcnt(0)" % QL)
        self.set_flag(FLAG_Q, 21, 22)
        self.stamp(1)
        self.rawstamp(10, "s59")
        if "comm_q" in self.abl:
            self.set_flag(FLAG_H, 21, 22)
            self.set_flag(FLAG_SC, 21, 22)
            e("s_endpgm")
        e("s_cmp_lt_u32 s31, 26\ns_cbranch_scc1 L_cm_noh")
        for i in range(3):
            e("""
v_add_u32 v16, %d, v0
v_mul_u32_u24 v17, 1821, v16
v_lshrrev_b32 v17, 16, v17
v_mul_u32_u24 v18, 36, v17
v_sub_u32 v18, v16, v18
v_mul_u32_u24 v19, %d, v17
v_lshl_add_u32 v%d, v18, 4, v19
v_mul_u32_u24 v19, %d, v17
v_lshrrev_b32 v20, 2, v18
v_lshl_add_u32 v19, v20, 6, v19
v_and_b32 v20, 1, v18
v_lshl_add_u32 v19, v20, 5, v19
v_bfe_u32 v20, v18, 1, 1
v_lshl_add_u32 v19, v20, 3, v19
v_add_u32 v%d, %d, v19
""" % (64 * i, CGU_STRIDE, 24 + i, H_STRIDE, 27 + i, XN))
        e("""
v_cmp_gt_u32 vcc, 16, v0
s_nop 1
v_cndmask_b32 v26, v24, v26, vcc
v_cndmask_b32 v29, v27, v29, vcc
s_sub_u32 s46, s37, 16
s_mul_i32 s46, s46, 576
s_add_u32 s47, s46, %d
s_add_u32 s46, s46, %d
""" % (WS_CGU + 9216, WS_CGU))
        self.wait_lds("v15", "s48", str(P_K + self.hpos), "v14", cached=False, sleep=4)
        loads = []
        for i in range(3):
            loads.append("buffer_load_dwordx4 v[%d:%d], v%d, s[40:43], s46 offen sc1" % (48 + 4 * i, 51 + 4 * i, 24 + i))
            loads.append("buffer_load_dwordx4 v[%d:%d], v%d, s[40:43], s47 offen sc1" % (60 + 4 * i, 63 + 4 * i, 24 + i))
        self.gather(loads, [r for i in range(3) for r in list(range(48 + 4 * i, 52 + 4 * i)) + list(range(60 + 4 * i, 64 + 4 * i))], 72)
        c0 = -2.0 * LOG2E * 0.7978845608028654
        e("s_mov_b32 s46, %s\ns_mov_b32 s47, %s\ns_mov_b32 s56, 0xffff0000" % (f32(c0), f32(c0 * 0.044715)))
        e("v_mov_b32 v20, s46")
        for r in range(12):
            g = 48 + r
            u = 60 + r
            e("""
v_lshlrev_b32 v16, 16, v%(g)d
v_and_b32 v17, s56, v%(g)d
v_mul_f32 v18, v16, v16
v_mul_f32 v19, v17, v17
v_fma_f32 v18, v18, s47, v20
v_fma_f32 v19, v19, s47, v20
v_mul_f32 v18, v18, v16
v_mul_f32 v19, v19, v17
v_exp_f32 v18, v18
v_exp_f32 v19, v19
s_nop 0
v_add_f32 v18, 1.0, v18
v_add_f32 v19, 1.0, v19
v_rcp_f32 v18, v18
v_rcp_f32 v19, v19
s_nop 0
v_mul_f32 v18, v18, v16
v_mul_f32 v19, v19, v17
v_cvt_pk_bf16_f32 v18, v18, v19
v_lshlrev_b32 v16, 16, v%(u)d
v_and_b32 v17, s56, v%(u)d
v_and_b32 v19, s56, v18
v_lshlrev_b32 v18, 16, v18
v_mul_f32 v18, v18, v16
v_mul_f32 v19, v19, v17
v_cvt_pk_bf16_f32 v%(g)d, v18, v19
""" % dict(g=g, u=u))
        for i in range(3):
            e("ds_write2_b64 v%d, v[%d:%d], v[%d:%d] offset0:0 offset1:2" % (27 + i, 48 + 4 * i, 49 + 4 * i, 50 + 4 * i, 51 + 4 * i))
        e("s_waitcnt lgkmcnt(0)")
        self.set_flag(FLAG_H, 21, 22)
        self.label("L_cm_noh")
        e("v_mov_b32 v16, %d" % CNT_STAT)
        self.wait_lds("v16", "s46", "4", "v17", cached=False, sleep=2)
        self.stamp(2)
        e("""
v_and_b32 v16, 7, v0
v_lshlrev_b32 v16, 3, v16
v_add_u32 v17, %d, v16
ds_read_b64 v[18:19], v17
s_mov_b32 s56, %s
v_and_b32 v27, 1, v0
v_lshlrev_b32 v27, 4, v27
v_bfe_u32 v28, v0, 1, 2
v_lshl_add_u32 v27, v28, 2, v27
v_add_u32 v27, %d, v27
s_waitcnt lgkmcnt(0)
v_max_f32_dpp v20, v18, v18 row_ror:2 row_mask:0xf bank_mask:0xf
s_nop 1
v_max_f32_dpp v20, v20, v20 row_ror:4 row_mask:0xf bank_mask:0xf
v_sub_f32 v22, v18, v20
v_mul_f32 v22, s56, v22
v_exp_f32 v22, v22
s_nop 0
v_mul_f32 v21, v22, v19
ds_write_b32 v27, v22
s_nop 0
v_add_f32_dpp v21, v21, v21 row_ror:2 row_mask:0xf bank_mask:0xf
s_nop 1
v_add_f32_dpp v21, v21, v21 row_ror:4 row_mask:0xf bank_mask:0xf
s_lshl_b32 s47, s45, 6
s_add_u32 s47, s47, %d
s_mov_b64 exec, 0xff
buffer_store_dwordx2 v[20:21], v16, s[40:43], s47 offen sc1
s_mov_b64 exec, -1
s_waitcnt lgkmcnt(0)
""" % (STW, f32(LOG2E), SC, WS_ST))
        self.set_flag(FLAG_SC, 23, 24)
        self.stamp(3)
        e("s_sub_u32 s46, s31, 8\ns_cmp_ge_u32 s46, 18\ns_cbranch_scc1 L_cm_end")
        e("""
v_lshrrev_b32 v16, 4, v0
v_and_b32 v17, 15, v0
v_lshlrev_b32 v18, 12, v16
v_lshl_add_u32 v18, v17, 4, v18
s_lshl_b32 s47, s37, 8
s_add_u32 s47, s47, %d
v_lshrrev_b32 v19, 2, v0
v_lshlrev_b32 v19, 3, v19
v_add_u32 v19, %d, v19
""" % (WS_ST, FAC))
        self.wait_lds("v15", "s46", str(self.fpos), "v14", cached=False, sleep=4)
        self.gather(["buffer_load_dwordx4 v[24:27], v18, s[40:43], s47 offen sc1"], [24, 25, 26, 27], 20, sleep=8)
        e("""
v_max_f32_dpp v28, v24, v24 row_ror:4 row_mask:0xf bank_mask:0xf
v_max_f32_dpp v29, v26, v26 row_ror:4 row_mask:0xf bank_mask:0xf
s_nop 0
v_max_f32_dpp v28, v28, v28 row_ror:8 row_mask:0xf bank_mask:0xf
v_max_f32_dpp v29, v29, v29 row_ror:8 row_mask:0xf bank_mask:0xf
v_sub_f32 v28, v24, v28
v_sub_f32 v29, v26, v29
v_mul_f32 v28, s56, v28
v_mul_f32 v29, s56, v29
v_exp_f32 v28, v28
v_exp_f32 v29, v29
s_nop 0
v_mul_f32 v30, v28, v25
v_mul_f32 v31, v29, v27
s_nop 0
v_add_f32_dpp v30, v30, v30 row_ror:4 row_mask:0xf bank_mask:0xf
v_add_f32_dpp v31, v31, v31 row_ror:4 row_mask:0xf bank_mask:0xf
s_nop 0
v_add_f32_dpp v30, v30, v30 row_ror:8 row_mask:0xf bank_mask:0xf
v_add_f32_dpp v31, v31, v31 row_ror:8 row_mask:0xf bank_mask:0xf
v_rcp_f32 v30, v30
v_rcp_f32 v31, v31
s_nop 0
v_mul_f32 v28, v28, v30
v_mul_f32 v29, v29, v31
ds_write_b64 v19, v[28:29]
s_waitcnt lgkmcnt(0)
""")
        self.set_flag(FLAG_F, 23, 24)
        self.label("L_cm_end")
        self.flush_stamps([(0, 4), (1, 5), (2, 6), (3, 7), (7, 16), (8, 17), (9, 18), (10, 19)])
        e("s_endpgm")

    def tlb_warm(self):
        e = self.e
        e("""
s_lshl_b32 s52, s33, 21
s_add_u32 s52, s52, 0x180000
s_lshl_b32 s53, s35, 17
s_add_u32 s52, s52, s53
s_load_dword s78, s[6:7], s52
s_load_dword s78, s[8:9], s52
s_cmp_ge_u32 s31, 26
s_cbranch_scc1 L_tw_dn
s_cmp_lt_u32 s31, 17
s_cselect_b32 s60, s16, s18
s_cselect_b32 s61, s17, s19
s_cmp_lt_u32 s31, 8
s_cselect_b32 s60, s10, s60
s_cselect_b32 s61, s11, s61
s_mov_b32 s53, 0x180000
s_load_dword s78, s[60:61], s53
s_mov_b32 s53, 0x300000
s_load_dword s78, s[60:61], s53
s_mov_b32 s53, 0x47ff00
s_load_dword s78, s[60:61], s53
s_cbranch_scc1 L_tw_end
s_mul_i32 s53, s37, 294912
s_load_dword s78, s[12:13], s53
s_add_u32 s53, s53, 294000
s_load_dword s78, s[12:13], s53
s_branch L_tw_end
L_tw_dn:
s_sub_u32 s53, s37, 16
s_mul_i32 s53, s53, 331776
s_load_dword s78, s[20:21], s53
s_add_u32 s53, s53, 331000
s_load_dword s78, s[20:21], s53
L_tw_end:
""")

    def ct_id(self):
        self.e("""
s_lshl_b32 s44, s30, 3
s_add_u32 s44, s44, s31
s_mul_i32 s46, s30, 9
s_add_u32 s46, s46, s31
s_add_u32 s47, s46, 56
s_add_u32 s46, s46, 119
s_cmp_lt_u32 s31, 17
s_cselect_b32 s46, s47, s46
s_cmp_lt_u32 s31, 8
s_cselect_b32 s44, s44, s46
""")

    def free_write(self, sval):
        self.e("s_mov_b64 exec, 1\nv_mov_b32 v4, %s\nds_write_b32 v3, v4\ns_mov_b64 exec, -1" % sval)

    def cons(self):
        e = self.e
        self.label("L_cons")
        if self.stamps:
            for k in range(15):
                e("s_mov_b64 s[%d:%d], 0" % (self.sreg(k), self.sreg(k) + 1))
        if "perm" in self.abl:
            e("s_min_u32 s36, s36, 4\ns_add_u32 s36, s36, 1")
        e("""
s_sub_u32 s36, s36, 2
v_mov_b32 v2, %d
s_lshl_b32 s44, s36, 2
s_add_u32 s44, s44, %d
v_mov_b32 v3, s44
s_mov_b32 s50, 0
v_and_b32 v8, 15, v0
v_lshrrev_b32 v9, 4, v0
v_lshrrev_b32 v10, 2, v0
v_and_b32 v11, 3, v0
s_mov_b32 s56, 0xffff0000
v_mul_u32_u24 v12, 1152, v9
v_lshl_add_u32 v12, v8, 4, v12
v_mov_b32 v13, 0x40000000
v_cmp_gt_u32 vcc, 8, v8
v_bfe_u32 v7, v0, 3, 2
v_lshlrev_b32 v7, 5, v7
v_cndmask_b32 v13, v13, v12, vcc
v_lshl_add_u32 v7, v10, 7, v7
v_lshl_add_u32 v7, v11, 3, v7
s_waitcnt lgkmcnt(0)
s_mov_b32 s60, s4
s_mov_b32 s61, s5
s_mov_b32 s62, 4608
s_mov_b32 s63, 0x00020000
""" % (FULL, FREE))
        self.ws_srd()
        if "nocons" in self.abl:
            e("s_barrier")
            self.free_write("0x10000")
            e("s_endpgm")
        if "conssleep" in self.abl or "consspin" in self.abl:
            e("s_barrier")
            self.free_write("0x10000")
            self.wait_lds("v2", "s50", "328", "v4", sleep=(32 if "conssleep" in self.abl else 0))
            e("s_endpgm")
        if "nocolc" in self.abl:
            e("s_branch L_cs_nocol")
        e("""
s_cmp_ge_u32 s31, 26
s_cbranch_scc1 L_cs_nocol
""")
        if "nox" not in self.abl:
            e("""
buffer_load_dwordx4 v[32:35], v12, s[60:63], 0 offen
buffer_load_dwordx4 v[36:39], v12, s[60:63], 0 offen offset:256
buffer_load_dwordx4 v[40:43], v12, s[60:63], 0 offen offset:512
buffer_load_dwordx4 v[44:47], v12, s[60:63], 0 offen offset:768
buffer_load_dwordx4 v[48:51], v13, s[60:63], 0 offen offset:1024
""")
        e("s_barrier")
        e("""
v_mul_u32_u24 v14, %d, v9
v_lshrrev_b32 v15, 2, v8
v_lshl_add_u32 v14, v15, 6, v14
v_and_b32 v15, 1, v8
v_lshl_add_u32 v14, v15, 5, v14
v_bfe_u32 v15, v8, 1, 1
v_lshl_add_u32 v14, v15, 3, v14
v_add_u32 v14, %d, v14
s_lshl_b32 s44, s36, 5
v_xor_b32 v15, s44, v7
v_mul_u32_u24 v16, %d, v11
v_lshl_add_u32 v16, v9, 4, v16
v_add_u32 v16, %d, v16
s_waitcnt vmcnt(0)
""" % (XN_STRIDE, XN, XN_STRIDE, XN))
        for k in range(20):
            e("v_lshlrev_b32 v%d, 16, v%d\nv_and_b32 v%d, s56, v%d" % (64 + 2 * k, 32 + k, 65 + 2 * k, 32 + k))
        e("v_add_f32 v52, v64, v65\nv_add_f32 v53, v66, v67")
        for k in range(2, 20):
            e("v_add_f32 v52, v52, v%d\nv_add_f32 v53, v53, v%d" % (64 + 2 * k, 65 + 2 * k))
        e("v_add_f32 v52, v52, v53")
        for ror in (8, 4, 2, 1):
            e("s_nop 1\nv_add_f32_dpp v52, v52, v52 row_ror:%d row_mask:0xf bank_mask:0xf" % ror)
        e("v_mul_f32 v52, %s, v52" % f32(1.0 / 576))
        e("v_cndmask_b32 v55, 0, v52, vcc")
        e("v_mov_b32 v53, 0\nv_mov_b32 v54, 0")
        for k in range(20):
            m = 55 if k >= 16 else 52
            e("v_sub_f32 v56, v%d, v%d\nv_sub_f32 v57, v%d, v%d\nv_fmac_f32 v53, v56, v56\nv_fmac_f32 v54, v57, v57" % (64 + 2 * k, m, 65 + 2 * k, m))
        e("v_add_f32 v53, v53, v54")
        for ror in (8, 4, 2, 1):
            e("s_nop 1\nv_add_f32_dpp v53, v53, v53 row_ror:%d row_mask:0xf bank_mask:0xf" % ror)
        e("""
v_mul_f32 v53, %s, v53
v_cvt_pk_bf16_f32 v52, v52, v53
v_and_b32 v53, s56, v52
v_lshlrev_b32 v52, 16, v52
v_add_f32 v53, %s, v53
v_cvt_pk_bf16_f32 v53, v53, v53
v_and_b32 v53, s56, v53
v_sqrt_f32 v53, v53
s_nop 0
v_cvt_pk_bf16_f32 v53, v53, v53
v_and_b32 v53, s56, v53
v_rcp_f32 v54, v53
""" % (f32(1.0 / 576), f32(1e-5)))
        for k in range(20):
            a, b = 64 + 2 * k, 65 + 2 * k
            e("""
v_sub_f32 v%(a)d, v%(a)d, v52
v_sub_f32 v%(b)d, v%(b)d, v52
v_cvt_pk_bf16_f32 v56, v%(a)d, v%(b)d
v_lshlrev_b32 v%(a)d, 16, v56
v_and_b32 v%(b)d, s56, v56
v_mul_f32 v57, v%(a)d, v54
v_mul_f32 v58, v%(b)d, v54
v_fma_f32 v%(a)d, -v57, v53, v%(a)d
v_fma_f32 v%(b)d, -v58, v53, v%(b)d
v_fmac_f32 v57, v%(a)d, v54
v_fmac_f32 v58, v%(b)d, v54
v_cvt_pk_bf16_f32 v%(d)d, v57, v58
""" % dict(a=a, b=b, d=32 + k))
        for t in range(4):
            e("ds_write2_b64 v14, v[%d:%d], v[%d:%d] offset0:%d offset1:%d" % (32 + 4 * t, 33 + 4 * t, 34 + 4 * t, 35 + 4 * t, 32 * t, 32 * t + 2))
        e("s_mov_b64 exec, vcc\nds_write2_b64 v14, v[48:49], v[50:51] offset0:128 offset1:130\ns_mov_b64 exec, -1")
        e("v_mov_b32 v20, 0\nv_mov_b32 v21, 0\nv_mov_b32 v22, 0\nv_mov_b32 v23, 0\ns_mov_b32 s51, 4")
        self.stamp(0)
        L = self.lab("Lcol")
        self.label(L)
        self.wait_lds("v2", "s50", "s51", "v4")
        e("""
ds_read_b64_tr_b16 v[24:25], v15
ds_read_b64_tr_b16 v[26:27], v15 offset:2048
ds_read_b128 v[28:31], v16
v_add_u32 v15, 4096, v15
v_add_u32 v16, 64, v16
s_add_u32 s51, s51, 4
s_cmp_le_u32 s51, %d
s_waitcnt lgkmcnt(0)
v_mfma_f32_16x16x32_bf16 v[20:23], v[24:27], v[28:31], v[20:23]
s_cbranch_scc1 %s
""" % (P_K, L))
        e("""
s_lshl_b32 s45, s36, 5
s_add_u32 s45, s45, %d
v_lshlrev_b32 v17, 7, v11
v_lshl_add_u32 v17, v9, 3, v17
v_add_u32 v17, s45, v17
v_mov_b32 v18, %d
v_mov_b32 v19, 1
s_nop 2
v_cvt_pk_bf16_f32 v24, v20, v21
v_cvt_pk_bf16_f32 v25, v22, v23
s_mov_b32 exec_lo, 0x000f000f
s_mov_b32 exec_hi, 0x000f000f
ds_write_b64 v17, v[24:25]
s_mov_b64 exec, 1
ds_add_u32 v18, v19
s_mov_b64 exec, -1
s_branch L_cs_k
L_cs_nocol:
s_barrier
L_cs_k:
""" % (OB, CNT_C))
        self.stamp(1)
        if "colonly" in self.abl:
            self.free_write("0x10000")
            e("s_endpgm")
        e("""
v_and_b32 v5, 7, v0
v_lshlrev_b32 v5, 1, v5
v_xor_b32 v5, v5, v9
v_lshlrev_b32 v5, 4, v5
v_lshl_add_u32 v5, v8, 8, v5
v_and_b32 v6, 7, v10
v_lshlrev_b32 v6, 5, v6
v_lshl_add_u32 v6, v10, 8, v6
v_lshl_add_u32 v6, v11, 3, v6
s_lshl_b32 s52, s36, 2
s_add_u32 s51, s52, %d
s_lshl_b32 s53, s51, 10
""" % P_K)
        self.free_write("s51")

        def advance():
            e("s_add_u32 s51, s51, 16\ns_add_u32 s53, s53, 16384\ns_sub_u32 s54, s53, %d\ns_cmp_ge_u32 s53, %d\ns_cselect_b32 s53, s54, s53" % (RING_BYTES, RING_BYTES))

        for i in range(8):
            e("s_add_u32 s55, s51, 4")
            self.wait_lds("v2", "s50", "s55", "v4")
            r = 128 + 16 * i
            e("""
v_add_u32 v12, s53, v5
v_xor_b32 v13, 64, v12
v_xor_b32 v14, 0x80, v12
v_xor_b32 v15, 0xc0, v12
ds_read_b128 v[%d:%d], v12
ds_read_b128 v[%d:%d], v13
ds_read_b128 v[%d:%d], v14
ds_read_b128 v[%d:%d], v15
""" % (r, r + 3, r + 4, r + 7, r + 8, r + 11, r + 12, r + 15))
            advance()
            if i & 1:
                e("s_waitcnt lgkmcnt(0)")
                self.free_write(str(P_V) if i == 7 else "s51")
        self.stamp(2)
        e("v_mov_b32 v12, %d" % FLAG_Q)
        self.wait_lds("v12", "s54", "1", "v4", cached=False)
        e("""
v_and_b32 v12, 1, v0
v_lshlrev_b32 v12, 8, v12
v_lshl_add_u32 v12, v9, 4, v12
v_add_u32 v12, %d, v12
ds_read_b128 v[32:35], v12
ds_read_b128 v[36:39], v12 offset:64
ds_read_b128 v[40:43], v12 offset:128
ds_read_b128 v[44:47], v12 offset:192
s_mov_b32 s57, %s
s_mov_b32 s58, %s
s_waitcnt lgkmcnt(0)
""" % (QL, f32(128 ** -0.5), f32(LOG2E)))
        for s in range(4):
            for i in range(8):
                c = "0" if s == 0 else "v[%d:%d]" % (48 + 4 * i, 51 + 4 * i)
                e("v_mfma_f32_16x16x32_bf16 v[%d:%d], v[%d:%d], v[%d:%d], %s" % (48 + 4 * i, 51 + 4 * i, 128 + 16 * i + 4 * s, 131 + 16 * i + 4 * s, 32 + 4 * s, 35 + 4 * s, c))
        e("s_nop 1")
        for k in range(16):
            a, b = 48 + 2 * k, 49 + 2 * k
            e("""
v_cvt_pk_bf16_f32 v12, v%(a)d, v%(b)d
v_lshlrev_b32 v%(a)d, 16, v12
v_and_b32 v%(b)d, s56, v12
v_mul_f32 v%(a)d, s57, v%(a)d
v_mul_f32 v%(b)d, s57, v%(b)d
v_cvt_pk_bf16_f32 v12, v%(a)d, v%(b)d
v_lshlrev_b32 v%(a)d, 16, v12
v_and_b32 v%(b)d, s56, v12
""" % dict(a=a, b=b))
        e("v_max3_f32 v12, v48, v49, v50")
        for k in range(51, 79, 2):
            e("v_max3_f32 v12, v12, v%d, v%d" % (k, k + 1))
        e("""
v_max_f32 v12, v12, v79
v_mov_b32 v13, v12
s_nop 1
v_permlane16_swap_b32 v12, v13
s_nop 0
v_max_f32 v12, v12, v13
v_mov_b32 v13, v12
s_nop 1
v_permlane32_swap_b32 v12, v13
s_nop 0
v_max_f32 v12, v12, v13
v_and_b32 v14, 1, v0
v_lshlrev_b32 v14, 4, v14
v_add_u32 v14, %d, v14
s_lshl_b32 s54, s36, 2
v_add_u32 v15, s54, v14
v_mov_b32 v16, %d
v_mov_b32 v17, 1
s_mov_b64 exec, 3
ds_write_b32 v15, v12
s_mov_b64 exec, 1
ds_add_u32 v16, v17
s_mov_b64 exec, -1
""" % (SC, CNT_M))
        self.wait_lds("v16", "s54", "4", "v4", cached=False)
        e("ds_read_b128 v[16:19], v14\ns_waitcnt lgkmcnt(0)\nv_max3_f32 v12, v16, v17, v18\nv_max_f32 v12, v12, v19")
        for k in range(32):
            e("v_sub_f32 v%d, v%d, v12" % (48 + k, 48 + k))
        for k in range(32):
            e("v_mul_f32 v%d, s58, v%d" % (48 + k, 48 + k))
        for k in range(32):
            e("v_exp_f32 v%d, v%d" % (48 + k, 48 + k))
        e("v_add_f32 v13, v48, v49\nv_add_f32 v14, v50, v51")
        for k in range(52, 80, 2):
            e("v_add_f32 v13, v13, v%d\nv_add_f32 v14, v14, v%d" % (k, k + 1))
        for k in range(16):
            e("v_cvt_pk_bf16_f32 v%d, v%d, v%d" % (80 + k, 48 + 2 * k, 49 + 2 * k))
        e("""
v_add_f32 v13, v13, v14
v_mov_b32 v14, v13
s_nop 1
v_permlane16_swap_b32 v13, v14
s_nop 0
v_add_f32 v13, v13, v14
v_mov_b32 v14, v13
s_nop 1
v_permlane32_swap_b32 v13, v14
s_nop 0
v_add_f32 v13, v13, v14
s_lshl_b32 s54, s36, 4
s_add_u32 s54, s54, %d
v_lshlrev_b32 v14, 3, v0
v_add_u32 v14, s54, v14
v_and_b32 v15, 1, v0
v_lshlrev_b32 v15, 6, v15
v_lshl_add_u32 v15, v9, 4, v15
v_add_u32 v31, %d, v15
s_lshr_b32 s54, s36, 1
s_lshl_b32 s54, s54, 7
s_and_b32 s55, s36, 1
s_lshl_b32 s55, s55, 3
s_add_u32 s54, s54, s55
v_add_u32 v15, s54, v31
s_mov_b64 exec, 3
ds_write_b64 v14, v[12:13]
s_mov_b32 exec_lo, 0x00030003
s_mov_b32 exec_hi, 0x00030003
""" % (STW, PB))
        for i in range(8):
            e("ds_write_b64 v15, v[%d:%d] offset:%d" % (80 + 2 * i, 81 + 2 * i, 256 * i))
        e("""
s_mov_b64 exec, 1
v_mov_b32 v30, %d
v_mov_b32 v15, 1
ds_add_u32 v30, v15
s_mov_b64 exec, -1
""" % CNT_STAT)
        self.stamp(3)
        self.tile_ids()
        e("""
v_mov_b32 v26, 1
v_mul_u32_u24 v29, 2304, v9
v_lshl_add_u32 v29, v8, 2, v29
s_lshl_b32 s49, s33, 2
s_add_u32 s49, s49, s35
s_lshl_b32 s49, s49, 10
s_lshl_b32 s54, s36, 7
s_add_u32 s49, s49, s54
s_add_u32 s49, s49, %d
v_and_b32 v24, 1, v9
v_cmp_eq_u32 s[4:5], 1, v24
v_lshlrev_b32 v24, 9, v24
v_lshrrev_b32 v25, 1, v9
v_lshl_add_u32 v24, v25, 6, v24
v_lshl_add_u32 v24, v8, 2, v24
v_cmp_eq_u32 s[6:7], 1, v25
s_lshl_b32 s54, s36, 6
v_xor_b32 v6, s54, v6
s_mov_b32 s53, %d
s_mov_b32 s55, %d
""" % (WS_OP, (P_V % RING_KB) * 1024, P_V + 8))
        for k in range(8):
            e("v_mov_b32 v%d, 0" % (96 + k))
        self.wait_lds("v30", "s54", "4", "v4", cached=False)
        Lv = self.lab("Lpv")
        self.label(Lv)
        e("v_add_u32 v12, s53, v6\nv_xor_b32 v13, 32, v12\nds_read_b128 v[32:35], v31")
        self.wait_lds("v2", "s50", "s55", "v4")
        e("""
ds_read_b64_tr_b16 v[128:129], v12
ds_read_b64_tr_b16 v[130:131], v12 offset:4096
ds_read_b64_tr_b16 v[132:133], v13
ds_read_b64_tr_b16 v[134:135], v13 offset:4096
v_add_u32 v31, 128, v31
s_add_u32 s53, s53, 8192
s_cmp_eq_u32 s53, %d
s_cselect_b32 s53, 0, s53
s_cmp_eq_u32 s55, %d
s_waitcnt lgkmcnt(2)
v_mfma_f32_16x16x32_bf16 v[96:99], v[32:35], v[128:131], v[96:99]
s_waitcnt lgkmcnt(0)
v_mfma_f32_16x16x32_bf16 v[100:103], v[32:35], v[132:135], v[100:103]
s_cbranch_scc1 L_cs_pvd
""" % (RING_BYTES, P_W))
        self.free_write("s55")
        e("s_add_u32 s55, s55, 8\ns_branch %s" % Lv)
        self.label("L_cs_pvd")
        if "nopost" in self.abl:
            self.free_write("0x10000")
            e("s_branch L_cs_end")
        e("""
s_nop 5
v_cndmask_b32 v104, v96, v97, s[4:5]
s_nop 0
v_cndmask_b32 v105, v100, v101, s[4:5]
v_cndmask_b32 v104, v104, v105, s[6:7]
buffer_store_dword v104, v24, s[40:43], s49 offen sc1
""")
        self.stamp(10)
        self.free_write(str(P_W))
        self.label("L_cs_nolast")
        self.stamp(4)
        e("""
s_cmp_lt_u32 s31, 8
s_cbranch_scc1 L_cs_red
s_cmp_ge_u32 s31, 26
s_cbranch_scc1 L_cs_down
""")
        if "notile" in self.abl:
            e("s_branch L_cs_end")
        ringw = (P_W % RING_KB) * 1024
        e("""
v_lshlrev_b32 v20, 16, v9
v_lshl_add_u32 v20, v8, 4, v20
s_lshl_b32 s46, s37, 12
s_lshl_b32 s47, s36, 8
s_add_u32 s46, s46, s47
s_add_u32 s46, s46, %d
s_lshl_b32 s54, s36, 5
v_xor_b32 v12, s54, v7
v_add_u32 v12, %d, v12
v_mov_b32 v25, %d
s_mul_i32 s44, s37, %d
s_lshl_b32 s45, s38, 8
s_add_u32 s44, s44, s45
s_lshl_b32 s45, s36, 6
s_add_u32 s44, s44, s45
s_add_u32 s44, s44, %d
s_lshl_b32 s54, s36, 9
s_add_u32 s54, s54, %d
v_lshlrev_b32 v21, 7, v9
v_bfe_u32 v16, v0, 3, 1
v_lshl_add_u32 v21, v16, 6, v21
v_lshl_add_u32 v21, v11, 4, v21
v_bfe_u32 v16, v0, 2, 1
v_lshl_add_u32 v21, v16, 3, v21
v_add_u32 v21, s54, v21
v_lshlrev_b32 v23, 7, v11
v_lshl_add_u32 v23, v9, 4, v23
v_add_u32 v23, %d, v23
""" % (WS_OP, ringw, CNT_P, PART_ROW, WS_PART, OB, OB))
        loads = ["buffer_load_dwordx4 v[%d:%d], v20, s[40:43], s46 offen offset:%d sc1" % (216 + 4 * k, 219 + 4 * k, 1024 * k) for k in range(4)]
        e("""
v_lshlrev_b32 v16, 5, v9
v_lshl_add_u32 v16, v11, 3, v16
s_lshr_b32 s47, s36, 1
s_lshl_b32 s47, s47, 2
s_add_u32 s47, s47, %d
v_add_u32 v16, s47, v16
v_mov_b32 v17, %d
""" % (FAC, FLAG_F))
        self.wait_lds("v17", "s47", "1", "v4", cached=False)
        e("ds_read_b32 v234, v16\ns_waitcnt lgkmcnt(0)")
        for g in self.gpos:
            self.wait_lds("v2", "s50", str(P_W + g), "v4")
            for l in loads:
                e(l)
        self.stamp(8)
        for s in range(8):
            if s in (0, 6, 7):
                self.wait_lds("v2", "s50", str(P_W + (24 if s == 0 else 4 * (s + 1))), "v4")
            e("ds_read_b64_tr_b16 v[%d:%d], v12 offset:%d" % (128 + 4 * s, 129 + 4 * s, 4096 * s))
            e("ds_read_b64_tr_b16 v[%d:%d], v12 offset:%d" % (130 + 4 * s, 131 + 4 * s, 4096 * s + 2048))
        Lo = self.lab("Lgo")
        Dn = self.lab("Lgod")

        def ocheck():
            e("v_max3_u32 v36, v216, v217, v218\nv_max3_u32 v37, v219, v220, v221")
            for i, r in enumerate(range(222, 232, 2)):
                e("v_max3_u32 v%d, v%d, v%d, v%d" % (36 + (i & 1), 36 + (i & 1), r, r + 1))
            e("v_max_u32 v36, v36, v37\nv_cmp_eq_u32 vcc, -1, v36\ns_cbranch_vccz %s" % Dn)
        e("s_mov_b32 s59, %d" % self.spin)
        e("s_waitcnt vmcnt(0)")
        ocheck()
        e("s_mov_b64 exec, vcc")
        for r in range(self.opipe - 1):
            for l in loads:
                e(l)
            e("s_sleep %d" % self.ogap)
        self.label(Lo)
        if self.osleep:
            e("s_sleep %d" % self.osleep)
        for l in loads:
            e(l)
        e("s_mov_b64 exec, -1\ns_waitcnt vmcnt(%d)" % (4 * (self.opipe - 1)))
        ocheck()
        e("s_mov_b64 exec, vcc\ns_sub_u32 s59, s59, 1\ns_cmp_lg_u32 s59, 0\ns_cbranch_scc1 %s\ns_mov_b64 exec, -1" % Lo)
        self.label(Dn)
        self.stamp(5)
        self.rawstamp(7, "s59")
        for k in range(4):
            e("v_mul_f32_dpp v%d, v234, v%d quad_perm:[0,0,0,0] row_mask:0xf bank_mask:0xf" % (240 + k, 216 + k))
        for j in range(1, 4):
            for k in range(4):
                e("v_fmac_f32_dpp v%d, v234, v%d quad_perm:[%d,%d,%d,%d] row_mask:0xf bank_mask:0xf" % (240 + k, 216 + 4 * j + k, j, j, j, j))
        e("""
v_cvt_pk_bf16_f32 v244, v240, v241
v_cvt_pk_bf16_f32 v245, v242, v243
ds_write_b64 v21, v[244:245]
s_mov_b64 exec, 1
ds_add_u32 v25, v26
s_mov_b64 exec, -1
""")
        self.wait_lds("v25", "s54", "4", "v4", cached=False)
        for s in range(8):
            e("ds_read_b128 v[%d:%d], v23 offset:%d" % (160 + 4 * s, 163 + 4 * s, 512 * (s >> 1) + 64 * (s & 1)))
        for s in range(8):
            e("s_waitcnt lgkmcnt(%d)" % (7 - s))
            e("v_mfma_f32_16x16x32_bf16 v[240:243], v[%d:%d], v[%d:%d], %s" % (160 + 4 * s, 163 + 4 * s, 128 + 4 * s, 131 + 4 * s, "v[240:243]" if s else "0"))
        e("""
s_nop 7
v_cndmask_b32 v244, v240, v241, s[4:5]
v_cndmask_b32 v245, v242, v243, s[4:5]
v_cndmask_b32 v244, v244, v245, s[6:7]
buffer_store_dword v244, v29, s[40:43], s44 offen sc1
""")
        self.stamp(6)
        e("s_branch L_cs_end")
        self.label("L_cs_down")
        e("""
v_bfe_u32 v13, v0, 3, 2
v_mul_u32_u24 v14, 384, v10
v_lshl_add_u32 v14, v11, 3, v14
v_add_u32 v14, %d, v14
s_mul_i32 s54, s36, 3
v_xor_b32 v16, s54, v13
v_lshl_add_u32 v16, v16, 5, v14
s_add_u32 s54, s54, 1
v_xor_b32 v17, s54, v13
v_lshl_add_u32 v17, v17, 5, v14
s_add_u32 s54, s54, 1
v_xor_b32 v18, s54, v13
v_lshl_add_u32 v18, v18, 5, v14
s_mul_i32 s44, s37, %d
s_mul_i32 s45, s38, 768
s_add_u32 s44, s44, s45
s_mul_i32 s45, s36, 192
s_add_u32 s44, s44, s45
s_add_u32 s44, s44, %d
v_mov_b32 v12, %d
""" % (ringw, PART_ROW, WS_PART, FLAG_H))
        self.wait_lds("v12", "s54", "1", "v4", cached=False)
        e("""
v_mul_u32_u24 v20, %d, v11
v_lshl_add_u32 v20, v9, 4, v20
v_add_u32 v20, %d, v20
s_mov_b32 s51, %d
""" % (H_STRIDE, XN, P_W + 12))
        for k in range(12):
            e("v_mov_b32 v%d, 0" % (240 + k))
        L = self.lab("Ldn")
        self.label(L)
        self.wait_lds("v2", "s50", "s51", "v4")
        e("ds_read_b128 v[232:235], v20")
        for q in range(3):
            r = 192 + 4 * q
            e("ds_read_b64_tr_b16 v[%d:%d], v%d" % (r, r + 1, 16 + q))
            e("ds_read_b64_tr_b16 v[%d:%d], v%d offset:6144" % (r + 2, r + 3, 16 + q))
        e("v_add_u32 v20, 64, v20")
        for q in range(3):
            e("v_add_u32 v%d, 12288, v%d" % (16 + q, 16 + q))
        e("s_add_u32 s51, s51, 12\ns_cmp_le_u32 s51, %d" % (P_W + 108))
        for q in range(3):
            r = 192 + 4 * q
            e("s_waitcnt lgkmcnt(%d)" % (4 - 2 * q))
            e("v_mfma_f32_16x16x32_bf16 v[%d:%d], v[232:235], v[%d:%d], v[%d:%d]" % (240 + 4 * q, 243 + 4 * q, r, r + 3, 240 + 4 * q, 243 + 4 * q))
        e("s_cbranch_scc1 %s" % L)
        e("""
s_nop 2
v_cndmask_b32 v232, v240, v241, s[4:5]
v_cndmask_b32 v233, v242, v243, s[4:5]
v_cndmask_b32 v232, v232, v233, s[6:7]
buffer_store_dword v232, v29, s[40:43], s44 offen sc1
v_cndmask_b32 v234, v244, v245, s[4:5]
v_cndmask_b32 v235, v246, v247, s[4:5]
v_cndmask_b32 v234, v234, v235, s[6:7]
buffer_store_dword v234, v29, s[40:43], s44 offen offset:64 sc1
v_cndmask_b32 v236, v248, v249, s[4:5]
v_cndmask_b32 v237, v250, v251, s[4:5]
v_cndmask_b32 v236, v236, v237, s[6:7]
buffer_store_dword v236, v29, s[40:43], s44 offen offset:128 sc1
""")
        self.stamp(6)
        e("s_branch L_cs_end")
        self.label("L_cs_red")
        if "nored" in self.abl:
            e("s_branch L_cs_end")
        e("""
s_lshl_b32 s44, s30, 3
s_add_u32 s44, s44, s31
s_lshl_b32 s45, s36, 6
s_add_u32 s44, s44, s45
s_cmp_ge_u32 s44, 72
s_cbranch_scc1 L_cs_end
s_lshl_b32 s54, s44, 6
v_and_b32 v17, 7, v0
v_lshlrev_b32 v42, 3, v17
buffer_load_dwordx2 v[40:41], v42, s[60:63], s54 offen
v_bfe_u32 v16, v0, 3, 2
v_lshrrev_b32 v18, 5, v0
v_lshl_add_u32 v16, v18, 4, v16
v_mul_u32_u24 v16, %d, v16
v_lshl_add_u32 v16, v17, 4, v16
s_lshl_b32 s44, s44, 7
s_add_u32 s44, s44, %d
s_add_u32 s45, s44, %d
s_add_u32 s46, s45, %d
s_add_u32 s47, s46, %d
s_mov_b32 s57, %s
s_mov_b32 s60, s22
s_mov_b32 s61, s23
""" % (PART_ROW, WS_PART, 4 * PART_ROW, 4 * PART_ROW, 4 * PART_ROW, f32(-LOG2E)))
        self.stamp(8)
        loads = ["buffer_load_dwordx4 v[%d:%d], v16, s[40:43], s%d offen sc1" % (48 + 4 * k, 51 + 4 * k, 44 + k) for k in range(4)]
        Lp = self.lab("Lpr")
        Lq = self.lab("Lprd")
        e("s_mov_b32 s59, %d\ns_mov_b32 exec_lo, 1\ns_mov_b32 exec_hi, 1" % self.spin)
        self.label(Lp)
        e("""
buffer_load_dword v48, v16, s[40:43], s44 offen sc1
buffer_load_dword v56, v16, s[40:43], s46 offen sc1
s_waitcnt vmcnt(0)
v_min_u32 v64, v48, v56
v_cmp_ne_u32 vcc, -1, v64
s_cbranch_vccnz %s
s_sleep %d
s_sub_u32 s59, s59, 1
s_cmp_lg_u32 s59, 0
s_cbranch_scc1 %s
""" % (Lq, self.isleep, Lp))
        self.label(Lq)
        e("""
s_mov_b64 exec, -1
v_lshlrev_b32 v76, 16, v40
v_and_b32 v77, s56, v40
v_lshlrev_b32 v78, 16, v41
v_and_b32 v79, s56, v41
""")
        if self.pipe:
            self.gather_pipe(loads, list(range(48, 64)), 64, depth=self.pipe)
        else:
            self.gather(loads, list(range(48, 64)), 64, sleep=self.tsleep)
        self.stamp(5)
        self.rawstamp(7, "s59")
        for k in range(4):
            e("v_add_f32 v%d, v%d, v%d" % (64 + k, 48 + k, 52 + k))
        for k in range(4):
            e("v_add_f32 v%d, v%d, v%d" % (68 + k, 56 + k, 60 + k))
        for k in range(4):
            e("v_add_f32 v%d, v%d, v%d" % (64 + k, 64 + k, 68 + k))
        for k in range(4):
            e("v_add_f32_dpp v%d, v%d, v%d row_ror:8 row_mask:0xf bank_mask:0xf" % (64 + k, 64 + k, 64 + k))
        for k in range(4):
            e("v_mov_b32 v%d, v%d" % (68 + k, 64 + k))
        e("s_nop 0")
        for k in range(4):
            e("v_permlane16_swap_b32 v%d, v%d" % (64 + k, 68 + k))
        for k in range(4):
            e("v_add_f32 v%d, v%d, v%d" % (64 + k, 64 + k, 68 + k))
        e("""
v_cvt_pk_bf16_f32 v68, v64, v65
v_cvt_pk_bf16_f32 v69, v66, v67
v_lshlrev_b32 v64, 16, v68
v_and_b32 v65, s56, v68
v_lshlrev_b32 v66, 16, v69
v_and_b32 v67, s56, v69
""")
        for k in range(4):
            e("v_mul_f32 v%d, s57, v%d" % (72 + k, 64 + k))
        for k in range(4):
            e("v_exp_f32 v%d, v%d" % (72 + k, 72 + k))
        for k in range(4):
            e("v_add_f32 v%d, 1.0, v%d" % (72 + k, 72 + k))
        for k in range(4):
            e("v_rcp_f32 v%d, v%d" % (72 + k, 72 + k))
        for k in range(4):
            e("v_mul_f32 v%d, v%d, v%d" % (72 + k, 72 + k, 64 + k))
        e("""
v_cvt_pk_bf16_f32 v68, v72, v73
v_cvt_pk_bf16_f32 v69, v74, v75
s_nop 1
v_permlane32_swap_b32 v70, v68
v_permlane32_swap_b32 v71, v69
s_nop 0
""")
        self.o[-3] = "    v_permlane32_swap_b32 v68, v70"
        self.o[-2] = "    v_permlane32_swap_b32 v69, v71"
        e("""
v_lshlrev_b32 v72, 16, v70
v_and_b32 v73, s56, v70
v_lshlrev_b32 v74, 16, v71
v_and_b32 v75, s56, v71
""")
        for k in range(4):
            e("v_mul_f32 v%d, v%d, v%d" % (64 + k, 64 + k, 72 + k))
        e("""
v_cvt_pk_bf16_f32 v68, v64, v65
v_cvt_pk_bf16_f32 v69, v66, v67
v_lshlrev_b32 v64, 16, v68
v_and_b32 v65, s56, v68
v_lshlrev_b32 v66, 16, v69
v_and_b32 v67, s56, v69
v_add_f32 v64, v64, v76
v_add_f32 v65, v65, v77
v_add_f32 v66, v66, v78
v_add_f32 v67, v67, v79
v_cvt_pk_bf16_f32 v68, v64, v65
v_cvt_pk_bf16_f32 v69, v66, v67
s_mov_b64 exec, 0xff
buffer_store_dwordx2 v[68:69], v42, s[60:63], s54 offen%s
""" % self.outflag)
        self.stamp(6)
        self.label("L_cs_end")
        if self.stamps:
            e("s_waitcnt vmcnt(0)")
            self.stamp(9)
            self.flush_stamps([(4, 32), (10, 33), (8, 34), (5, 35), (6, 36), (9, 37), (7, 38)], wave_off=True)
            e("s_cmp_lg_u32 s36, 0\ns_cbranch_scc1 L_end")
            self.flush_stamps([(0, 11), (1, 12), (2, 13), (3, 14), (4, 8), (5, 15), (7, 22), (8, 23), (6, 24), (9, 10)])
        self.label("L_end")
        e("s_endpgm")
        self.label("L_code_end")

    def build(self):
        hdr = open("cdna_kernels/%s.s.ref" % KN).read().split("\n")
        head = []
        for l in hdr:
            if l.startswith("; @launch"):
                break
            head.append(l)
        head.append("; @launch grid=(256,1,1) block=(384,1,1) lds=%d" % LDS_TOTAL)
        head += """;
; One persistent launch, 256 workgroups (one per CU) x 6 waves.  Written with a generator script (dev/gen.py).
;   wg = 8*idx + x.  Attention: kv head 2x + (idx>>4), batch (idx>>2)&3, 512-key split idx&3 of the 2048-key window.
;   Weight role: idx<8 'Q' (64 wq columns), idx<17 gate / idx<26 up (64 columns, plus a 256x64 tile of wo),
;                idx>=26 a 288x192 tile of w_down.
;   wave 0  loader  : streams [column tile][K][V][wo / w_down tile] into a 148 KiB LDS ring with LDS-DMA; 20..32 KiB in
;                     flight, more for a workgroup whose stream lags (so that all 256 streams end together)
;   wave 1  comm    : cross-workgroup hand-offs (q, gate/up -> h, softmax stats)
;   wave 2-5        : LayerNorm, MFMA GEMVs, QK^T, softmax (true max, combined over waves and splits), PV, output
; Hand-offs go through d_ws with sc1 (write-through) stores and sc1 loads.  Every hand-off word is first set to the
; sentinel 0xffffffff by a Q workgroup, which then raises its flag in d_debug.  A word is published only after its
; clear has completed and read only after all 64 flags are up; a reader retries while it still sees the sentinel.
; All spins are bounded.
""".split("\n")[:-1]
        head += ['.amdgcn_target "amdgcn-amd-amdhsa--gfx950"', ".text", ".globl %s_kernel" % KN, ".p2align 8",
                 ".type %s_kernel,@function" % KN, "%s_kernel:" % KN]
        self.prologue()
        self.loader()
        self.comm()
        self.cons()
        tail = """.section .rodata,"a"
.p2align 6
.amdhsa_kernel %s_kernel
  .amdhsa_next_free_vgpr 256
  .amdhsa_next_free_sgpr 102
  .amdhsa_accum_offset 256
  .amdhsa_group_segment_fixed_size 0
  .amdhsa_kernarg_size 96
  .amdhsa_user_sgpr_count 2
  .amdhsa_user_sgpr_kernarg_segment_ptr 1
  .amdhsa_system_sgpr_workgroup_id_x 1
  .amdhsa_float_denorm_mode_32 3
.end_amdhsa_kernel
""" % KN
        return "\n".join(head + self.o) + "\n" + tail


if __name__ == "__main__":
    import argparse
    ap = argparse.ArgumentParser()
    ap.add_argument("out")
    ap.add_argument("--stamps", action="store_true")
    ap.add_argument("--W", type=int, default=20)
    ap.add_argument("--nont", action="store_true")
    ap.add_argument("--tsleep", type=int, default=1)
    ap.add_argument("--csleep", type=int, default=0)
    ap.add_argument("--abl", type=str, default="")
    ap.add_argument("--gearly", type=int, default=-16)
    ap.add_argument("--isleep", type=int, default=4)
    ap.add_argument("--Wlate", type=int, default=0)
    ap.add_argument("--pipe", type=int, default=3)
    ap.add_argument("--adapt", action="store_true")
    ap.add_argument("--wlevels", type=str, default="16,20,24,28")
    ap.add_argument("--wthr", type=str, default="-20,20,55")
    ap.add_argument("--outflag", type=str, default="")
    ap.add_argument("--gpos", type=str, default="24")
    ap.add_argument("--Wc3", type=int, default=0)
    ap.add_argument("--Wcol", type=int, default=0)
    ap.add_argument("--ilv", type=int, default=0)
    ap.add_argument("--cpf", type=int, default=0)
    ap.add_argument("--wrole", type=str, default="20,20,20,24")
    ap.add_argument("--npre", type=int, default=6)
    ap.add_argument("--pace", type=str, default="30,3.45,20")
    ap.add_argument("--plevels", type=str, default="20,24,28,32")
    ap.add_argument("--pslow", type=int, default=40)
    ap.add_argument("--stat_i", type=int, default=2)
    ap.add_argument("--fpos", type=int, default=312)
    ap.add_argument("--opipe", type=int, default=1)
    ap.add_argument("--ogap", type=int, default=2)
    ap.add_argument("--osleep", type=int, default=2)
    ap.add_argument("--glob", type=int, default=0)
    ap.add_argument("--qpos", type=int, default=120)
    ap.add_argument("--qposd", type=int, default=130)
    ap.add_argument("--noprobe", action="store_true")
    ap.add_argument("--wsoff", type=lambda x: int(x, 0), default=0)
    a = ap.parse_args()
    open(a.out, "w").write(Gen(W=a.W, stamps=a.stamps, nt=not a.nont, tsleep=a.tsleep, csleep=a.csleep, abl=a.abl.split(","), gearly=a.gearly, isleep=a.isleep, wsoff=a.wsoff, qpos=a.qpos, qposd=a.qposd, probe=not a.noprobe, Wlate=a.Wlate, pipe=a.pipe, glob=a.glob, osleep=a.osleep, opipe=a.opipe, ogap=a.ogap, fpos=a.fpos, stat_i=a.stat_i, pslow=a.pslow, plevels=tuple(int(x) for x in a.plevels.split(",")), pace=(tuple(float(x) if "." in x else int(x) for x in a.pace.split(",")) if a.pace else None), npre=a.npre, wrole=tuple(int(x) for x in a.wrole.split(",")), cpf=a.cpf, ilv=a.ilv, Wc3=a.Wc3, Wcol=a.Wcol, gpos=tuple(int(x) for x in a.gpos.split(",")), outflag=(" " + a.outflag.replace("_", " ") if a.outflag else ""), adapt=a.adapt, wlevels=tuple(int(x) for x in a.wlevels.split(",")), wthr=tuple(int(x) for x in a.wthr.split(","))).build())
```

```python
import sys, struct

KN = "recurrent_scan__sliding_block_cached__geglu_ffn__decode"

RING_KB = 148
RING_BYTES = RING_KB * 1024
AUX = RING_BYTES
XN = AUX
XN_STRIDE = 1216
H_STRIDE = 576
QL = AUX + 4864
OW = AUX + 5376
FULL = AUX + 9472
FREE = AUX + 9728
STW = AUX + 9744
SC = AUX + 9808
CNT_STAT = AUX + 9840
CNT_O = AUX + 9844
FLAG_Q = AUX + 9848
FLAG_H = AUX + 9852
FLAG_SC = AUX + 9856
CNT_P = AUX + 9860
CNT_C = AUX + 9864
FLAG_CLR = AUX + 9868
WCLS = AUX + 9872
FLAG_F = AUX + 9876
CNT_M = AUX + 9880
PB = OW
FAC = QL
OB = AUX + 9984
LDS_TOTAL = AUX + 9984 + 2048

WS_CQ = 0
CQ_STRIDE = 8192
WS_CGU = 0x8000
CGU_STRIDE = 18432
SH_BASE = 0x8000
WS_ST = 0x1A000
WS_OP = 0x1E000
WS_PART = 0x5E000
PART_ROW = 9216
WS_SIZE = 0x5E000 + 32 * 9216
RW = XN

P_K, P_V, P_W = 72, 200, 328

def f32(x):
    return "0x%08x" % struct.unpack("<I", struct.pack("<f", x))[0]

LOG2E = 1.4426950408889634


class Gen:
    def __init__(self, W=20, stamps=False, nt=True, spin=1 << 16, sleep=True, tsleep=1, csleep=0, abl=(), gearly=-16, isleep=12, wsoff=0, qpos=120, qposd=130, probe=True, Wlate=None, gpos=(28,), doff=0, qoff=0, glob=0, opipe=1, ogap=2, osleep=0, stat_i=2, fpos=312, pace=None, plevels=(20, 24, 28, 32), pslow=40, npre=6, wrole=(20, 22, 22, 24), cpf=0, ilv=0, Wc3=0, Wcol=0, pipe=3, outflag="", adapt=False, wlevels=(16, 20, 24, 28), wthr=(-20, 20, 55)):
        self.o = []
        self.n = 0
        self.W = W
        self.doff = doff
        self.qoff = qoff
        self.glob = glob
        self.osleep = osleep
        self.opipe = opipe
        self.ogap = ogap
        self.fpos = fpos
        self.stat_i = stat_i
        self.pslow = pslow
        self.pace = pace
        self.plevels = plevels
        self.npre = npre
        self.wrole = wrole
        self.cpf = cpf
        self.ilv = ilv
        self.Wc3 = Wc3
        self.Wcol = Wcol
        self.gpos = gpos
        self.outflag = outflag
        self.adapt = adapt
        self.wlevels = wlevels
        self.wthr = wthr
        self.pipe = pipe
        self.Wlate = Wlate or W
        self.stamps = stamps
        self.nt = " nt" if nt else ""
        self.spin = spin
        self.sleep = sleep
        self.qpos = qpos
        self.qposd = qposd
        self.fgap = 32
        self.mbase = 4
        self.hpos = 190
        self.probe = probe
        self.gearly = gearly
        self.wsoff = wsoff
        self.isleep = isleep
        self.tsleep = tsleep
        self.abl = set(abl)
        self.csleep = csleep

    def e(self, s):
        for line in s.strip("\n").split("\n"):
            self.o.append(line if line.rstrip().endswith(":") and not line.startswith(" ") else "    " + line.strip())

    def lab(self, p="L"):
        self.n += 1
        return "%s_%d" % (p, self.n)

    def label(self, l):
        self.o.append(l + ":")

    def sreg(self, k):
        return 70 + 2 * k if k < 10 else 92 + 2 * (k - 10)

    def stamp(self, k):
        if self.stamps:
            self.e("s_memrealtime s[%d:%d]" % (self.sreg(k), self.sreg(k) + 1))

    def rawstamp(self, k, expr_reg):
        if self.stamps:
            self.e("s_sub_u32 s%d, %d, %s\ns_mov_b32 s%d, 0" % (self.sreg(k), self.spin, expr_reg, self.sreg(k) + 1))

    def flush_stamps(self, items, wave_off=False):
        if not self.stamps:
            return
        self.e("""
s_waitcnt lgkmcnt(0)
s_add_u32 s64, s26, 0x10000000
s_addc_u32 s65, s27, 0
s_mov_b32 s66, 0x100000
s_mov_b32 s67, 0x00020000
s_mul_i32 s68, s2, 512
s_mov_b64 exec, 1
""")
        if wave_off:
            self.e("s_lshl_b32 s64, s36, 6\ns_add_u32 s68, s68, s64\ns_add_u32 s64, s26, 0x10000000")
        for k, slot in items:
            self.e("""
v_mov_b32 v250, s%d
v_mov_b32 v251, s%d
v_mov_b32 v252, %d
buffer_store_dwordx2 v[250:251], v252, s[64:67], s68 offen
s_nop 1
""" % (self.sreg(k), self.sreg(k) + 1, slot * 8))

    def wait_lds(self, vaddr, sreg, thr, vtmp, cached=True, sleep=0):
        l = self.lab("Lw")
        d = self.lab("Ld")
        if cached:
            self.e("s_cmp_ge_i32 %s, %s\ns_cbranch_scc1 %s" % (sreg, thr, d))
        self.label(l)
        self.e("ds_read_b32 %s, %s\ns_waitcnt lgkmcnt(0)\nv_readfirstlane_b32 %s, %s" % (vtmp, vaddr, sreg, vtmp))
        self.e("s_cmp_ge_i32 %s, %s\ns_cbranch_scc1 %s" % (sreg, thr, d))
        sleep = sleep or self.csleep
        if sleep:
            self.e("s_sleep %d" % sleep)
        self.e("s_sub_i32 s69, s69, 1\ns_cmp_gt_i32 s69, 0\ns_cbranch_scc1 %s" % l)
        self.label(d)

    def prologue(self):
        self.e("""
s_cmp_ge_u32 s2, 256
s_cbranch_scc1 L_end
s_load_dwordx16 s[4:19], s[0:1], 0
s_load_dwordx8 s[20:27], s[0:1], 64
v_lshrrev_b32 v1, 6, v0
v_and_b32 v0, 63, v0
s_and_b32 s30, s2, 7
s_mov_b32 s69, 0x400000
v_readfirstlane_b32 s36, v1
s_lshr_b32 s31, s2, 3
s_lshr_b32 s32, s31, 4
s_lshl_b32 s33, s30, 1
s_add_u32 s32, s32, s33
s_lshr_b32 s34, s31, 2
s_and_b32 s34, s34, 3
s_and_b32 s35, s31, 3
s_lshl_b32 s33, s34, 4
s_add_u32 s33, s33, s32
s_cmp_eq_u32 s36, %d
s_cbranch_scc1 L_comm
s_cmp_lg_u32 s36, 0
s_cbranch_scc1 L_cons
""" % (4 if "perm" in self.abl else 1))

    def tile_ids(self):
        self.e("""
s_sub_u32 s38, s31, 8
s_cmp_ge_u32 s38, 9
s_cselect_b32 s37, 1, 0
s_cselect_b32 s39, 9, 0
s_sub_u32 s38, s38, s39
s_cmp_ge_u32 s31, 26
s_cbranch_scc0 %(l)s
s_sub_u32 s38, s31, 26
s_cmp_ge_u32 s38, 3
s_cselect_b32 s37, 17, 16
s_cselect_b32 s39, 3, 0
s_sub_u32 s38, s38, s39
%(l)s:
s_lshl_b32 s39, s30, 1
s_add_u32 s37, s37, s39
""" % dict(l=self.lab("Lt")))

    def loader(self):
        W = self.W
        nt = self.nt
        e = self.e
        self.stamp(0)
        e("""
s_setprio 3
PACE0
v_lshrrev_b32 v12, 3, v0
v_and_b32 v13, 7, v0
v_and_b32 v14, 6, v12
v_xor_b32 v13, v13, v14
v_lshlrev_b32 v13, 4, v13
s_lshl_b32 s46, s33, 21
s_lshl_b32 s47, s35, 17
s_add_u32 s46, s46, s47
s_add_u32 s46, s46, 0x180000
s_mov_b32 s63, 0x00020000
s_cmp_lt_u32 s31, 26
s_cbranch_scc1 L_ld_cfirst
v_lshrrev_b32 v8, 4, v0
v_and_b32 v9, 15, v0
v_lshlrev_b32 v10, 1, v8
v_xor_b32 v11, v9, v10
v_lshlrev_b32 v11, 4, v11
v_lshl_add_u32 v3, v8, 8, v11
v_xor_b32 v4, 0x80, v3
v_mov_b32 v5, v3
v_mov_b32 v6, v4
s_movk_i32 s41, 4096
s_mov_b32 s51, s46
s_mov_b32 s43, 0
s_mov_b32 s62, 0x8000000
s_mov_b32 m0, 0x12000
s_waitcnt lgkmcnt(0)
s_mov_b32 s60, s6
s_mov_b32 s61, s7
s_branch L_ld_pre
L_ld_cfirst:
s_mul_i32 s43, s30, 9
s_add_u32 s43, s43, s31
s_cmp_lt_u32 s31, 17
s_cselect_b32 s44, 8, 17
s_movk_i32 s40, 0x2400
s_cmp_lt_u32 s31, 8
s_cselect_b32 s44, s30, s44
s_cselect_b32 s40, 0x2000, s40
s_sub_u32 s43, s43, s44
s_lshl_b32 s51, s43, 7
v_mad_u32_u24 v3, v12, s40, v13
s_lshl_b32 s41, s40, 5
s_lshl_b32 s42, s40, 3
s_sub_u32 s42, s42, 1024
v_add_u32 v4, s42, v3
v_add_u32 v5, s42, v4
v_add_u32 v6, s42, v5
s_mul_i32 s62, s40, 576
s_mov_b32 m0, 0
s_cmp_lt_u32 s31, 17
s_waitcnt lgkmcnt(0)
s_cselect_b32 s60, s16, s18
s_cselect_b32 s61, s17, s19
s_cmp_lt_u32 s31, 8
s_cselect_b32 s60, s10, s60
s_cselect_b32 s61, s11, s61
L_ld_pre:
""".replace("PACE0\n", "s_memrealtime s[28:29]\n" if self.pace else ""))
        self.stamp(4)
        for k in range(self.npre):
            if k:
                e("s_add_u32 m0, m0, 4096\ns_add_u32 s51, s51, s41")
            for i, p in enumerate([3, 4, 5, 6]):
                off = " offset:%d" % (i * 1024) if i else ""
                e("buffer_load_dwordx4 v%d, s[60:63], s51 offen%s%s lds" % (p, off, nt))
        e("s_add_u32 s51, s51, s41")
        self.stamp(5)
        kvpat = """
v_lshrrev_b32 v8, 4, v0
v_and_b32 v9, 15, v0
v_lshlrev_b32 v10, 1, v8
v_xor_b32 v11, v9, v10
v_lshlrev_b32 v11, 4, v11
v_lshl_add_u32 v1, v8, 8, v11
v_xor_b32 v2, 0x80, v1
"""
        e(kvpat)
        e("""
v_mul_u32_u24 v20, 1152, v12
v_add_u32 v20, v20, v13
v_add_u32 v21, 8192, v20
v_add_u32 v22, 8192, v21
v_add_u32 v23, 8192, v22
""")
        for i in range(3):
            e("""
v_add_u32 v12, %d, v0
v_mul_u32_u24 v13, 2731, v12
v_lshrrev_b32 v13, 16, v13
v_mul_u32_u24 v14, 24, v13
v_sub_u32 v14, v12, v14
v_and_b32 v15, 6, v13
v_xor_b32 v14, v14, v15
v_mul_u32_u24 v13, 1152, v13
v_lshl_add_u32 v%d, v14, 4, v13
""" % (64 * i, 17 + i))
        e("""
v_mov_b32 v7, v17
v_add_u32 v8, 0xfffffc00, v18
v_add_u32 v9, 0xfffff800, v19
v_lshlrev_b32 v10, 2, v0
v_add_u32 v10, %d, v10
v_mov_b32 v11, %d
v_mov_b32 v18, %d
s_mov_b32 s55, 0
""" % (FULL, FREE, WCLS))
        self.tile_ids()
        cur = [W]

        def run(pats, step_reg_or_imm, n_iter, check_free, label=None):
            n = len(pats)
            L = self.lab("Lrun")
            e("s_mov_b32 s52, %d" % n_iter)
            self.label(L)
            if check_free:
                ok = self.lab("Lok")
                sl = self.lab("Lsl")
                e("s_add_i32 s54, s53, %d\ns_cmp_le_i32 s54, s55\ns_cbranch_scc1 %s" % (n - RING_KB, ok))
                self.label(sl)
                e("""
ds_read_b128 v[12:15], v11
s_waitcnt lgkmcnt(0)
v_min_u32 v12, v12, v13
v_min3_u32 v12, v12, v14, v15
s_nop 0
v_readfirstlane_b32 s55, v12
s_cmp_le_i32 s54, s55
s_cbranch_scc1 %s
s_sub_i32 s69, s69, 1
s_cmp_gt_i32 s69, 0
s_cbranch_scc1 %s
""" % (ok, sl))
                self.label(ok)
            e("s_mov_b32 m0, s50")
            e("s_add_u32 s50, s50, %d" % (n * 1024))
            for i, p in enumerate(pats):
                off = " offset:%d" % (i * 1024) if i else ""
                e("buffer_load_dwordx4 v%d, s[60:63], s51 offen%s%s lds" % (p, off, nt))
            e("s_add_u32 s51, s51, %s" % step_reg_or_imm)
            e("s_cmp_eq_u32 s50, %d\ns_cselect_b32 s50, 0, s50" % RING_BYTES)
            e("s_add_u32 s53, s53, %d" % n)
            lv = sorted(set(self.wrole) if not self.pace else self.plevels, reverse=True)
            if len(lv) > 1:
                dn = self.lab("Lwd")
                for i, w in enumerate(lv):
                    e("s_waitcnt vmcnt(%d)" % w)
                    if i < len(lv) - 1:
                        e("s_cmp_ge_u32 s57, %d\ns_cbranch_scc1 %s" % (w, dn))
                self.label(dn)
                e("s_sub_u32 s54, s53, s57\nv_mov_b32 v16, s54\nds_write_b32 v10, v16")
            else:
                e("s_waitcnt vmcnt(%d)" % cur[0])
                e("s_sub_u32 s54, s53, %d\nv_mov_b32 v16, s54\nds_write_b32 v10, v16" % cur[0])
            e("s_sub_u32 s52, s52, 1\ns_cmp_lg_u32 s52, 0\ns_cbranch_scc1 %s" % L)

        def batch(pats, srd, soff, step):
            n = len(pats)
            e("s_mov_b32 m0, s50")
            e("s_add_u32 s50, s50, %d" % (n * 1024))
            for i, p in enumerate(pats):
                off = " offset:%d" % (i * 1024) if i else ""
                e("buffer_load_dwordx4 v%d, s[%d:%d], %s offen%s%s lds" % (p, srd, srd + 3, soff, off, nt))
            e("s_add_u32 %s, %s, %s" % (soff, soff, step))
            e("s_add_u32 s53, s53, %d" % n)
            e("s_waitcnt vmcnt(%d)" % cur[0])
            e("s_sub_u32 s54, s53, %d\nv_mov_b32 v16, s54\nds_write_b32 v10, v16" % cur[0])

        def ilv_run():
            L = self.lab("Lilv")
            M = self.lab("Lilm")
            e("s_mov_b32 s64, s6\ns_mov_b32 s65, s7\ns_mov_b32 s66, 0x8000000\ns_mov_b32 s67, 0x00020000\ns_mov_b32 s52, 9\ns_branch %s" % M)
            self.label(L)
            batch([3, 4, 5, 6], 60, "s51", "s41")
            self.label(M)
            batch([3, 4, 5, 6], 60, "s51", "s41")
            batch([1, 2, 1, 2], 64, "s46", "4096")
            e("s_sub_u32 s52, s52, 1\ns_cmp_lg_u32 s52, 0\ns_cbranch_scc1 %s" % L)
            e("s_mov_b32 s56, 23\ns_branch L_ld_k")

        def pace():
            if not self.pace:
                return
            A, B, step = self.pace
            if self.glob:
                e("ds_read_b32 v17, v18")
            e("s_memrealtime s[64:65]\ns_sub_u32 s54, s53, s58\ns_mul_i32 s54, s54, %d\ns_lshr_b32 s54, s54, 8\ns_waitcnt lgkmcnt(0)" % int(B * 256))
            if self.glob:
                e("v_readfirstlane_b32 s65, v17\ns_cmp_lg_u32 s65, 0\ns_cselect_b32 s28, s65, s28")
            e("s_sub_u32 s64, s64, s28\ns_sub_u32 s64, s64, s54\ns_mov_b32 s57, s59")
            lv = sorted(self.plevels)
            for k in range(1, 4):
                e("s_add_u32 s54, s59, %d\ns_cmp_ge_i32 s64, %d\ns_cselect_b32 s57, s54, s57" % (4 * k, A + k * step))
            e("s_min_u32 s57, s57, %d" % max(lv))
            if min(lv) < 20:
                e("s_cmp_lt_i32 s64, %d\ns_cselect_b32 s57, %d, s57" % (A - self.pslow, min(lv)))

        def stream(W, sfx):
            cur[0] = W
            o0 = len(self.o)
            e("s_barrier\ns_cmp_ge_u32 s31, 26\ns_cbranch_scc1 L_ld_nocol")
            e("s_mov_b32 s50, %d\ns_mov_b32 s53, %d\ns_mov_b32 s56, 32" % (4096 * self.npre, 4 * self.npre))
            run([3, 4, 5, 6], "s41", 18 - self.npre, False)
            e("s_branch L_ld_k")
            self.label("L_ld_nocol")
            e("s_mov_b32 s46, s51\ns_mov_b32 s50, %d\ns_mov_b32 s53, %d\ns_mov_b32 s56, %d" % ((P_K + 4 * self.npre) * 1024, P_K + 4 * self.npre, 32 - self.npre))
            self.label("L_ld_k")
            self.stamp(1)
            e("s_mov_b32 s60, s6\ns_mov_b32 s61, s7\ns_mov_b32 s62, 0x8000000\ns_mov_b32 s51, s46")
            if "fine" in self.abl:
                for q in range(4):
                    run([1, 2, 1, 2], "4096", 8, True)
                    self.stamp(4 + q)
                e("s_mov_b32 s60, s8\ns_mov_b32 s61, s9\ns_mov_b32 s51, s46")
                for q in range(4):
                    run([1, 2, 1, 2], "4096", 8, True)
                    if q < 3:
                        self.stamp(8 + q)
            else:
                if self.pace:
                    e("s_sub_u32 s52, s56, 24\ns_mov_b32 s56, 8")
                    self.label("L_ld_seg")
                    pace()
                    o1 = len(self.o)
                    run([1, 2, 1, 2], "4096", 8, True)
                    del self.o[o1]
                    e("s_cmp_lg_u32 s56, 5\ns_cbranch_scc1 L_ld_seg2\ns_mov_b32 s60, s8\ns_mov_b32 s61, s9\ns_sub_u32 s51, s51, 0x20000")
                    self.label("L_ld_seg2")
                    e("s_mov_b32 s52, 8\ns_sub_u32 s56, s56, 1\ns_cmp_lg_u32 s56, 0\ns_cbranch_scc1 L_ld_seg")
                    pace()
                else:
                    o1 = len(self.o)
                    run([1, 2, 1, 2], "4096", 32, True)
                    self.o[o1] = "    s_mov_b32 s52, s56"
                if self.pace:
                    pass
                else:
                    e("s_mov_b32 s60, s8\ns_mov_b32 s61, s9\ns_sub_u32 s51, s51, 0x20000")
                    run([1, 2, 1, 2], "4096", 32, True)
            self.stamp(2)
            e("""
s_cmp_ge_u32 s31, 26
s_cbranch_scc1 L_ld_down
s_cmp_lt_u32 s31, 8
s_cbranch_scc1 L_ld_drain
s_mov_b32 s60, s12
s_mov_b32 s61, s13
s_mov_b32 s62, %d
s_mul_i32 s51, s37, 294912
s_lshl_b32 s54, s38, 7
s_add_u32 s51, s51, s54
""" % (4096 * 1152))
            run([20, 21, 22, 23], "36864", 8, True)
            e("s_branch L_ld_drain")
            self.label("L_ld_down")
            e("""
s_mov_b32 s60, s20
s_mov_b32 s61, s21
s_mov_b32 s62, %d
s_sub_u32 s51, s37, 16
s_mul_i32 s51, s51, 331776
s_mul_i32 s54, s38, 384
s_add_u32 s51, s51, s54
""" % (4608 * 1152))
            if self.pace:
                e("s_mov_b32 s56, 3")
                self.label("L_ld_dseg")
                run([7, 8, 9], "9216", 12, True)
                pace()
                e("s_sub_u32 s56, s56, 1\ns_cmp_lg_u32 s56, 0\ns_cbranch_scc1 L_ld_dseg")
            else:
                run([7, 8, 9], "9216", 36, True)
            self.label("L_ld_drain")
            for w in (32, 28, 24, 20, 16, 12, 8, 4, 0):
                if w < (max(self.wrole) if not self.pace else max(self.plevels)):
                    e("s_waitcnt vmcnt(%d)\ns_sub_u32 s54, s53, %d\nv_mov_b32 v16, s54\nds_write_b32 v10, v16" % (w, w))
            self.stamp(3)
            if self.stamps:
                e("s_getreg_b32 s%d, hwreg(HW_REG_HW_ID)\ns_mov_b32 s%d, 0" % (self.sreg(12), self.sreg(12) + 1))
            self.flush_stamps([(0, 0), (1, 1), (2, 2), (3, 3), (12, 21)] + ([(4 + q, 25 + q) for q in range(7)] if ("fine" in self.abl or "first" in self.abl) else []))
            e("s_endpgm")
            for i in range(o0, len(self.o)):
                self.o[i] = self.o[i].replace("L_ld_", "L_ld%s_" % sfx)

        wg_, wq_, wd_, w3_ = self.wrole
        e("""
s_mov_b32 s57, %d
s_cmp_lt_u32 s31, 8
s_cselect_b32 s57, %d, s57
s_and_b32 s54, s43, 7
s_cmp_eq_u32 s54, 3
s_cselect_b32 s57, %d, s57
s_cmp_ge_u32 s31, 26
s_cselect_b32 s57, %d, s57
s_cselect_b32 s58, %d, 0
s_cselect_b32 s54, %d, 0
s_mov_b32 s59, s57
s_cmp_lt_u32 s31, 8
s_cselect_b32 s54, %d, s54
s_add_u32 s28, s28, s54
""" % (wg_, wq_, w3_, wd_, P_K, self.doff, self.qoff))
        stream(self.W, "")

    def gather(self, loads, regs, vt, strycnt="s59", sleep=8, preissued=False, idle_sleep=0):
        e = self.e
        L = self.lab("Lg")
        D = self.lab("Lgd")
        P = self.lab("Lgp")
        n = len(loads)
        per = len(regs) // n
        assert n <= 6
        masks = [(self.mbase + 2 * k) for k in range(n)]
        e("s_mov_b32 %s, %d\ns_mov_b64 s[90:91], exec" % (strycnt, self.spin))
        if not preissued:
            for l in loads:
                e(l)
        e("s_branch %s" % P)
        self.label(L)
        for k, l in enumerate(loads):
            if n > 1:
                S = self.lab("Lgs")
                e("s_mov_b64 exec, s[%d:%d]\ns_cbranch_execz %s" % (masks[k], masks[k] + 1, S))
                e(l)
                self.label(S)
            else:
                e("s_mov_b64 exec, vcc")
                e(l)
        e("s_mov_b64 exec, s[90:91]")
        self.label(P)
        e("s_waitcnt vmcnt(0)")
        for k in range(n):
            rs = list(regs[k * per:(k + 1) * per])
            if len(rs) == 2:
                e("v_max_u32 v%d, v%d, v%d" % (vt + k, rs[0], rs[1]))
            else:
                e("v_max3_u32 v%d, v%d, v%d, v%d\nv_max_u32 v%d, v%d, v%d" % (vt + k, rs[0], rs[1], rs[2], vt + k, vt + k, rs[3]))
        if n == 1:
            e("v_cmp_eq_u32 vcc, -1, v%d" % vt)
        else:
            rs = [vt + k for k in range(n)]
            t = vt + n
            e("v_max_u32 v%d, v%d, v%d" % (t, rs[0], rs[1]))
            rs = rs[2:]
            while rs:
                if len(rs) >= 2:
                    e("v_max3_u32 v%d, v%d, v%d, v%d" % (t, t, rs[0], rs[1]))
                    rs = rs[2:]
                else:
                    e("v_max_u32 v%d, v%d, v%d" % (t, t, rs[0]))
                    rs = []
            e("v_cmp_eq_u32 vcc, -1, v%d" % t)
        e("s_cbranch_vccz %s" % D)
        if n > 1:
            for k in range(n):
                e("v_cmp_eq_u32 s[%d:%d], -1, v%d" % (masks[k], masks[k] + 1, vt + k))
        if idle_sleep:
            Z = self.lab("Lgz")
            e("s_and_b64 s[%d:%d], s[%d:%d], s[%d:%d]" % (self.mbase + 12, self.mbase + 13, masks[0], masks[0] + 1, masks[1], masks[1] + 1))
            e("s_cmp_lg_u64 s[%d:%d], s[90:91]\ns_cbranch_scc1 %s\ns_sleep %d" % (self.mbase + 12, self.mbase + 13, Z, idle_sleep))
            self.label(Z)
        if sleep:
            e("s_sleep %d" % sleep)
        e("s_sub_u32 %s, %s, 1\ns_cmp_lg_u32 %s, 0\ns_cbranch_scc1 %s" % (strycnt, strycnt, strycnt, L))
        self.label(D)

    def gather_pipe(self, loads, regs, vt, depth=3, gap=2, preissued=0):
        e = self.e
        L = self.lab("Lgq")
        D = self.lab("Lgqd")
        n = len(loads)
        e("s_mov_b32 s59, %d\ns_mov_b64 s[90:91], exec" % self.spin)
        for r in range(depth - 1 - preissued):
            for l in loads:
                e(l)
            e("s_sleep %d" % gap)
        self.label(L)
        for l in loads:
            e(l)
        e("s_mov_b64 exec, s[90:91]")
        e("s_waitcnt vmcnt(%d)" % (n * (depth - 1)))
        rs = list(regs)
        e("v_max3_u32 v%d, v%d, v%d, v%d" % (vt, rs[0], rs[1], rs[2]))
        e("v_max3_u32 v%d, v%d, v%d, v%d" % (vt + 1, rs[3], rs[4], rs[5]))
        rs = rs[6:]
        i = 0
        while rs:
            e("v_max3_u32 v%d, v%d, v%d, v%d" % (vt + i, vt + i, rs[0], rs[1]))
            rs = rs[2:]
            i ^= 1
        e("v_max_u32 v%d, v%d, v%d" % (vt, vt, vt + 1))
        e("v_cmp_eq_u32 vcc, -1, v%d" % vt)
        e("s_cbranch_vccz %s" % D)
        e("s_mov_b64 exec, vcc")
        e("s_sub_u32 s59, s59, 1\ns_cmp_lg_u32 s59, 0\ns_cbranch_scc1 %s" % L)
        e("s_mov_b64 exec, s[90:91]")
        self.label(D)

    def ws_srd(self):
        if self.wsoff:
            self.e("s_add_u32 s40, s26, %d\ns_addc_u32 s41, s27, 0" % self.wsoff)
        else:
            self.e("s_mov_b32 s40, s26\ns_mov_b32 s41, s27")
        self.e("s_mov_b32 s42, %d\ns_mov_b32 s43, 0x00020000" % WS_SIZE)

    def set_flag(self, addr, vt0, vt1):
        self.e("s_mov_b64 exec, 1\nv_mov_b32 v%d, %d\nv_mov_b32 v%d, 1\nds_write_b32 v%d, v%d\ns_mov_b64 exec, -1" % (vt0, addr, vt1, vt0, vt1))

    def comm(self):
        e = self.e
        self.label("L_comm")
        e("""
v_lshlrev_b32 v1, 3, v0
v_add_u32 v1, %d, v1
v_mov_b32 v2, 0
v_mov_b32 v3, 0
ds_write_b64 v1, v[2:3]
v_mov_b32 v4, -1
v_mov_b32 v5, -1
v_mov_b32 v6, -1
v_mov_b32 v7, -1
v_lshlrev_b32 v8, 4, v0
""" % FULL)
        if self.glob:
            e("s_memrealtime s[28:29]")
        self.tile_ids()
        self.ct_id()
        share = (WS_SIZE - SH_BASE) // 64
        assert share * 64 == WS_SIZE - SH_BASE and share % 128 == 0
        e("""
s_lshl_b32 s45, s33, 2
s_add_u32 s45, s45, s35
s_movk_i32 s46, %d
s_cmp_lt_u32 s31, 8
s_cselect_b32 s46, %d, s46
s_cselect_b32 s47, 0, %d
s_mul_i32 s52, s44, %d
s_lshl_b32 s44, s44, 7
s_add_u32 s44, s44, s47
v_lshrrev_b32 v9, 3, v0
v_mul_lo_u32 v9, v9, s46
v_and_b32 v10, 7, v0
v_lshl_add_u32 v9, v10, 4, v9
v_lshlrev_b32 v12, 2, v0
v_add_u32 v13, %d, v8
v_mov_b32 v23, %d
s_waitcnt lgkmcnt(0)
s_barrier
""" % (CGU_STRIDE, CQ_STRIDE, WS_CGU - 64 * 128, share, OB, CNT_C))
        if self.cpf:
            e("s_getpc_b64 s[54:55]")
            self.label("L_pc")
            e("s_sub_u32 s54, s54, L_pc-%s_kernel\ns_subb_u32 s55, s55, 0\ns_mul_i32 s56, s31, %d" % (KN, self.cpf * 128))
            for k in range(self.cpf):
                e("s_min_u32 s57, s56, L_code_end-%s_kernel-4\ns_load_dword s78, s[54:55], s57\ns_add_u32 s56, s56, 128" % KN)
        if "nocomm" in self.abl:
            e("s_waitcnt lgkmcnt(0)")
            self.set_flag(FLAG_Q, 21, 22)
            self.set_flag(FLAG_H, 21, 22)
            self.set_flag(FLAG_SC, 21, 22)
            e("s_endpgm")
        self.ws_srd()

        def c_store():
            self.wait_lds("v23", "s46", "4", "v14", cached=False, sleep=2)
            e("""
s_mov_b32 exec_hi, 0
ds_read_b128 v[16:19], v13
s_waitcnt lgkmcnt(0)
buffer_store_dwordx4 v[16:19], v9, s[40:43], s44 offen sc1
s_mov_b32 exec_hi, -1
""")
        e("""
s_mov_b32 s48, s24
s_mov_b32 s49, s25
s_mov_b32 s50, 256
s_mov_b32 s51, 0x00020000
s_cmp_ge_u32 s31, 8
s_cbranch_scc1 L_cm_noclr
s_mov_b32 exec_hi, 0
buffer_store_dwordx4 v[4:7], v9, s[40:43], s44 offen sc1
s_mov_b32 exec_hi, -1
s_add_u32 s52, s52, %d
""" % SH_BASE)
        for i in range(share // 1024):
            e("buffer_store_dwordx4 v[4:7], v8, s[40:43], s52 offen offset:%d sc1" % ((i % 4) * 1024))
            if i % 4 == 3:
                e("s_add_u32 s52, s52, 4096")
        rem = (share % 1024) // 16
        e("s_mov_b32 exec_hi, 0x%x" % ((1 << (rem - 32)) - 1))
        e("buffer_store_dwordx4 v[4:7], v8, s[40:43], s52 offen offset:%d sc1" % (((share // 1024) % 4) * 1024))
        e("""
s_lshr_b32 s46, s44, 5
FLAGVAL
v_mov_b32 v11, 0
s_mov_b64 exec, 1
s_waitcnt vmcnt(0)
buffer_store_dword v10, v11, s[48:51], s46 offen sc1
s_mov_b64 exec, -1
""".replace("FLAGVAL", "s_or_b32 s47, s28, 1\nv_mov_b32 v10, s47" if self.glob else "v_mov_b32 v10, 1"))
        self.stamp(7)
        c_store()
        self.label("L_cm_noclr")
        e("s_mov_b32 s47, %d\ns_cmp_ge_u32 s31, 26\ns_cselect_b32 s47, %d, s47\nv_mov_b32 v15, %d" % (self.qpos - self.fgap, P_K + self.qposd - self.fgap, FULL))
        self.wait_lds("v15", "s46", "s47", "v14", cached=False, sleep=4)
        self.stamp(8)
        L = self.lab("Lfl")
        D = self.lab("Lfld")
        e("s_mov_b32 s59, %d\ns_mov_b32 s46, 1" % self.spin)
        self.label(L)
        e("""
buffer_load_dword v14, v12, s[48:51], 0 offen sc1
s_waitcnt vmcnt(0)
v_cmp_eq_u32 vcc, 0, v14
s_cbranch_vccz %s
s_sleep 16
s_sub_u32 s59, s59, 1
s_cmp_lg_u32 s59, 0
s_cbranch_scc1 %s
""" % (D, L))
        if "nofl" in self.abl:
            del self.o[-8:]
        self.label(D)
        self.stamp(0)
        self.rawstamp(9, "s59")
        if self.glob:
            e("v_sub_u32 v16, s28, v14\nv_mov_b32 v17, %d\nv_med3_i32 v16, v16, v17, %d" % (-self.glob, 0) if False else
              "v_sub_u32 v16, s28, v14\nv_max_i32 v16, %d, v16\nv_min_i32 v16, %d, v16" % (-self.glob, self.glob))
            for ror in (1, 2, 4, 8):
                e("s_nop 1\nv_add_u32_dpp v16, v16, v16 row_ror:%d row_mask:0xf bank_mask:0xf" % ror)
            e("""
s_nop 0
v_readlane_b32 s52, v16, 0
v_readlane_b32 s53, v16, 16
v_readlane_b32 s54, v16, 32
v_readlane_b32 s55, v16, 48
s_add_i32 s52, s52, s53
s_add_i32 s54, s54, s55
s_add_i32 s52, s52, s54
s_ashr_i32 s52, s52, 6
s_sub_u32 s52, s28, s52
s_or_b32 s52, s52, 1
s_mov_b64 exec, 1
v_mov_b32 v16, %d
v_mov_b32 v17, s52
ds_write_b32 v16, v17
s_mov_b64 exec, -1
""" % WCLS)
        e("s_cmp_lt_u32 s31, 8\ns_cbranch_scc1 L_cm_nocs\ns_cmp_ge_u32 s31, 26\ns_cbranch_scc1 L_cm_nocs")
        c_store()
        self.label("L_cm_nocs")
        if "comm_fl" in self.abl:
            self.set_flag(FLAG_Q, 21, 22)
            self.set_flag(FLAG_H, 21, 22)
            self.set_flag(FLAG_SC, 21, 22)
            e("s_endpgm")
        e("s_add_u32 s47, s47, %d" % self.fgap)
        self.wait_lds("v15", "s46", "s47", "v14", cached=False, sleep=4)
        e("""
s_mul_i32 s46, s34, %d
s_lshl_b32 s47, s32, 9
s_add_u32 s46, s46, s47
s_mov_b32 exec_hi, 0
""" % CQ_STRIDE)
        if "noq" not in self.abl:
            self.gather(["buffer_load_dwordx4 v[16:19], v8, s[40:43], s46 offen sc1"], [16, 17, 18, 19], 20)
        e("v_add_u32 v21, %d, v8\nds_write_b128 v21, v[16:19]\ns_waitcnt lgkmcnt(0)" % QL)
        self.set_flag(FLAG_Q, 21, 22)
        self.stamp(1)
        self.rawstamp(10, "s59")
        if "comm_q" in self.abl:
            self.set_flag(FLAG_H, 21, 22)
            self.set_flag(FLAG_SC, 21, 22)
            e("s_endpgm")
        e("s_cmp_lt_u32 s31, 26\ns_cbranch_scc1 L_cm_noh")
        for i in range(3):
            e("""
v_add_u32 v16, %d, v0
v_mul_u32_u24 v17, 1821, v16
v_lshrrev_b32 v17, 16, v17
v_mul_u32_u24 v18, 36, v17
v_sub_u32 v18, v16, v18
v_mul_u32_u24 v19, %d, v17
v_lshl_add_u32 v%d, v18, 4, v19
v_mul_u32_u24 v19, %d, v17
v_lshrrev_b32 v20, 2, v18
v_lshl_add_u32 v19, v20, 6, v19
v_and_b32 v20, 1, v18
v_lshl_add_u32 v19, v20, 5, v19
v_bfe_u32 v20, v18, 1, 1
v_lshl_add_u32 v19, v20, 3, v19
v_add_u32 v%d, %d, v19
""" % (64 * i, CGU_STRIDE, 24 + i, H_STRIDE, 27 + i, XN))
        e("""
v_cmp_gt_u32 vcc, 16, v0
s_nop 1
v_cndmask_b32 v26, v24, v26, vcc
v_cndmask_b32 v29, v27, v29, vcc
s_sub_u32 s46, s37, 16
s_mul_i32 s46, s46, 576
s_add_u32 s47, s46, %d
s_add_u32 s46, s46, %d
""" % (WS_CGU + 9216, WS_CGU))
        self.wait_lds("v15", "s48", str(P_K + self.hpos), "v14", cached=False, sleep=4)
        loads = []
        for i in range(3):
            loads.append("buffer_load_dwordx4 v[%d:%d], v%d, s[40:43], s46 offen sc1" % (48 + 4 * i, 51 + 4 * i, 24 + i))
            loads.append("buffer_load_dwordx4 v[%d:%d], v%d, s[40:43], s47 offen sc1" % (60 + 4 * i, 63 + 4 * i, 24 + i))
        self.gather(loads, [r for i in range(3) for r in list(range(48 + 4 * i, 52 + 4 * i)) + list(range(60 + 4 * i, 64 + 4 * i))], 72)
        c0 = -2.0 * LOG2E * 0.7978845608028654
        e("s_mov_b32 s46, %s\ns_mov_b32 s47, %s\ns_mov_b32 s56, 0xffff0000" % (f32(c0), f32(c0 * 0.044715)))
        e("v_mov_b32 v20, s46")
        for r in range(12):
            g = 48 + r
            u = 60 + r
            e("""
v_lshlrev_b32 v16, 16, v%(g)d
v_and_b32 v17, s56, v%(g)d
v_mul_f32 v18, v16, v16
v_mul_f32 v19, v17, v17
v_fma_f32 v18, v18, s47, v20
v_fma_f32 v19, v19, s47, v20
v_mul_f32 v18, v18, v16
v_mul_f32 v19, v19, v17
v_exp_f32 v18, v18
v_exp_f32 v19, v19
s_nop 0
v_add_f32 v18, 1.0, v18
v_add_f32 v19, 1.0, v19
v_rcp_f32 v18, v18
v_rcp_f32 v19, v19
s_nop 0
v_mul_f32 v18, v18, v16
v_mul_f32 v19, v19, v17
v_cvt_pk_bf16_f32 v18, v18, v19
v_lshlrev_b32 v16, 16, v%(u)d
v_and_b32 v17, s56, v%(u)d
v_and_b32 v19, s56, v18
v_lshlrev_b32 v18, 16, v18
v_mul_f32 v18, v18, v16
v_mul_f32 v19, v19, v17
v_cvt_pk_bf16_f32 v%(g)d, v18, v19
""" % dict(g=g, u=u))
        for i in range(3):
            e("ds_write2_b64 v%d, v[%d:%d], v[%d:%d] offset0:0 offset1:2" % (27 + i, 48 + 4 * i, 49 + 4 * i, 50 + 4 * i, 51 + 4 * i))
        e("s_waitcnt lgkmcnt(0)")
        self.set_flag(FLAG_H, 21, 22)
        self.label("L_cm_noh")
        e("v_mov_b32 v16, %d" % CNT_STAT)
        self.wait_lds("v16", "s46", "4", "v17", cached=False, sleep=2)
        self.stamp(2)
        e("""
v_and_b32 v16, 7, v0
v_lshlrev_b32 v16, 3, v16
v_add_u32 v17, %d, v16
ds_read_b64 v[18:19], v17
s_mov_b32 s56, %s
v_and_b32 v27, 1, v0
v_lshlrev_b32 v27, 4, v27
v_bfe_u32 v28, v0, 1, 2
v_lshl_add_u32 v27, v28, 2, v27
v_add_u32 v27, %d, v27
s_waitcnt lgkmcnt(0)
v_max_f32_dpp v20, v18, v18 row_ror:2 row_mask:0xf bank_mask:0xf
s_nop 1
v_max_f32_dpp v20, v20, v20 row_ror:4 row_mask:0xf bank_mask:0xf
v_sub_f32 v22, v18, v20
v_mul_f32 v22, s56, v22
v_exp_f32 v22, v22
s_nop 0
v_mul_f32 v21, v22, v19
ds_write_b32 v27, v22
s_nop 0
v_add_f32_dpp v21, v21, v21 row_ror:2 row_mask:0xf bank_mask:0xf
s_nop 1
v_add_f32_dpp v21, v21, v21 row_ror:4 row_mask:0xf bank_mask:0xf
s_lshl_b32 s47, s45, 6
s_add_u32 s47, s47, %d
s_mov_b64 exec, 0xff
buffer_store_dwordx2 v[20:21], v16, s[40:43], s47 offen sc1
s_mov_b64 exec, -1
s_waitcnt lgkmcnt(0)
""" % (STW, f32(LOG2E), SC, WS_ST))
        self.set_flag(FLAG_SC, 23, 24)
        self.stamp(3)
        e("s_sub_u32 s46, s31, 8\ns_cmp_ge_u32 s46, 18\ns_cbranch_scc1 L_cm_end")
        e("""
v_lshrrev_b32 v16, 4, v0
v_and_b32 v17, 15, v0
v_lshlrev_b32 v18, 12, v16
v_lshl_add_u32 v18, v17, 4, v18
s_lshl_b32 s47, s37, 8
s_add_u32 s47, s47, %d
v_lshrrev_b32 v19, 2, v0
v_lshlrev_b32 v19, 3, v19
v_add_u32 v19, %d, v19
""" % (WS_ST, FAC))
        self.wait_lds("v15", "s46", str(self.fpos), "v14", cached=False, sleep=4)
        self.gather(["buffer_load_dwordx4 v[24:27], v18, s[40:43], s47 offen sc1"], [24, 25, 26, 27], 20, sleep=8)
        e("""
v_max_f32_dpp v28, v24, v24 row_ror:4 row_mask:0xf bank_mask:0xf
v_max_f32_dpp v29, v26, v26 row_ror:4 row_mask:0xf bank_mask:0xf
s_nop 0
v_max_f32_dpp v28, v28, v28 row_ror:8 row_mask:0xf bank_mask:0xf
v_max_f32_dpp v29, v29, v29 row_ror:8 row_mask:0xf bank_mask:0xf
v_sub_f32 v28, v24, v28
v_sub_f32 v29, v26, v29
v_mul_f32 v28, s56, v28
v_mul_f32 v29, s56, v29
v_exp_f32 v28, v28
v_exp_f32 v29, v29
s_nop 0
v_mul_f32 v30, v28, v25
v_mul_f32 v31, v29, v27
s_nop 0
v_add_f32_dpp v30, v30, v30 row_ror:4 row_mask:0xf bank_mask:0xf
v_add_f32_dpp v31, v31, v31 row_ror:4 row_mask:0xf bank_mask:0xf
s_nop 0
v_add_f32_dpp v30, v30, v30 row_ror:8 row_mask:0xf bank_mask:0xf
v_add_f32_dpp v31, v31, v31 row_ror:8 row_mask:0xf bank_mask:0xf
v_rcp_f32 v30, v30
v_rcp_f32 v31, v31
s_nop 0
v_mul_f32 v28, v28, v30
v_mul_f32 v29, v29, v31
ds_write_b64 v19, v[28:29]
s_waitcnt lgkmcnt(0)
""")
        self.set_flag(FLAG_F, 23, 24)
        self.label("L_cm_end")
        self.flush_stamps([(0, 4), (1, 5), (2, 6), (3, 7), (7, 16), (8, 17), (9, 18), (10, 19)])
        e("s_endpgm")

    def tlb_warm(self):
        e = self.e
        e("""
s_lshl_b32 s52, s33, 21
s_add_u32 s52, s52, 0x180000
s_lshl_b32 s53, s35, 17
s_add_u32 s52, s52, s53
s_load_dword s78, s[6:7], s52
s_load_dword s78, s[8:9], s52
s_cmp_ge_u32 s31, 26
s_cbranch_scc1 L_tw_dn
s_cmp_lt_u32 s31, 17
s_cselect_b32 s60, s16, s18
s_cselect_b32 s61, s17, s19
s_cmp_lt_u32 s31, 8
s_cselect_b32 s60, s10, s60
s_cselect_b32 s61, s11, s61
s_mov_b32 s53, 0x180000
s_load_dword s78, s[60:61], s53
s_mov_b32 s53, 0x300000
s_load_dword s78, s[60:61], s53
s_mov_b32 s53, 0x47ff00
s_load_dword s78, s[60:61], s53
s_cbranch_scc1 L_tw_end
s_mul_i32 s53, s37, 294912
s_load_dword s78, s[12:13], s53
s_add_u32 s53, s53, 294000
s_load_dword s78, s[12:13], s53
s_branch L_tw_end
L_tw_dn:
s_sub_u32 s53, s37, 16
s_mul_i32 s53, s53, 331776
s_load_dword s78, s[20:21], s53
s_add_u32 s53, s53, 331000
s_load_dword s78, s[20:21], s53
L_tw_end:
""")

    def ct_id(self):
        self.e("""
s_lshl_b32 s44, s30, 3
s_add_u32 s44, s44, s31
s_mul_i32 s46, s30, 9
s_add_u32 s46, s46, s31
s_add_u32 s47, s46, 56
s_add_u32 s46, s46, 119
s_cmp_lt_u32 s31, 17
s_cselect_b32 s46, s47, s46
s_cmp_lt_u32 s31, 8
s_cselect_b32 s44, s44, s46
""")

    def free_write(self, sval):
        self.e("s_mov_b64 exec, 1\nv_mov_b32 v4, %s\nds_write_b32 v3, v4\ns_mov_b64 exec, -1" % sval)

    def cons(self):
        e = self.e
        self.label("L_cons")
        if self.stamps:
            for k in range(15):
                e("s_mov_b64 s[%d:%d], 0" % (self.sreg(k), self.sreg(k) + 1))
        if "perm" in self.abl:
            e("s_min_u32 s36, s36, 4\ns_add_u32 s36, s36, 1")
        e("""
s_sub_u32 s36, s36, 2
v_mov_b32 v2, %d
s_lshl_b32 s44, s36, 2
s_add_u32 s44, s44, %d
v_mov_b32 v3, s44
s_mov_b32 s50, 0
v_and_b32 v8, 15, v0
v_lshrrev_b32 v9, 4, v0
v_lshrrev_b32 v10, 2, v0
v_and_b32 v11, 3, v0
s_mov_b32 s56, 0xffff0000
v_mul_u32_u24 v12, 1152, v9
v_lshl_add_u32 v12, v8, 4, v12
v_mov_b32 v13, 0x40000000
v_cmp_gt_u32 vcc, 8, v8
v_bfe_u32 v7, v0, 3, 2
v_lshlrev_b32 v7, 5, v7
v_cndmask_b32 v13, v13, v12, vcc
v_lshl_add_u32 v7, v10, 7, v7
v_lshl_add_u32 v7, v11, 3, v7
s_waitcnt lgkmcnt(0)
s_mov_b32 s60, s4
s_mov_b32 s61, s5
s_mov_b32 s62, 4608
s_mov_b32 s63, 0x00020000
""" % (FULL, FREE))
        self.ws_srd()
        if "nocons" in self.abl:
            e("s_barrier")
            self.free_write("0x10000")
            e("s_endpgm")
        if "conssleep" in self.abl or "consspin" in self.abl:
            e("s_barrier")
            self.free_write("0x10000")
            self.wait_lds("v2", "s50", "328", "v4", sleep=(32 if "conssleep" in self.abl else 0))
            e("s_endpgm")
        if "nocolc" in self.abl:
            e("s_branch L_cs_nocol")
        e("""
s_cmp_ge_u32 s31, 26
s_cbranch_scc1 L_cs_nocol
""")
        if "nox" not in self.abl:
            e("""
buffer_load_dwordx4 v[32:35], v12, s[60:63], 0 offen
buffer_load_dwordx4 v[36:39], v12, s[60:63], 0 offen offset:256
buffer_load_dwordx4 v[40:43], v12, s[60:63], 0 offen offset:512
buffer_load_dwordx4 v[44:47], v12, s[60:63], 0 offen offset:768
buffer_load_dwordx4 v[48:51], v13, s[60:63], 0 offen offset:1024
""")
        e("s_barrier")
        e("""
v_mul_u32_u24 v14, %d, v9
v_lshrrev_b32 v15, 2, v8
v_lshl_add_u32 v14, v15, 6, v14
v_and_b32 v15, 1, v8
v_lshl_add_u32 v14, v15, 5, v14
v_bfe_u32 v15, v8, 1, 1
v_lshl_add_u32 v14, v15, 3, v14
v_add_u32 v14, %d, v14
s_lshl_b32 s44, s36, 5
v_xor_b32 v15, s44, v7
v_mul_u32_u24 v16, %d, v11
v_lshl_add_u32 v16, v9, 4, v16
v_add_u32 v16, %d, v16
s_waitcnt vmcnt(0)
""" % (XN_STRIDE, XN, XN_STRIDE, XN))
        for k in range(20):
            e("v_lshlrev_b32 v%d, 16, v%d\nv_and_b32 v%d, s56, v%d" % (64 + 2 * k, 32 + k, 65 + 2 * k, 32 + k))
        e("v_add_f32 v52, v64, v65\nv_add_f32 v53, v66, v67")
        for k in range(2, 20):
            e("v_add_f32 v52, v52, v%d\nv_add_f32 v53, v53, v%d" % (64 + 2 * k, 65 + 2 * k))
        e("v_add_f32 v52, v52, v53")
        for ror in (8, 4, 2, 1):
            e("s_nop 1\nv_add_f32_dpp v52, v52, v52 row_ror:%d row_mask:0xf bank_mask:0xf" % ror)
        e("v_mul_f32 v52, %s, v52" % f32(1.0 / 576))
        e("v_cndmask_b32 v55, 0, v52, vcc")
        e("v_mov_b32 v53, 0\nv_mov_b32 v54, 0")
        for k in range(20):
            m = 55 if k >= 16 else 52
            e("v_sub_f32 v56, v%d, v%d\nv_sub_f32 v57, v%d, v%d\nv_fmac_f32 v53, v56, v56\nv_fmac_f32 v54, v57, v57" % (64 + 2 * k, m, 65 + 2 * k, m))
        e("v_add_f32 v53, v53, v54")
        for ror in (8, 4, 2, 1):
            e("s_nop 1\nv_add_f32_dpp v53, v53, v53 row_ror:%d row_mask:0xf bank_mask:0xf" % ror)
        e("""
v_mul_f32 v53, %s, v53
v_cvt_pk_bf16_f32 v52, v52, v53
v_and_b32 v53, s56, v52
v_lshlrev_b32 v52, 16, v52
v_add_f32 v53, %s, v53
v_cvt_pk_bf16_f32 v53, v53, v53
v_and_b32 v53, s56, v53
v_sqrt_f32 v53, v53
s_nop 0
v_cvt_pk_bf16_f32 v53, v53, v53
v_and_b32 v53, s56, v53
v_rcp_f32 v54, v53
""" % (f32(1.0 / 576), f32(1e-5)))
        for k in range(20):
            a, b = 64 + 2 * k, 65 + 2 * k
            e("""
v_sub_f32 v%(a)d, v%(a)d, v52
v_sub_f32 v%(b)d, v%(b)d, v52
v_cvt_pk_bf16_f32 v56, v%(a)d, v%(b)d
v_lshlrev_b32 v%(a)d, 16, v56
v_and_b32 v%(b)d, s56, v56
v_mul_f32 v57, v%(a)d, v54
v_mul_f32 v58, v%(b)d, v54
v_fma_f32 v%(a)d, -v57, v53, v%(a)d
v_fma_f32 v%(b)d, -v58, v53, v%(b)d
v_fmac_f32 v57, v%(a)d, v54
v_fmac_f32 v58, v%(b)d, v54
v_cvt_pk_bf16_f32 v%(d)d, v57, v58
""" % dict(a=a, b=b, d=32 + k))
        for t in range(4):
            e("ds_write2_b64 v14, v[%d:%d], v[%d:%d] offset0:%d offset1:%d" % (32 + 4 * t, 33 + 4 * t, 34 + 4 * t, 35 + 4 * t, 32 * t, 32 * t + 2))
        e("s_mov_b64 exec, vcc\nds_write2_b64 v14, v[48:49], v[50:51] offset0:128 offset1:130\ns_mov_b64 exec, -1")
        e("v_mov_b32 v20, 0\nv_mov_b32 v21, 0\nv_mov_b32 v22, 0\nv_mov_b32 v23, 0\ns_mov_b32 s51, 4")
        self.stamp(0)
        L = self.lab("Lcol")
        self.label(L)
        self.wait_lds("v2", "s50", "s51", "v4")
        e("""
ds_read_b64_tr_b16 v[24:25], v15
ds_read_b64_tr_b16 v[26:27], v15 offset:2048
ds_read_b128 v[28:31], v16
v_add_u32 v15, 4096, v15
v_add_u32 v16, 64, v16
s_add_u32 s51, s51, 4
s_cmp_le_u32 s51, %d
s_waitcnt lgkmcnt(0)
v_mfma_f32_16x16x32_bf16 v[20:23], v[24:27], v[28:31], v[20:23]
s_cbranch_scc1 %s
""" % (P_K, L))
        e("""
s_lshl_b32 s45, s36, 5
s_add_u32 s45, s45, %d
v_lshlrev_b32 v17, 7, v11
v_lshl_add_u32 v17, v9, 3, v17
v_add_u32 v17, s45, v17
v_mov_b32 v18, %d
v_mov_b32 v19, 1
s_nop 2
v_cvt_pk_bf16_f32 v24, v20, v21
v_cvt_pk_bf16_f32 v25, v22, v23
s_mov_b32 exec_lo, 0x000f000f
s_mov_b32 exec_hi, 0x000f000f
ds_write_b64 v17, v[24:25]
s_mov_b64 exec, 1
ds_add_u32 v18, v19
s_mov_b64 exec, -1
s_branch L_cs_k
L_cs_nocol:
s_barrier
L_cs_k:
""" % (OB, CNT_C))
        self.stamp(1)
        if "colonly" in self.abl:
            self.free_write("0x10000")
            e("s_endpgm")
        e("""
v_and_b32 v5, 7, v0
v_lshlrev_b32 v5, 1, v5
v_xor_b32 v5, v5, v9
v_lshlrev_b32 v5, 4, v5
v_lshl_add_u32 v5, v8, 8, v5
v_and_b32 v6, 7, v10
v_lshlrev_b32 v6, 5, v6
v_lshl_add_u32 v6, v10, 8, v6
v_lshl_add_u32 v6, v11, 3, v6
s_lshl_b32 s52, s36, 2
s_add_u32 s51, s52, %d
s_lshl_b32 s53, s51, 10
""" % P_K)
        self.free_write("s51")

        def advance():
            e("s_add_u32 s51, s51, 16\ns_add_u32 s53, s53, 16384\ns_sub_u32 s54, s53, %d\ns_cmp_ge_u32 s53, %d\ns_cselect_b32 s53, s54, s53" % (RING_BYTES, RING_BYTES))

        for i in range(8):
            e("s_add_u32 s55, s51, 4")
            self.wait_lds("v2", "s50", "s55", "v4")
            r = 128 + 16 * i
            e("""
v_add_u32 v12, s53, v5
v_xor_b32 v13, 64, v12
v_xor_b32 v14, 0x80, v12
v_xor_b32 v15, 0xc0, v12
ds_read_b128 v[%d:%d], v12
ds_read_b128 v[%d:%d], v13
ds_read_b128 v[%d:%d], v14
ds_read_b128 v[%d:%d], v15
""" % (r, r + 3, r + 4, r + 7, r + 8, r + 11, r + 12, r + 15))
            advance()
            if i & 1:
                e("s_waitcnt lgkmcnt(0)")
                self.free_write(str(P_V) if i == 7 else "s51")
        self.stamp(2)
        e("v_mov_b32 v12, %d" % FLAG_Q)
        self.wait_lds("v12", "s54", "1", "v4", cached=False)
        e("""
v_and_b32 v12, 1, v0
v_lshlrev_b32 v12, 8, v12
v_lshl_add_u32 v12, v9, 4, v12
v_add_u32 v12, %d, v12
ds_read_b128 v[32:35], v12
ds_read_b128 v[36:39], v12 offset:64
ds_read_b128 v[40:43], v12 offset:128
ds_read_b128 v[44:47], v12 offset:192
s_mov_b32 s57, %s
s_mov_b32 s58, %s
s_waitcnt lgkmcnt(0)
""" % (QL, f32(128 ** -0.5), f32(LOG2E)))
        for s in range(4):
            for i in range(8):
                c = "0" if s == 0 else "v[%d:%d]" % (48 + 4 * i, 51 + 4 * i)
                e("v_mfma_f32_16x16x32_bf16 v[%d:%d], v[%d:%d], v[%d:%d], %s" % (48 + 4 * i, 51 + 4 * i, 128 + 16 * i + 4 * s, 131 + 16 * i + 4 * s, 32 + 4 * s, 35 + 4 * s, c))
        e("s_nop 1")
        for k in range(16):
            a, b = 48 + 2 * k, 49 + 2 * k
            e("""
v_cvt_pk_bf16_f32 v12, v%(a)d, v%(b)d
v_lshlrev_b32 v%(a)d, 16, v12
v_and_b32 v%(b)d, s56, v12
v_mul_f32 v%(a)d, s57, v%(a)d
v_mul_f32 v%(b)d, s57, v%(b)d
v_cvt_pk_bf16_f32 v12, v%(a)d, v%(b)d
v_lshlrev_b32 v%(a)d, 16, v12
v_and_b32 v%(b)d, s56, v12
""" % dict(a=a, b=b))
        e("v_max3_f32 v12, v48, v49, v50")
        for k in range(51, 79, 2):
            e("v_max3_f32 v12, v12, v%d, v%d" % (k, k + 1))
        e("""
v_max_f32 v12, v12, v79
v_mov_b32 v13, v12
s_nop 1
v_permlane16_swap_b32 v12, v13
s_nop 0
v_max_f32 v12, v12, v13
v_mov_b32 v13, v12
s_nop 1
v_permlane32_swap_b32 v12, v13
s_nop 0
v_max_f32 v12, v12, v13
v_and_b32 v14, 1, v0
v_lshlrev_b32 v14, 4, v14
v_add_u32 v14, %d, v14
s_lshl_b32 s54, s36, 2
v_add_u32 v15, s54, v14
v_mov_b32 v16, %d
v_mov_b32 v17, 1
s_mov_b64 exec, 3
ds_write_b32 v15, v12
s_mov_b64 exec, 1
ds_add_u32 v16, v17
s_mov_b64 exec, -1
""" % (SC, CNT_M))
        self.wait_lds("v16", "s54", "4", "v4", cached=False)
        e("ds_read_b128 v[16:19], v14\ns_waitcnt lgkmcnt(0)\nv_max3_f32 v12, v16, v17, v18\nv_max_f32 v12, v12, v19")
        for k in range(32):
            e("v_sub_f32 v%d, v%d, v12" % (48 + k, 48 + k))
        for k in range(32):
            e("v_mul_f32 v%d, s58, v%d" % (48 + k, 48 + k))
        for k in range(32):
            e("v_exp_f32 v%d, v%d" % (48 + k, 48 + k))
        e("v_add_f32 v13, v48, v49\nv_add_f32 v14, v50, v51")
        for k in range(52, 80, 2):
            e("v_add_f32 v13, v13, v%d\nv_add_f32 v14, v14, v%d" % (k, k + 1))
        for k in range(16):
            e("v_cvt_pk_bf16_f32 v%d, v%d, v%d" % (80 + k, 48 + 2 * k, 49 + 2 * k))
        e("""
v_add_f32 v13, v13, v14
v_mov_b32 v14, v13
s_nop 1
v_permlane16_swap_b32 v13, v14
s_nop 0
v_add_f32 v13, v13, v14
v_mov_b32 v14, v13
s_nop 1
v_permlane32_swap_b32 v13, v14
s_nop 0
v_add_f32 v13, v13, v14
s_lshl_b32 s54, s36, 4
s_add_u32 s54, s54, %d
v_lshlrev_b32 v14, 3, v0
v_add_u32 v14, s54, v14
v_and_b32 v15, 1, v0
v_lshlrev_b32 v15, 6, v15
v_lshl_add_u32 v15, v9, 4, v15
v_add_u32 v31, %d, v15
s_lshr_b32 s54, s36, 1
s_lshl_b32 s54, s54, 7
s_and_b32 s55, s36, 1
s_lshl_b32 s55, s55, 3
s_add_u32 s54, s54, s55
v_add_u32 v15, s54, v31
s_mov_b64 exec, 3
ds_write_b64 v14, v[12:13]
s_mov_b32 exec_lo, 0x00030003
s_mov_b32 exec_hi, 0x00030003
""" % (STW, PB))
        for i in range(8):
            e("ds_write_b64 v15, v[%d:%d] offset:%d" % (80 + 2 * i, 81 + 2 * i, 256 * i))
        e("""
s_mov_b64 exec, 1
v_mov_b32 v30, %d
v_mov_b32 v15, 1
ds_add_u32 v30, v15
s_mov_b64 exec, -1
""" % CNT_STAT)
        self.stamp(3)
        self.tile_ids()
        e("""
v_mov_b32 v26, 1
v_lshlrev_b32 v29, 2, v0
s_lshl_b32 s49, s33, 2
s_add_u32 s49, s49, s35
s_lshl_b32 s49, s49, 10
s_lshl_b32 s54, s36, 8
s_add_u32 s49, s49, s54
s_add_u32 s49, s49, %d
v_and_b32 v24, 1, v9
v_cmp_eq_u32 s[4:5], 1, v24
v_lshrrev_b32 v25, 1, v9
v_cmp_eq_u32 s[6:7], 1, v25
s_lshl_b32 s54, s36, 6
v_xor_b32 v6, s54, v6
s_mov_b32 s53, %d
s_mov_b32 s55, %d
""" % (WS_OP, (P_V % RING_KB) * 1024, P_V + 8))
        for k in range(8):
            e("v_mov_b32 v%d, 0" % (96 + k))
        self.wait_lds("v30", "s54", "4", "v4", cached=False)
        Lv = self.lab("Lpv")
        self.label(Lv)
        e("v_add_u32 v12, s53, v6\nv_xor_b32 v13, 32, v12\nds_read_b128 v[32:35], v31")
        self.wait_lds("v2", "s50", "s55", "v4")
        e("""
ds_read_b64_tr_b16 v[128:129], v12
ds_read_b64_tr_b16 v[130:131], v12 offset:4096
ds_read_b64_tr_b16 v[132:133], v13
ds_read_b64_tr_b16 v[134:135], v13 offset:4096
v_add_u32 v31, 128, v31
s_add_u32 s53, s53, 8192
s_cmp_eq_u32 s53, %d
s_cselect_b32 s53, 0, s53
s_cmp_eq_u32 s55, %d
s_waitcnt lgkmcnt(2)
v_mfma_f32_16x16x32_bf16 v[96:99], v[32:35], v[128:131], v[96:99]
s_waitcnt lgkmcnt(0)
v_mfma_f32_16x16x32_bf16 v[100:103], v[32:35], v[132:135], v[100:103]
s_cbranch_scc1 L_cs_pvd
""" % (RING_BYTES, P_W))
        self.free_write("s55")
        e("s_add_u32 s55, s55, 8\ns_branch %s" % Lv)
        self.label("L_cs_pvd")
        if "nopost" in self.abl:
            self.free_write("0x10000")
            e("s_branch L_cs_end")
        e("""
s_nop 5
v_cndmask_b32 v104, v96, v97, s[6:7]
s_nop 0
v_cndmask_b32 v105, v100, v101, s[6:7]
v_cndmask_b32 v104, v104, v105, s[4:5]
buffer_store_dword v104, v29, s[40:43], s49 offen sc1
""")
        self.stamp(10)
        self.free_write(str(P_W))
        self.label("L_cs_nolast")
        self.stamp(4)
        e("""
s_cmp_lt_u32 s31, 8
s_cbranch_scc1 L_cs_red
s_cmp_ge_u32 s31, 26
s_cbranch_scc1 L_cs_down
""")
        if "notile" in self.abl:
            e("s_branch L_cs_end")
        ringw = (P_W % RING_KB) * 1024
        e("""
v_lshlrev_b32 v20, 16, v9
v_lshl_add_u32 v20, v8, 4, v20
v_and_b32 v16, 8, v0
v_lshl_add_u32 v20, v16, 4, v20
s_lshl_b32 s46, s37, 12
s_and_b32 s47, s36, 1
s_lshl_b32 s47, s47, 9
s_add_u32 s46, s46, s47
s_lshr_b32 s47, s36, 1
s_lshl_b32 s47, s47, 7
s_add_u32 s46, s46, s47
s_add_u32 s46, s46, %d
s_lshl_b32 s54, s36, 5
v_xor_b32 v12, s54, v7
v_add_u32 v12, %d, v12
v_mov_b32 v25, %d
s_mul_i32 s44, s37, %d
s_lshl_b32 s45, s38, 10
s_add_u32 s44, s44, s45
s_lshl_b32 s45, s36, 8
s_add_u32 s44, s44, s45
s_add_u32 s44, s44, %d
s_lshl_b32 s54, s36, 9
s_add_u32 s54, s54, %d
v_lshlrev_b32 v21, 7, v9
v_bfe_u32 v16, v0, 3, 1
v_lshl_add_u32 v21, v16, 6, v21
v_lshl_add_u32 v21, v11, 4, v21
v_bfe_u32 v16, v0, 2, 1
v_lshl_add_u32 v21, v16, 3, v21
v_add_u32 v21, s54, v21
v_lshlrev_b32 v23, 7, v11
v_lshl_add_u32 v23, v9, 4, v23
v_add_u32 v23, %d, v23
""" % (WS_OP, ringw, CNT_P, PART_ROW, WS_PART, OB, OB))
        loads = ["buffer_load_dwordx4 v[%d:%d], v20, s[40:43], s46 offen offset:%d sc1" % (216 + 4 * k, 219 + 4 * k, 1024 * k) for k in range(4)]
        e("""
v_lshlrev_b32 v16, 5, v9
v_lshl_add_u32 v16, v11, 3, v16
s_lshr_b32 s47, s36, 1
s_lshl_b32 s47, s47, 2
s_add_u32 s47, s47, %d
v_add_u32 v16, s47, v16
v_mov_b32 v17, %d
""" % (FAC, FLAG_F))
        self.wait_lds("v17", "s47", "1", "v4", cached=False)
        e("ds_read_b32 v234, v16\ns_waitcnt lgkmcnt(0)")
        for g in self.gpos:
            self.wait_lds("v2", "s50", str(P_W + g), "v4")
            for l in loads:
                e(l)
        self.stamp(8)
        for s in range(8):
            if s in (0, 6, 7):
                self.wait_lds("v2", "s50", str(P_W + (24 if s == 0 else 4 * (s + 1))), "v4")
            e("ds_read_b64_tr_b16 v[%d:%d], v12 offset:%d" % (128 + 4 * s, 129 + 4 * s, 4096 * s))
            e("ds_read_b64_tr_b16 v[%d:%d], v12 offset:%d" % (130 + 4 * s, 131 + 4 * s, 4096 * s + 2048))
        Lo = self.lab("Lgo")
        Dn = self.lab("Lgod")

        def ocheck():
            e("v_max3_u32 v36, v216, v217, v218\nv_max3_u32 v37, v219, v220, v221")
            for i, r in enumerate(range(222, 232, 2)):
                e("v_max3_u32 v%d, v%d, v%d, v%d" % (36 + (i & 1), 36 + (i & 1), r, r + 1))
            e("v_max_u32 v36, v36, v37\nv_cmp_eq_u32 vcc, -1, v36\ns_cbranch_vccz %s" % Dn)
        e("s_mov_b32 s59, %d" % self.spin)
        e("s_waitcnt vmcnt(0)")
        ocheck()
        e("s_mov_b64 exec, vcc")
        for r in range(self.opipe - 1):
            for l in loads:
                e(l)
            e("s_sleep %d" % self.ogap)
        self.label(Lo)
        if self.osleep:
            e("s_sleep %d" % self.osleep)
        for l in loads:
            e(l)
        e("s_mov_b64 exec, -1\ns_waitcnt vmcnt(%d)" % (4 * (self.opipe - 1)))
        ocheck()
        e("s_mov_b64 exec, vcc\ns_sub_u32 s59, s59, 1\ns_cmp_lg_u32 s59, 0\ns_cbranch_scc1 %s\ns_mov_b64 exec, -1" % Lo)
        self.label(Dn)
        self.stamp(5)
        self.rawstamp(7, "s59")
        for k in range(4):
            e("v_mul_f32_dpp v%d, v234, v%d quad_perm:[0,0,0,0] row_mask:0xf bank_mask:0xf" % (240 + k, 216 + k))
        for j in range(1, 4):
            for k in range(4):
                e("v_fmac_f32_dpp v%d, v234, v%d quad_perm:[%d,%d,%d,%d] row_mask:0xf bank_mask:0xf" % (240 + k, 216 + 4 * j + k, j, j, j, j))
        e("""
v_cvt_pk_bf16_f32 v244, v240, v241
v_cvt_pk_bf16_f32 v245, v242, v243
ds_write_b64 v21, v[244:245]
s_mov_b64 exec, 1
ds_add_u32 v25, v26
s_mov_b64 exec, -1
""")
        self.wait_lds("v25", "s54", "4", "v4", cached=False)
        for s in range(8):
            e("ds_read_b128 v[%d:%d], v23 offset:%d" % (160 + 4 * s, 163 + 4 * s, 512 * (s >> 1) + 64 * (s & 1)))
        for s in range(8):
            e("s_waitcnt lgkmcnt(%d)" % (7 - s))
            e("v_mfma_f32_16x16x32_bf16 v[240:243], v[%d:%d], v[%d:%d], %s" % (160 + 4 * s, 163 + 4 * s, 128 + 4 * s, 131 + 4 * s, "v[240:243]" if s else "0"))
        e("""
s_nop 7
v_cndmask_b32 v244, v240, v241, s[4:5]
v_cndmask_b32 v245, v242, v243, s[4:5]
v_cndmask_b32 v244, v244, v245, s[6:7]
buffer_store_dword v244, v29, s[40:43], s44 offen sc1
""")
        self.stamp(6)
        e("s_branch L_cs_end")
        self.label("L_cs_down")
        e("""
v_bfe_u32 v13, v0, 3, 2
v_mul_u32_u24 v14, 384, v10
v_lshl_add_u32 v14, v11, 3, v14
v_add_u32 v14, %d, v14
s_mul_i32 s54, s36, 3
v_xor_b32 v16, s54, v13
v_lshl_add_u32 v16, v16, 5, v14
s_add_u32 s54, s54, 1
v_xor_b32 v17, s54, v13
v_lshl_add_u32 v17, v17, 5, v14
s_add_u32 s54, s54, 1
v_xor_b32 v18, s54, v13
v_lshl_add_u32 v18, v18, 5, v14
s_mul_i32 s44, s37, %d
s_mul_i32 s45, s38, 3072
s_add_u32 s44, s44, s45
s_mul_i32 s45, s36, 768
s_add_u32 s44, s44, s45
s_add_u32 s44, s44, %d
v_mov_b32 v12, %d
""" % (ringw, PART_ROW, WS_PART, FLAG_H))
        self.wait_lds("v12", "s54", "1", "v4", cached=False)
        e("""
v_mul_u32_u24 v20, %d, v11
v_lshl_add_u32 v20, v9, 4, v20
v_add_u32 v20, %d, v20
s_mov_b32 s51, %d
""" % (H_STRIDE, XN, P_W + 12))
        for k in range(12):
            e("v_mov_b32 v%d, 0" % (240 + k))
        L = self.lab("Ldn")
        self.label(L)
        self.wait_lds("v2", "s50", "s51", "v4")
        e("ds_read_b128 v[232:235], v20")
        for q in range(3):
            r = 192 + 4 * q
            e("ds_read_b64_tr_b16 v[%d:%d], v%d" % (r, r + 1, 16 + q))
            e("ds_read_b64_tr_b16 v[%d:%d], v%d offset:6144" % (r + 2, r + 3, 16 + q))
        e("v_add_u32 v20, 64, v20")
        for q in range(3):
            e("v_add_u32 v%d, 12288, v%d" % (16 + q, 16 + q))
        e("s_add_u32 s51, s51, 12\ns_cmp_le_u32 s51, %d" % (P_W + 108))
        for q in range(3):
            r = 192 + 4 * q
            e("s_waitcnt lgkmcnt(%d)" % (4 - 2 * q))
            e("v_mfma_f32_16x16x32_bf16 v[%d:%d], v[232:235], v[%d:%d], v[%d:%d]" % (240 + 4 * q, 243 + 4 * q, r, r + 3, 240 + 4 * q, 243 + 4 * q))
        e("s_cbranch_scc1 %s" % L)
        e("""
s_nop 2
v_cndmask_b32 v232, v240, v241, s[4:5]
v_cndmask_b32 v233, v242, v243, s[4:5]
v_cndmask_b32 v232, v232, v233, s[6:7]
buffer_store_dword v232, v29, s[40:43], s44 offen sc1
v_cndmask_b32 v234, v244, v245, s[4:5]
v_cndmask_b32 v235, v246, v247, s[4:5]
v_cndmask_b32 v234, v234, v235, s[6:7]
buffer_store_dword v234, v29, s[40:43], s44 offen offset:256 sc1
v_cndmask_b32 v236, v248, v249, s[4:5]
v_cndmask_b32 v237, v250, v251, s[4:5]
v_cndmask_b32 v236, v236, v237, s[6:7]
buffer_store_dword v236, v29, s[40:43], s44 offen offset:512 sc1
""")
        self.stamp(6)
        e("s_branch L_cs_end")
        self.label("L_cs_red")
        if "nored" in self.abl:
            e("s_branch L_cs_end")
        e("""
s_lshl_b32 s44, s30, 3
s_add_u32 s44, s44, s31
s_lshl_b32 s45, s36, 6
s_add_u32 s44, s44, s45
s_cmp_ge_u32 s44, 72
s_cbranch_scc1 L_cs_end
s_lshr_b32 s54, s44, 1
s_lshl_b32 s54, s54, 5
s_and_b32 s45, s44, 1
s_mul_i32 s45, s45, 2304
s_add_u32 s54, s54, s45
v_and_b32 v17, 7, v0
v_bfe_u32 v42, v0, 2, 1
v_mul_u32_u24 v42, 1152, v42
v_lshl_add_u32 v42, v11, 3, v42
buffer_load_dwordx2 v[40:41], v42, s[60:63], s54 offen
v_bfe_u32 v16, v0, 3, 2
v_lshrrev_b32 v18, 5, v0
v_lshl_add_u32 v16, v18, 4, v16
v_mul_u32_u24 v16, %d, v16
v_lshl_add_u32 v16, v17, 4, v16
s_lshl_b32 s44, s44, 7
s_add_u32 s44, s44, %d
s_add_u32 s45, s44, %d
s_add_u32 s46, s45, %d
s_add_u32 s47, s46, %d
s_mov_b32 s57, %s
s_mov_b32 s60, s22
s_mov_b32 s61, s23
""" % (PART_ROW, WS_PART, 4 * PART_ROW, 4 * PART_ROW, 4 * PART_ROW, f32(-LOG2E)))
        self.stamp(8)
        loads = ["buffer_load_dwordx4 v[%d:%d], v16, s[40:43], s%d offen sc1" % (48 + 4 * k, 51 + 4 * k, 44 + k) for k in range(4)]
        Lp = self.lab("Lpr")
        Lq = self.lab("Lprd")
        e("s_mov_b32 s59, %d\ns_mov_b32 exec_lo, 1\ns_mov_b32 exec_hi, 1" % self.spin)
        self.label(Lp)
        e("""
buffer_load_dword v48, v16, s[40:43], s44 offen sc1
buffer_load_dword v56, v16, s[40:43], s46 offen sc1
s_waitcnt vmcnt(0)
v_min_u32 v64, v48, v56
v_cmp_ne_u32 vcc, -1, v64
s_cbranch_vccnz %s
s_sleep %d
s_sub_u32 s59, s59, 1
s_cmp_lg_u32 s59, 0
s_cbranch_scc1 %s
""" % (Lq, self.isleep, Lp))
        self.label(Lq)
        e("""
s_mov_b64 exec, -1
v_lshlrev_b32 v76, 16, v40
v_and_b32 v77, s56, v40
v_lshlrev_b32 v78, 16, v41
v_and_b32 v79, s56, v41
""")
        if self.pipe:
            self.gather_pipe(loads, list(range(48, 64)), 64, depth=self.pipe)
        else:
            self.gather(loads, list(range(48, 64)), 64, sleep=self.tsleep)
        self.stamp(5)
        self.rawstamp(7, "s59")
        for k in range(4):
            e("v_add_f32 v%d, v%d, v%d" % (64 + k, 48 + k, 52 + k))
        for k in range(4):
            e("v_add_f32 v%d, v%d, v%d" % (68 + k, 56 + k, 60 + k))
        for k in range(4):
            e("v_add_f32 v%d, v%d, v%d" % (64 + k, 64 + k, 68 + k))
        for k in range(4):
            e("v_add_f32_dpp v%d, v%d, v%d row_ror:8 row_mask:0xf bank_mask:0xf" % (64 + k, 64 + k, 64 + k))
        for k in range(4):
            e("v_mov_b32 v%d, v%d" % (68 + k, 64 + k))
        e("s_nop 0")
        for k in range(4):
            e("v_permlane16_swap_b32 v%d, v%d" % (64 + k, 68 + k))
        for k in range(4):
            e("v_add_f32 v%d, v%d, v%d" % (64 + k, 64 + k, 68 + k))
        e("""
v_cvt_pk_bf16_f32 v68, v64, v65
v_cvt_pk_bf16_f32 v69, v66, v67
v_lshlrev_b32 v64, 16, v68
v_and_b32 v65, s56, v68
v_lshlrev_b32 v66, 16, v69
v_and_b32 v67, s56, v69
""")
        for k in range(4):
            e("v_mul_f32 v%d, s57, v%d" % (72 + k, 64 + k))
        for k in range(4):
            e("v_exp_f32 v%d, v%d" % (72 + k, 72 + k))
        for k in range(4):
            e("v_add_f32 v%d, 1.0, v%d" % (72 + k, 72 + k))
        for k in range(4):
            e("v_rcp_f32 v%d, v%d" % (72 + k, 72 + k))
        for k in range(4):
            e("v_mul_f32 v%d, v%d, v%d" % (72 + k, 72 + k, 64 + k))
        e("""
v_cvt_pk_bf16_f32 v68, v72, v73
v_cvt_pk_bf16_f32 v69, v74, v75
s_nop 1
v_permlane32_swap_b32 v70, v68
v_permlane32_swap_b32 v71, v69
s_nop 0
""")
        self.o[-3] = "    v_permlane32_swap_b32 v68, v70"
        self.o[-2] = "    v_permlane32_swap_b32 v69, v71"
        e("""
v_lshlrev_b32 v72, 16, v70
v_and_b32 v73, s56, v70
v_lshlrev_b32 v74, 16, v71
v_and_b32 v75, s56, v71
""")
        for k in range(4):
            e("v_mul_f32 v%d, v%d, v%d" % (64 + k, 64 + k, 72 + k))
        e("""
v_cvt_pk_bf16_f32 v68, v64, v65
v_cvt_pk_bf16_f32 v69, v66, v67
v_lshlrev_b32 v64, 16, v68
v_and_b32 v65, s56, v68
v_lshlrev_b32 v66, 16, v69
v_and_b32 v67, s56, v69
v_add_f32 v64, v64, v76
v_add_f32 v65, v65, v77
v_add_f32 v66, v66, v78
v_add_f32 v67, v67, v79
v_cvt_pk_bf16_f32 v68, v64, v65
v_cvt_pk_bf16_f32 v69, v66, v67
s_mov_b64 exec, 0xff
buffer_store_dwordx2 v[68:69], v42, s[60:63], s54 offen%s
""" % self.outflag)
        self.stamp(6)
        self.label("L_cs_end")
        if self.stamps:
            e("s_waitcnt vmcnt(0)")
            self.stamp(9)
            self.flush_stamps([(4, 32), (10, 33), (8, 34), (5, 35), (6, 36), (9, 37), (7, 38)], wave_off=True)
            e("s_cmp_lg_u32 s36, 0\ns_cbranch_scc1 L_end")
            self.flush_stamps([(0, 11), (1, 12), (2, 13), (3, 14), (4, 8), (5, 15), (7, 22), (8, 23), (6, 24), (9, 10)])
        self.label("L_end")
        e("s_endpgm")
        self.label("L_code_end")

    def build(self):
        hdr = open("cdna_kernels/%s.s.ref" % KN).read().split("\n")
        head = []
        for l in hdr:
            if l.startswith("; @launch"):
                break
            head.append(l)
        head.append("; @launch grid=(256,1,1) block=(384,1,1) lds=%d" % LDS_TOTAL)
        head += """;
; One persistent launch, 256 workgroups (one per CU) x 6 waves.  Written with a generator script (dev/gen.py).
;   wg = 8*idx + x.  Attention: kv head 2x + (idx>>4), batch (idx>>2)&3, 512-key split idx&3 of the 2048-key window.
;   Weight role: idx<8 'Q' (64 wq columns), idx<17 gate / idx<26 up (64 columns, plus a 256x64 tile of wo),
;                idx>=26 a 288x192 tile of w_down.
;   wave 0  loader  : streams [column tile][K][V][wo / w_down tile] into a 148 KiB LDS ring with LDS-DMA; 20..32 KiB in
;                     flight, more for a workgroup whose stream lags (so that all 256 streams end together)
;   wave 1  comm    : cross-workgroup hand-offs (q, gate/up -> h, softmax stats)
;   wave 2-5        : LayerNorm, MFMA GEMVs, QK^T, softmax (true max, combined over waves and splits), PV, output
; Hand-offs go through d_ws with sc1 (write-through) stores and sc1 loads.  Every hand-off word is first set to the
; sentinel 0xffffffff by a Q workgroup, which then raises its flag in d_debug.  A word is published only after its
; clear has completed and read only after all 64 flags are up; a reader retries while it still sees the sentinel.
; All spins are bounded.
""".split("\n")[:-1]
        head += ['.amdgcn_target "amdgcn-amd-amdhsa--gfx950"', ".text", ".globl %s_kernel" % KN, ".p2align 8",
                 ".type %s_kernel,@function" % KN, "%s_kernel:" % KN]
        self.prologue()
        self.loader()
        self.comm()
        self.cons()
        tail = """.section .rodata,"a"
.p2align 6
.amdhsa_kernel %s_kernel
  .amdhsa_next_free_vgpr 256
  .amdhsa_next_free_sgpr 102
  .amdhsa_accum_offset 256
  .amdhsa_group_segment_fixed_size 0
  .amdhsa_kernarg_size 96
  .amdhsa_user_sgpr_count 2
  .amdhsa_user_sgpr_kernarg_segment_ptr 1
  .amdhsa_system_sgpr_workgroup_id_x 1
  .amdhsa_float_denorm_mode_32 3
.end_amdhsa_kernel
""" % KN
        return "\n".join(head + self.o) + "\n" + tail


if __name__ == "__main__":
    import argparse
    ap = argparse.ArgumentParser()
    ap.add_argument("out")
    ap.add_argument("--stamps", action="store_true")
    ap.add_argument("--W", type=int, default=20)
    ap.add_argument("--nont", action="store_true")
    ap.add_argument("--tsleep", type=int, default=1)
    ap.add_argument("--csleep", type=int, default=0)
    ap.add_argument("--abl", type=str, default="")
    ap.add_argument("--gearly", type=int, default=-16)
    ap.add_argument("--isleep", type=int, default=4)
    ap.add_argument("--Wlate", type=int, default=0)
    ap.add_argument("--pipe", type=int, default=3)
    ap.add_argument("--adapt", action="store_true")
    ap.add_argument("--wlevels", type=str, default="16,20,24,28")
    ap.add_argument("--wthr", type=str, default="-20,20,55")
    ap.add_argument("--outflag", type=str, default="")
    ap.add_argument("--gpos", type=str, default="24")
    ap.add_argument("--Wc3", type=int, default=0)
    ap.add_argument("--Wcol", type=int, default=0)
    ap.add_argument("--ilv", type=int, default=0)
    ap.add_argument("--cpf", type=int, default=0)
    ap.add_argument("--wrole", type=str, default="20,20,20,24")
    ap.add_argument("--npre", type=int, default=6)
    ap.add_argument("--pace", type=str, default="30,3.45,20")
    ap.add_argument("--plevels", type=str, default="20,24,28,32")
    ap.add_argument("--pslow", type=int, default=40)
    ap.add_argument("--stat_i", type=int, default=2)
    ap.add_argument("--fpos", type=int, default=312)
    ap.add_argument("--opipe", type=int, default=1)
    ap.add_argument("--ogap", type=int, default=2)
    ap.add_argument("--osleep", type=int, default=2)
    ap.add_argument("--glob", type=int, default=0)
    ap.add_argument("--doff", type=int, default=0)
    ap.add_argument("--qoff", type=int, default=0)
    ap.add_argument("--qpos", type=int, default=120)
    ap.add_argument("--qposd", type=int, default=130)
    ap.add_argument("--noprobe", action="store_true")
    ap.add_argument("--wsoff", type=lambda x: int(x, 0), default=0)
    a = ap.parse_args()
    open(a.out, "w").write(Gen(W=a.W, stamps=a.stamps, nt=not a.nont, tsleep=a.tsleep, csleep=a.csleep, abl=a.abl.split(","), gearly=a.gearly, isleep=a.isleep, wsoff=a.wsoff, qpos=a.qpos, qposd=a.qposd, probe=not a.noprobe, Wlate=a.Wlate, pipe=a.pipe, doff=a.doff, qoff=a.qoff, glob=a.glob, osleep=a.osleep, opipe=a.opipe, ogap=a.ogap, fpos=a.fpos, stat_i=a.stat_i, pslow=a.pslow, plevels=tuple(int(x) for x in a.plevels.split(",")), pace=(tuple(float(x) if "." in x else int(x) for x in a.pace.split(",")) if a.pace else None), npre=a.npre, wrole=tuple(int(x) for x in a.wrole.split(",")), cpf=a.cpf, ilv=a.ilv, Wc3=a.Wc3, Wcol=a.Wcol, gpos=tuple(int(x) for x in a.gpos.split(",")), outflag=(" " + a.outflag.replace("_", " ") if a.outflag else ""), adapt=a.adapt, wlevels=tuple(int(x) for x in a.wlevels.split(",")), wthr=tuple(int(x) for x in a.wthr.split(","))).build())
```
